```python
import torch

def _softmax(x, axis=-1):
    return torch.softmax(x, dim=axis)

def _gelu(x):
    return torch.nn.functional.gelu(x, approximate='tanh')

def _silu(x):
    return torch.nn.functional.silu(x)

def _sigmoid(x):
    return torch.sigmoid(x)

def _layernorm(x, axis=-1, eps=1e-05):
    m = x.mean(dim=axis, keepdim=True)
    v = x.var(dim=axis, keepdim=True, unbiased=False)
    return (x - m) / torch.sqrt(v + eps)

def _scatter_add(tgt, idx, src, axis=0):
    return tgt.clone().index_add_(axis, idx, src)

def _segment_sum(src, seg, n):
    out = torch.zeros((n,) + src.shape[1:], dtype=src.dtype)
    return out.index_add_(0, seg, src)

def _pad(x, pw):
    flat = tuple((v for pair in reversed(pw) for v in pair))
    return torch.nn.functional.pad(x, flat)
kernel_name = 'adaLN_cond__sliding_local_dilated__glu_gated_swiglu__prompt'

def setup_inputs():

    _w = lambda a: (lambda t: t.to(torch.bfloat16) if t.is_floating_point() else t)(torch.as_tensor(a))

    def _A_setup():
        B, S, D = (1, 2048, 576)
        return {'x': _w((lambda *s: torch.randn(*s, dtype=torch.bfloat16) * 0.05)(B, S, D)), 'wqkv': _w((lambda *s: torch.randn(*s, dtype=torch.bfloat16) * 0.05)(D, 3 * D)), 'wo': _w((lambda *s: torch.randn(*s, dtype=torch.bfloat16) * 0.05)(D, D))}
    _A_in = _A_setup()

    def _B_setup():
        B, S, D, F = (1, 2048, 576, 4608)
        return {'x': _w((lambda *s: torch.randn(*s, dtype=torch.bfloat16) * 0.05)(B, S, D)), 'w1': _w((lambda *s: torch.randn(*s, dtype=torch.bfloat16) * 0.8)(D, F) * (2.0 / D) ** 0.5), 'w3': _w((lambda *s: torch.randn(*s, dtype=torch.bfloat16) * 0.8)(D, F) * (2.0 / D) ** 0.5), 'w2': _w((lambda *s: torch.randn(*s, dtype=torch.bfloat16) * 0.8)(F, D) * (2.0 / F) ** 0.5)}
    _B_in = _B_setup()
    return {'A_x': _A_in['x'], 'A_wqkv': _A_in['wqkv'], 'A_wo': _A_in['wo'], 'B_x': _B_in['x'], 'B_w1': _B_in['w1'], 'B_w3': _B_in['w3'], 'B_w2': _B_in['w2'], 'c': _w((lambda *s: torch.randn(*s, dtype=torch.bfloat16) * 0.1)(1, 576) * 8.0), 'w_mod': _w((lambda *s: torch.randn(*s, dtype=torch.bfloat16) * 0.1)(576, 6 * 576) * 576 ** (-0.5) * 8.0)}

def reference(A_x, A_wqkv, A_wo, B_x, B_w1, B_w3, B_w2, c, w_mod):

    def _A_ref(x, wqkv, wo):
        B, S, D = x.shape
        H = 32
        Dh = D // H
        W, dil = (8, 2)
        qkv = (lambda x, *d: x.permute(*d))((x @ wqkv).reshape(B, S, 3, H, Dh), 2, 0, 3, 1, 4)
        q, k, v = (qkv[0], qkv[1], qkv[2])
        scale = Dh ** (-0.5)
        pos = torch.arange(S)
        off = torch.arange(W) * dil
        idx = pos[:, None] - off[None, :]
        mask = idx >= 0
        idx_c = torch.where(mask, idx, 0).reshape(-1)
        kg = k[:, :, idx_c, :].reshape(B, H, S, W, Dh)
        vg = v[:, :, idx_c, :].reshape(B, H, S, W, Dh)
        logits = torch.einsum('bhsd,bhswd->bhsw', q, kg) * scale
        logits = torch.where(mask[None, None, :, :], logits, -1000000000.0)
        attn = _softmax(logits, axis=-1)
        o = torch.einsum('bhsw,bhswd->bhsd', attn, vg)
        return (lambda x, *d: x.permute(*d))(o, 0, 2, 1, 3).reshape(B, S, D) @ wo

    def _B_ref(x, w1, w3, w2):
        gate = torch.einsum('bsd,df->bsf', x, w1)
        up = torch.einsum('bsd,df->bsf', x, w3)
        h = _silu(gate) * up
        out = torch.einsum('bsf,fd->bsd', h, w2)
        return out
    x = A_x
    mod = (_silu(c) @ w_mod).reshape(c.shape[0], 6, 1, -1)
    sa, ca, ga, sb, cb, gb = (mod[:, 0].clone(), mod[:, 1].clone(), mod[:, 2].clone(), mod[:, 3].clone(), mod[:, 4].clone(), mod[:, 5].clone())
    h = _layernorm(x, axis=-1) * (1 + ca) + sa
    x = x + ga * _A_ref(h, A_wqkv, A_wo)
    h = _layernorm(x, axis=-1) * (1 + cb) + sb
    x = x + gb * _B_ref(h, B_w1, B_w3, B_w2)
    return x
```

```python
class Asm:
    def __init__(self):
        self.lines = []
        self.kernels = []
        self.launches = []
        self._lab = 0
    def __call__(self, s=""):
        for ln in s.split("\n"):
            ln = ln.strip()
            if ln:
                self.lines.append("    " + ln)
    def label(self, name):
        self.lines.append(name + ":")
    def newlabel(self, p="L"):
        self._lab += 1
        return f"{p}_{self._lab}"
    def nop(self, n):
        while n > 0:
            k = min(n, 16)
            self(f"s_nop {k-1}")
            n -= k
    def begin_kernel(self, name):
        self.lines.append(f".globl {name}")
        self.lines.append(".p2align 8")
        self.lines.append(f".type {name},@function")
        self.lines.append(f"{name}:")
    def end_kernel(self, name, vgpr, sgpr=102, accum=None, grid=None, block=None, lds=0):
        self("s_endpgm")
        if accum is None:
            accum = (vgpr + 3) // 4 * 4
        self.kernels.append((name, vgpr, sgpr, accum))
        self.launches.append(f"; @launch kernel={name} grid=({grid},1,1) block=({block},1,1) lds={lds}")
    def text(self, header):
        out = [header.rstrip("\n")]
        out += self.launches
        out.append('.amdgcn_target "amdgcn-amd-amdhsa--gfx950"')
        out.append(".text")
        out += self.lines
        out.append('.section .rodata,"a"')
        for name, vgpr, sgpr, accum in self.kernels:
            out.append(".p2align 6")
            out.append(f".amdhsa_kernel {name}")
            out.append(f"  .amdhsa_next_free_vgpr {vgpr}")
            out.append(f"  .amdhsa_next_free_sgpr {sgpr}")
            out.append(f"  .amdhsa_accum_offset {accum}")
            out.append("  .amdhsa_group_segment_fixed_size 0")
            out.append("  .amdhsa_kernarg_size 96")
            out.append("  .amdhsa_user_sgpr_count 2")
            out.append("  .amdhsa_user_sgpr_kernarg_segment_ptr 1")
            out.append("  .amdhsa_system_sgpr_workgroup_id_x 1")
            out.append(".end_amdhsa_kernel")
        return "\n".join(out) + "\n"

def vr(b, n=1):
    return f"v{b}" if n == 1 else f"v[{b}:{b+n-1}]"
def sr(b, n=1):
    return f"s{b}" if n == 1 else f"s[{b}:{b+n-1}]"
def ar(b, n=1):
    return f"a{b}" if n == 1 else f"a[{b}:{b+n-1}]"

class Regs:
    def __init__(self, start=0, limit=256):
        self.n = start; self.limit = limit; self.hi = start
    def alloc(self, n=1, align=1):
        b = (self.n + align - 1) // align * align
        self.n = b + n
        self.hi = max(self.hi, self.n)
        assert self.n <= self.limit, f"out of regs {self.n} > {self.limit}"
        return b
    def mark(self): return self.n
    def release(self, m): self.n = m

KA = dict(x=0, wqkv=8, wo=16, bx=24, w1=32, w3=40, w2=48, c=56, wmod=64, out=72, dbg=80, ws=88)

WS = dict(
    MOD=(0x0, 3456 * 4),
    MODF1=(0x8000, 18 * 4 * 2 * 16),
    MODB=(0xA000, 3456 * 2),
    WOP=(0x100000, 663552),
    XH=(0x200000, 2359296),
    QKV=(0x500000, 7077888),
    X1=(0xC00000, 2359296),
    H2=(0xF00000, 2359296),
    HH=(0x1200000, 18874368),
    PART=(0x2400000, 4 * 4718592),
)

def srd_from_ptr(a, dst, ptr, size):
    a(f"s_mov_b32 s{dst}, s{ptr}")
    a(f"s_and_b32 s{dst+1}, s{ptr+1}, 0xffff")
    a(f"s_mov_b32 s{dst+2}, {size}")
    a(f"s_mov_b32 s{dst+3}, 0x00020000")

def srd_ws(a, dst, wsptr, name):
    off, size = WS[name]
    a(f"s_add_u32 s{dst}, s{wsptr}, {off}")
    a(f"s_addc_u32 s{dst+1}, s{wsptr+1}, 0")
    a(f"s_and_b32 s{dst+1}, s{dst+1}, 0xffff")
    a(f"s_mov_b32 s{dst+2}, {size}")
    a(f"s_mov_b32 s{dst+3}, 0x00020000")

def bf16_round(a, dst, src):
    a(f"v_cvt_pk_bf16_f32 v{dst}, v{src}, v{src}")
    a(f"v_lshlrev_b32 v{dst}, 16, v{dst}")

def swz(xor):
    return (xor << 10) | 0x1F

import os
STAMPS = os.environ.get("STAMPS", "")
class Stamper:
    def __init__(self, a, kname, wg=0):
        self.a = a; self.on = kname in STAMPS.split(",")
        self.n = 0; self.wg = wg
    def stamp(self):
        if not self.on: return
        r = 70 + 2 * self.n
        if self.n == 0:
            self.a("s_memrealtime s[58:59]")
        self.a(f"s_memtime s[{r}:{r+1}]")
        self.a("s_waitcnt lgkmcnt(0)")
        self.n += 1
    def finish(self, wave_sgpr, vtmp):
        if not self.on: return
        a = self.a
        self.stamp()
        a("s_memrealtime s[66:67]")
        a("s_load_dwordx2 s[64:65], s[0:1], 80")
        a("s_waitcnt lgkmcnt(0)")
        lab = a.newlabel("STAMP_SKIP")
        a(f"s_cmp_lg_u32 s2, {self.wg}")
        a(f"s_cbranch_scc1 {lab}")
        a(f"s_cmp_lg_u32 s{wave_sgpr}, {int(os.environ.get('STAMP_WAVE','0'))}")
        a(f"s_cbranch_scc1 {lab}")
        a("s_mov_b64 exec, -1")
        a("s_mov_b32 s60, s64"); a("s_and_b32 s61, s65, 0xffff"); a("s_mov_b32 s62, 256"); a("s_mov_b32 s63, 0x00020000")
        a(f"v_mov_b32 v{vtmp}, 0")
        for i in range(self.n):
            a(f"s_sub_u32 s68, s{70+2*i}, s70")
            a(f"v_mov_b32 v{vtmp+1}, s68")
            a(f"buffer_store_dword v{vtmp+1}, v{vtmp}, s[60:63], 0 offen offset:{4*i}")
        a("s_sub_u32 s68, s66, s58")
        a(f"v_mov_b32 v{vtmp+1}, s68")
        a(f"buffer_store_dword v{vtmp+1}, v{vtmp}, s[60:63], 0 offen offset:60")
        a.label(lab)
```

```python
from fw import *
LOG2E = 0x3fb8aa3b
NLOG2E = 0xbfb8aa3b

def gen_p0(a):
    NA, NB, NC = 108, 162, 64
    name = "p0_kernel"
    a.begin_kernel(name)
    a(f"s_cmp_ge_u32 s2, {NA+NB+NC}")
    a("s_cbranch_scc1 P0_END")
    a("s_load_dwordx2 s[4:5], s[0:1], 0")
    a("s_load_dwordx2 s[6:7], s[0:1], 16")
    a("s_load_dwordx4 s[8:11], s[0:1], 56")
    a("s_load_dwordx2 s[12:13], s[0:1], 88")
    a("s_waitcnt lgkmcnt(0)")
    a(f"s_cmp_ge_u32 s2, {NA+NB}")
    a("s_cbranch_scc1 P0_C")
    a(f"s_cmp_ge_u32 s2, {NA}")
    a("s_cbranch_scc1 P0_B")
    srd_from_ptr(a, 16, 10, 576 * 6912)
    srd_from_ptr(a, 20, 8, 1152)
    srd_ws(a, 24, 12, "MOD")
    srd_ws(a, 28, 12, "MODF1")
    a("v_and_b32 v1, 3, v0")
    a("v_lshrrev_b32 v2, 2, v0")
    a("v_mul_u32_u24 v3, 6912, v2")
    a("s_lshl_b32 s32, s2, 6")
    a("v_lshl_add_u32 v3, v1, 4, v3")
    a("v_add_u32 v3, s32, v3")
    a("v_lshlrev_b32 v4, 1, v2")
    for i in range(9):
        a(f"s_mov_b32 s{33+i}, {i*64*6912}")
    for i in range(9):
        a(f"buffer_load_ushort v{52+i}, v4, s[20:23], 0 offen offset:{i*128}")
    for i in range(9):
        a(f"buffer_load_dwordx4 v[{16+4*i}:{19+4*i}], v3, s[16:19], s{33+i} offen")
    for i in range(8):
        a(f"v_mov_b32 v{8+i}, 0")
    a("s_waitcnt vmcnt(9)")
    for i in range(9):
        c = 52 + i
        a(f"v_lshlrev_b32 v{c}, 16, v{c}")
        a(f"v_mul_f32 v5, {NLOG2E}, v{c}")
        a("v_exp_f32 v5, v5")
        a("s_nop 0")
        a("v_add_f32 v5, 1.0, v5")
        a("v_rcp_f32 v5, v5")
        a("s_nop 0")
        a(f"v_mul_f32 v{c}, v{c}, v5")
        bf16_round(a, c, c)
    for i in range(9):
        a(f"s_waitcnt vmcnt({8-i})")
        for d in range(4):
            w = 16 + 4 * i + d
            a(f"v_lshlrev_b32 v5, 16, v{w}")
            a(f"v_and_b32 v6, 0xffff0000, v{w}")
            a(f"v_fmac_f32 v{8+2*d}, v{52+i}, v5")
            a(f"v_fmac_f32 v{9+2*d}, v{52+i}, v6")
    a("v_lshlrev_b32 v5, 7, v2")
    a("v_lshl_add_u32 v5, v1, 5, v5")
    a("ds_write_b128 v5, v[8:11]")
    a("ds_write_b128 v5, v[12:15] offset:16")
    a("v_and_b32 v6, 31, v0")
    a("v_lshrrev_b32 v7, 5, v0")
    a("v_lshlrev_b32 v5, 10, v7")
    a("v_lshl_add_u32 v5, v6, 2, v5")
    a("s_waitcnt lgkmcnt(0)")
    a("s_barrier")
    for i in range(8):
        a(f"ds_read_b32 v{16+i}, v5 offset:{i*128}")
    a("s_waitcnt lgkmcnt(0)")
    for i in range(1, 8):
        a(f"v_add_f32 v16, v16, v{16+i}")
    a("v_lshlrev_b32 v5, 2, v0")
    a("ds_write_b32 v5, v16 offset:8192")
    a("s_waitcnt lgkmcnt(0)")
    a("s_barrier")
    a("v_cmp_gt_u32 vcc, 32, v0")
    a("s_and_saveexec_b64 s[44:45], vcc")
    a("s_cbranch_execz P0_END")
    for i in range(8):
        a(f"ds_read_b32 v{16+i}, v5 offset:{8192+i*128}")
    a("s_waitcnt lgkmcnt(0)")
    for i in range(1, 8):
        a(f"v_add_f32 v16, v16, v{16+i}")
    bf16_round(a, 16, 16)
    a("s_mul_i32 s46, s2, 3641")
    a("s_lshr_b32 s46, s46, 16")
    a("s_mul_i32 s47, s46, 18")
    a("s_sub_u32 s47, s2, s47")
    a("s_mov_b32 s48, 0")
    a("s_cmp_eq_u32 s46, 1")
    a("s_cselect_b32 s48, 1.0, s48")
    a("s_cmp_eq_u32 s46, 4")
    a("s_cselect_b32 s48, 1.0, s48")
    a("v_add_f32 v16, s48, v16")
    bf16_round(a, 16, 16)
    a("s_lshl_b32 s49, s2, 7")
    a("buffer_store_dword v16, v5, s[24:27], s49 offen")
    srd_ws(a, 52, 12, "MODB")
    a("v_lshrrev_b32 v18, 16, v16")
    a("v_lshlrev_b32 v19, 1, v0")
    a("s_lshl_b32 s49, s2, 6")
    a("buffer_store_short v18, v19, s[52:55], s49 offen")
    a("s_cmp_ge_u32 s2, 36")
    a("s_cbranch_scc1 P0_END")
    a("v_bfe_u32 v6, v0, 2, 2")
    a("v_and_b32 v7, 3, v0")
    a("v_lshrrev_b32 v17, 4, v0")
    a("v_lshl_add_u32 v7, v17, 2, v7")
    a("v_lshlrev_b32 v7, 1, v7")
    a("v_lshl_add_u32 v7, v6, 5, v7")
    a("s_lshl_b32 s50, s47, 7")
    a("s_xor_b32 s51, s46, 1")
    a("s_lshl_b32 s51, s51, 4")
    a("s_add_u32 s50, s50, s51")
    a("v_lshrrev_b32 v16, 16, v16")
    a("buffer_store_short v16, v7, s[28:31], s50 offen")
    a("s_branch P0_END")
    a.label("P0_B")
    srd_from_ptr(a, 16, 6, 576 * 1152)
    srd_ws(a, 20, 12, "WOP")
    a(f"s_sub_u32 s32, s2, {NA}")
    a("s_lshl_b32 s32, s32, 8")
    a("v_add_u32 v1, s32, v0")
    a("v_lshrrev_b32 v2, 6, v1")
    a("v_mul_u32_u24 v3, 3641, v2")
    a("v_lshrrev_b32 v3, 16, v3")
    a("v_mul_u32_u24 v4, 18, v3")
    a("v_sub_u32 v4, v2, v4")
    a("v_and_b32 v5, 15, v0")
    a("v_lshl_add_u32 v5, v3, 4, v5")
    a("v_bfe_u32 v6, v0, 4, 2")
    a("v_lshlrev_b32 v6, 3, v6")
    a("v_lshl_add_u32 v6, v4, 5, v6")
    a("v_mul_u32_u24 v6, 1152, v6")
    a("v_lshl_add_u32 v6, v5, 1, v6")
    a("s_mov_b32 s33, 4608")
    for j in range(8):
        so = "0" if j < 4 else "s33"
        a(f"buffer_load_ushort v{8+j}, v6, s[16:19], {so} offen offset:{(j%4)*1152}")
    a("v_lshlrev_b32 v1, 4, v1")
    a("s_waitcnt vmcnt(0)")
    for d in range(4):
        a(f"v_lshl_or_b32 v{16+d}, v{9+2*d}, 16, v{8+2*d}")
    a("buffer_store_dwordx4 v[16:19], v1, s[20:23], 0 offen")
    a("s_branch P0_END")
    a.label("P0_C")
    srd_from_ptr(a, 16, 4, 2048 * 1152)
    srd_ws(a, 20, 12, "XH")
    a(f"s_sub_u32 s32, s2, {NA+NB}")
    a("s_lshl_b32 s32, s32, 5")
    a("v_lshrrev_b32 v1, 3, v0")
    a("v_add_u32 v1, s32, v1")
    a("v_and_b32 v2, 3, v0")
    a("v_bfe_u32 v3, v0, 2, 1")
    a("v_mul_u32_u24 v4, 1152, v1")
    a("v_lshl_add_u32 v4, v3, 6, v4")
    a("v_lshl_add_u32 v4, v2, 3, v4")
    X = 16
    for i in range(9):
        a(f"buffer_load_dwordx2 v[{X+4*i}:{X+4*i+1}], v4, s[16:19], 0 offen offset:{i*128}")
        a(f"buffer_load_dwordx2 v[{X+4*i+2}:{X+4*i+3}], v4, s[16:19], 0 offen offset:{i*128+32}")
    a("v_lshrrev_b32 v5, 4, v1")
    a("v_mul_u32_u24 v5, 1152, v5")
    a("v_lshl_add_u32 v5, v3, 6, v5")
    a("v_lshl_add_u32 v5, v2, 4, v5")
    a("v_and_b32 v6, 15, v1")
    a("v_add_u32 v5, v5, v6")
    a("v_lshlrev_b32 v5, 4, v5")
    for i in range(9):
        a(f"s_mov_b32 s{33+i}, {2048*i}")
    a("v_mov_b32 v6, 0x3f803f80")
    a("v_mov_b32 v7, 0")
    a("v_mov_b32 v8, 0")
    a("s_waitcnt vmcnt(0)")
    for i in range(36):
        a(f"v_dot2_f32_bf16 v{7+(i&1)}, v{X+i}, v6, v{7+(i&1)}")
    a.nop(3)
    a("v_add_f32 v7, v7, v8")
    for xm in (1, 2, 4):
        a(f"ds_swizzle_b32 v8, v7 offset:{swz(xm)}")
        a("s_waitcnt lgkmcnt(0)")
        a("v_add_f32 v7, v7, v8")
    a(f"v_mul_f32 v7, 0x{np_f32(1.0/576):08x}, v7")
    D = 56
    a("v_mov_b32 v9, 0")
    a("v_mov_b32 v10, 0")
    for i in range(36):
        a(f"v_lshlrev_b32 v{D+2*i}, 16, v{X+i}")
        a(f"v_and_b32 v{D+2*i+1}, 0xffff0000, v{X+i}")
        a(f"v_sub_f32 v{D+2*i}, v{D+2*i}, v7")
        a(f"v_sub_f32 v{D+2*i+1}, v{D+2*i+1}, v7")
        a(f"v_fmac_f32 v9, v{D+2*i}, v{D+2*i}")
        a(f"v_fmac_f32 v10, v{D+2*i+1}, v{D+2*i+1}")
    a("v_add_f32 v9, v9, v10")
    for xm in (1, 2, 4):
        a(f"ds_swizzle_b32 v8, v9 offset:{swz(xm)}")
        a("s_waitcnt lgkmcnt(0)")
        a("v_add_f32 v9, v9, v8")
    ln_scalars(a, mean=7, ssq=9, rinv=9, corr=10, tmp=8)
    for i in range(36):
        a(f"v_fma_f32 v{D+2*i}, v{D+2*i}, v9, v10")
        a(f"v_fma_f32 v{D+2*i+1}, v{D+2*i+1}, v9, v10")
        a(f"v_cvt_pk_bf16_f32 v{X+i}, v{D+2*i}, v{D+2*i+1}")
    for i in range(9):
        a(f"buffer_store_dwordx4 v[{X+4*i}:{X+4*i+3}], v5, s[20:23], s{33+i} offen")
    a.label("P0_END")
    a.end_kernel(name, vgpr=128, sgpr=64, grid=NA + NB + NC, block=256, lds=10240)

import struct
def np_f32(x):
    return struct.unpack("<I", struct.pack("<f", x))[0]

def ln_scalars(a, mean, ssq, rinv, corr, tmp):
    a(f"v_mul_f32 v{rinv}, 0x{np_f32(1.0/576):08x}, v{ssq}")
    bf16_round(a, rinv, rinv)
    a(f"v_add_f32 v{rinv}, 0x{np_f32(1e-5):08x}, v{rinv}")
    bf16_round(a, rinv, rinv)
    a(f"v_sqrt_f32 v{rinv}, v{rinv}")
    a("s_nop 0")
    bf16_round(a, rinv, rinv)
    a(f"v_rcp_f32 v{rinv}, v{rinv}")
    bf16_round(a, tmp, mean)
    a(f"v_sub_f32 v{corr}, v{mean}, v{tmp}")
    a(f"v_mul_f32 v{corr}, v{corr}, v{rinv}")
```

```python
import sys
sys.path.insert(0, "dev")
from fw import *
import k_p0
NAME = "adaLN_cond__sliding_local_dilated__glu_gated_swiglu__prompt"
ref = open(f"cdna_kernels/{NAME}.s.ref").read().split("\n")
header = "\n".join(l for l in ref if l.startswith(";") and "@launch" not in l and "Override launch" not in l and "grid=ceil" not in l)
a = Asm()
stages = sys.argv[2].split(",") if len(sys.argv) > 2 else ["p0", "p1", "p2", "p3", "p4", "p5"]
for st in stages:
    mod = __import__("k_" + st)
    getattr(mod, "gen_" + st)(a)
open(sys.argv[1], "w").write(a.text(header))
```

```python
class Asm:
    def __init__(self):
        self.lines = []
        self.kernels = []
        self.launches = []
        self._lab = 0
    def __call__(self, s=""):
        for ln in s.split("\n"):
            ln = ln.strip()
            if ln:
                self.lines.append("    " + ln)
    def label(self, name):
        self.lines.append(name + ":")
    def newlabel(self, p="L"):
        self._lab += 1
        return f"{p}_{self._lab}"
    def nop(self, n):
        while n > 0:
            k = min(n, 16)
            self(f"s_nop {k-1}")
            n -= k
    @property
    def nk(self): return len(self.kernels)
    def begin_kernel(self, name):
        self.lines.append(f".globl {name}")
        self.lines.append(".p2align 8")
        self.lines.append(f".type {name},@function")
        self.lines.append(f"{name}:")
    def end_kernel(self, name, vgpr, sgpr=102, accum=None, grid=None, block=None, lds=0):
        self("s_endpgm")
        if accum is None:
            accum = (vgpr + 3) // 4 * 4
        self.kernels.append((name, vgpr, sgpr, accum))
        self.launches.append(f"; @launch kernel={name} grid=({grid},1,1) block=({block},1,1) lds={lds}")
    def text(self, header):
        out = [header.rstrip("\n")]
        out += self.launches
        out.append('.amdgcn_target "amdgcn-amd-amdhsa--gfx950"')
        out.append(".text")
        out += self.lines
        out.append('.section .rodata,"a"')
        for name, vgpr, sgpr, accum in self.kernels:
            out.append(".p2align 6")
            out.append(f".amdhsa_kernel {name}")
            out.append(f"  .amdhsa_next_free_vgpr {vgpr}")
            out.append(f"  .amdhsa_next_free_sgpr {sgpr}")
            out.append(f"  .amdhsa_accum_offset {accum}")
            out.append("  .amdhsa_group_segment_fixed_size 0")
            out.append("  .amdhsa_kernarg_size 96")
            out.append("  .amdhsa_user_sgpr_count 2")
            out.append("  .amdhsa_user_sgpr_kernarg_segment_ptr 1")
            out.append("  .amdhsa_system_sgpr_workgroup_id_x 1")
            out.append(".end_amdhsa_kernel")
        return "\n".join(out) + "\n"

def vr(b, n=1):
    return f"v{b}" if n == 1 else f"v[{b}:{b+n-1}]"
def sr(b, n=1):
    return f"s{b}" if n == 1 else f"s[{b}:{b+n-1}]"
def ar(b, n=1):
    return f"a{b}" if n == 1 else f"a[{b}:{b+n-1}]"

class Regs:
    def __init__(self, start=0, limit=256):
        self.n = start; self.limit = limit; self.hi = start
    def alloc(self, n=1, align=1):
        b = (self.n + align - 1) // align * align
        self.n = b + n
        self.hi = max(self.hi, self.n)
        assert self.n <= self.limit, f"out of regs {self.n} > {self.limit}"
        return b
    def mark(self): return self.n
    def release(self, m): self.n = m

KA = dict(x=0, wqkv=8, wo=16, bx=24, w1=32, w3=40, w2=48, c=56, wmod=64, out=72, dbg=80, ws=88)

WS = dict(
    FLAGS=(0x0, 0x4000),
    MOD=(0x4000, 3456 * 4),
    MODF1=(0x8000, 18 * 4 * 2 * 16),
    MODB=(0xA000, 3456 * 2),
    ST=(0x10000, 64 * 4 * 32 * 8),
    WOP=(0x100000, 663552),
    XH=(0x200000, 2359296),
    OF=(0x500000, 2359296),
    X1=(0x800000, 2359296),
    H2=(0xB00000, 2359296),
    WQP=(0xE00000, 1990656),
    HH=(0x1200000, 18874368),
    PART=(0x2400000, 4 * 4718592),
)
WS_END = 0x2400000 + 4 * 4718592
def CA(): return 0
def CS(): return 64 * 64
def CB(): return 128 * 64
def CC(): return 136 * 64
def CD(): return 168 * 64

def srd_from_ptr(a, dst, ptr, size):
    a(f"s_mov_b32 s{dst}, s{ptr}")
    a(f"s_and_b32 s{dst+1}, s{ptr+1}, 0xffff")
    a(f"s_mov_b32 s{dst+2}, {size}")
    a(f"s_mov_b32 s{dst+3}, 0x00020000")

def srd_ws(a, dst, wsptr, name):
    off, size = WS[name]
    a(f"s_add_u32 s{dst}, s{wsptr}, {off}")
    a(f"s_addc_u32 s{dst+1}, s{wsptr+1}, 0")
    a(f"s_and_b32 s{dst+1}, s{dst+1}, 0xffff")
    a(f"s_mov_b32 s{dst+2}, {size}")
    a(f"s_mov_b32 s{dst+3}, 0x00020000")

def bf16_round(a, dst, src):
    a(f"v_cvt_pk_bf16_f32 v{dst}, v{src}, v{src}")
    a(f"v_lshlrev_b32 v{dst}, 16, v{dst}")

def swz(xor):
    return (xor << 10) | 0x1F

import os
STAMPS = os.environ.get("STAMPS", "")
class Stamper:
    level = 9
    def __init__(self, a, kname, wg=0):
        self.a = a; self.on = kname in STAMPS.split(",")
        self.n = 0; self.wg = wg
        self.all = bool(os.environ.get("STAMP_ALL"))
    def stamp(self, l=0):
        if not self.on or l > self.level: return
        self.seen = getattr(self, "seen", 0) + 1
        if 1 < self.seen <= 1 + int(os.environ.get("STAMP_SKIP", "0")): return
        if self.n >= 16: return
        self.a("s_memrealtime s[100:101]" if self.all else "s_memtime s[100:101]")
        self.a("s_waitcnt lgkmcnt(0)")
        self.a(f"s_mov_b32 s{84+self.n}, s100")
        self.n += 1
    def finish(self, wave_sgpr, vtmp):
        if not self.on: return
        a = self.a
        self.stamp()
        lab = a.newlabel("STAMP_SKIP")
        a(f"s_cmp_lg_u32 s{wave_sgpr}, {int(os.environ.get('STAMP_WAVE','0'))}")
        a(f"s_cbranch_scc1 {lab}")
        a("s_mov_b64 exec, -1")
        if self.all:
            a("s_load_dwordx2 s[64:65], s[0:1], 88")
            a("s_waitcnt lgkmcnt(0)")
            a("s_add_u32 s60, s64, 0x8000000"); a("s_addc_u32 s61, s65, 0"); a("s_and_b32 s61, s61, 0xffff"); a("s_mov_b32 s62, 0x10000"); a("s_mov_b32 s63, 0x00020000")
            a("s_lshl_b32 s68, s2, 6")
            a(f"v_mov_b32 v{vtmp}, s68")
            for i in range(self.n):
                a(f"v_mov_b32 v{vtmp+1}, s{84+i}")
                a(f"buffer_store_dword v{vtmp+1}, v{vtmp}, s[60:63], 0 offen offset:{4*i}")
        else:
            a(f"s_cmp_lg_u32 s2, {self.wg}")
            a(f"s_cbranch_scc1 {lab}")
            a("s_load_dwordx2 s[64:65], s[0:1], 88")
            a("s_waitcnt lgkmcnt(0)")
            a("s_add_u32 s60, s64, 0x8000000"); a("s_addc_u32 s61, s65, 0"); a("s_and_b32 s61, s61, 0xffff"); a("s_mov_b32 s62, 0x10000"); a("s_mov_b32 s63, 0x00020000")
            a(f"v_mov_b32 v{vtmp}, {64*self.a.nk}")
            for i in range(self.n):
                a(f"s_sub_u32 s68, s{84+i}, s84")
                a(f"v_mov_b32 v{vtmp+1}, s68")
                a(f"buffer_store_dword v{vtmp+1}, v{vtmp}, s[60:63], 0 offen offset:{4*i}")
        a.label(lab)
```

```python
from fw import *

class TrPipe:
    def __init__(self, a, wbuf, nbuf, depth):
        self.a = a; self.wbuf = wbuf; self.nbuf = nbuf; self.depth = depth
        self.cnt = 0
        assert depth < nbuf and 2 * depth <= 15
    def run(self, items, extra=None):
        a = self.a; n = len(items); D = self.depth
        regs = []
        def issue(k):
            addr, i1, i2, _ = items[k]
            w = self.wbuf + 4 * (self.cnt % self.nbuf); self.cnt += 1
            regs.append(w)
            a(f"ds_read_b64_tr_b16 v[{w}:{w+1}], v{addr} offset:{i1}")
            a(f"ds_read_b64_tr_b16 v[{w+2}:{w+3}], v{addr} offset:{i2}")
        for k in range(min(D, n)):
            issue(k)
        for k in range(n):
            if k + D < n:
                issue(k + D)
            out = min(n, k + D + 1) - (k + 1)
            a(f"s_waitcnt lgkmcnt({2*out})")
            items[k][3](regs[k])
            if extra and k in extra:
                extra[k]()

def dma_voffsets(a, dst, n, lane, ldw, tmp):
    for j in range(n):
        a(f"v_add_u32 v{tmp}, {64*j}, v{lane}")
        a(f"v_mul_u32_u24 v{tmp+1}, 3641, v{tmp}")
        a(f"v_lshrrev_b32 v{tmp+1}, 16, v{tmp+1}")
        a(f"v_mul_u32_u24 v{dst+j}, 18, v{tmp+1}")
        a(f"v_sub_u32 v{tmp}, v{tmp}, v{dst+j}")
        a(f"v_mul_u32_u24 v{dst+j}, {ldw}, v{tmp+1}")
        a(f"v_lshl_add_u32 v{dst+j}, v{tmp}, 4, v{dst+j}")
for c in range(400):
    assert (c * 3641) >> 16 == c // 18
for c in range(700):
    assert (c * 3641) >> 16 == c // 18
for c in range(300):
    assert (c * 5462) >> 16 == c // 12

class VmTracker:
    def __init__(self, a):
        self.a = a; self.ops = []
    def issue(self, tag, n=1):
        self.ops += [tag] * n
    def wait(self, *tags):
        last = max(i for i, t in enumerate(self.ops) if t in tags)
        n = len(self.ops) - 1 - last
        assert n <= 63
        self.a(f"s_waitcnt vmcnt({n})")

def run_stages(a, pipe, stages, boundary, spread, hooks=None):
    segs = [[0], list(range(1, len(stages)))]
    for seg in segs:
        items = []; extra = {}
        def add(k, f):
            extra.setdefault(k, []).append(f)
        for si, i in enumerate(seg):
            k0 = len(items)
            if si == 0:
                boundary(i)
            else:
                add(k0 - 1, (lambda i=i: boundary(i)))
            its = stages[i]
            pcs = spread(i)
            n = len(its)
            for q, f in enumerate(pcs):
                add(k0 + 1 + (q * (n - 3)) // max(len(pcs), 1), f)
            if hooks:
                for li, fs in hooks(i).items():
                    for f in fs: add(k0 + li, f)
            items += its
        ex = {k: (lambda fs=fs: [f() for f in fs]) for k, fs in extra.items()}
        pipe.run(items, ex)

class LTracker:
    def __init__(self, a):
        self.a = a; self.ops = []
    def issue(self, tag, asm):
        self.a(asm); self.ops.append(tag)
    def wait(self, *tags):
        idx = [i for i, t in enumerate(self.ops) if t in tags]
        if not idx: return
        n = len(self.ops) - 1 - max(idx)
        self.a(f"s_waitcnt lgkmcnt({min(n, 15)})")
    def drained(self):
        self.ops = []
```

```python
from fw import *
LOG2E = 0x3fb8aa3b
NLOG2E = 0xbfb8aa3b

def gen_p0(a):
    NA, NB, NC, NE = 108, 162, 64, 122
    name = "p0_kernel"
    a.begin_kernel(name)
    a(f"s_cmp_ge_u32 s2, {NA+NB+NC+NE}")
    a("s_cbranch_scc1 P0_END")
    a("s_load_dwordx2 s[14:15], s[0:1], 8")
    a("s_load_dwordx2 s[4:5], s[0:1], 0")
    a("s_load_dwordx2 s[6:7], s[0:1], 16")
    a("s_load_dwordx4 s[8:11], s[0:1], 56")
    a("s_load_dwordx2 s[12:13], s[0:1], 88")
    a("s_waitcnt lgkmcnt(0)")
    a(f"s_cmp_ge_u32 s2, {NA+NB+NC}")
    a("s_cbranch_scc1 P0_E")
    a(f"s_cmp_ge_u32 s2, {NA+NB}")
    a("s_cbranch_scc1 P0_C")
    a(f"s_cmp_ge_u32 s2, {NA}")
    a("s_cbranch_scc1 P0_B")
    only = os.environ.get("P0_ONLY", "ABCE")
    if "A" not in only: a("s_branch P0_END")
    srd_from_ptr(a, 16, 10, 576 * 6912)
    srd_from_ptr(a, 20, 8, 1152)
    srd_ws(a, 24, 12, "MOD")
    srd_ws(a, 28, 12, "MODF1")
    a("v_and_b32 v1, 3, v0")
    a("v_lshrrev_b32 v2, 2, v0")
    a("v_mul_u32_u24 v3, 6912, v2")
    a("s_lshl_b32 s32, s2, 6")
    a("v_lshl_add_u32 v3, v1, 4, v3")
    a("v_add_u32 v3, s32, v3")
    a("v_lshlrev_b32 v4, 1, v2")
    for i in range(9):
        a(f"s_mov_b32 s{33+i}, {i*64*6912}")
    for i in range(9):
        a(f"buffer_load_ushort v{52+i}, v4, s[20:23], 0 offen offset:{i*128}")
    for i in range(9):
        a(f"buffer_load_dwordx4 v[{16+4*i}:{19+4*i}], v3, s[16:19], s{33+i} offen")
    for i in range(8):
        a(f"v_mov_b32 v{8+i}, 0")
    a("s_waitcnt vmcnt(9)")
    for i in range(9):
        c = 52 + i
        a(f"v_lshlrev_b32 v{c}, 16, v{c}")
        a(f"v_mul_f32 v5, {NLOG2E}, v{c}")
        a("v_exp_f32 v5, v5")
        a("s_nop 0")
        a("v_add_f32 v5, 1.0, v5")
        a("v_rcp_f32 v5, v5")
        a("s_nop 0")
        a(f"v_mul_f32 v{c}, v{c}, v5")
        bf16_round(a, c, c)
    for i in range(9):
        a(f"s_waitcnt vmcnt({8-i})")
        for d in range(4):
            w = 16 + 4 * i + d
            a(f"v_lshlrev_b32 v5, 16, v{w}")
            a(f"v_and_b32 v6, 0xffff0000, v{w}")
            a(f"v_fmac_f32 v{8+2*d}, v{52+i}, v5")
            a(f"v_fmac_f32 v{9+2*d}, v{52+i}, v6")
    a("v_lshlrev_b32 v5, 7, v2")
    a("v_lshl_add_u32 v5, v1, 5, v5")
    a("ds_write_b128 v5, v[8:11]")
    a("ds_write_b128 v5, v[12:15] offset:16")
    a("v_and_b32 v6, 31, v0")
    a("v_lshrrev_b32 v7, 5, v0")
    a("v_lshlrev_b32 v5, 10, v7")
    a("v_lshl_add_u32 v5, v6, 2, v5")
    a("s_waitcnt lgkmcnt(0)")
    a("s_barrier")
    for i in range(8):
        a(f"ds_read_b32 v{16+i}, v5 offset:{i*128}")
    a("s_waitcnt lgkmcnt(0)")
    for i in range(1, 8):
        a(f"v_add_f32 v16, v16, v{16+i}")
    a("v_lshlrev_b32 v5, 2, v0")
    a("ds_write_b32 v5, v16 offset:8192")
    a("s_waitcnt lgkmcnt(0)")
    a("s_barrier")
    a("v_cmp_gt_u32 vcc, 32, v0")
    a("s_and_saveexec_b64 s[44:45], vcc")
    a("s_cbranch_execz P0_END")
    for i in range(8):
        a(f"ds_read_b32 v{16+i}, v5 offset:{8192+i*128}")
    a("s_waitcnt lgkmcnt(0)")
    for i in range(1, 8):
        a(f"v_add_f32 v16, v16, v{16+i}")
    bf16_round(a, 16, 16)
    a("s_mul_i32 s46, s2, 3641")
    a("s_lshr_b32 s46, s46, 16")
    a("s_mul_i32 s47, s46, 18")
    a("s_sub_u32 s47, s2, s47")
    a("s_mov_b32 s48, 0")
    a("s_cmp_eq_u32 s46, 1")
    a("s_cselect_b32 s48, 1.0, s48")
    a("s_cmp_eq_u32 s46, 4")
    a("s_cselect_b32 s48, 1.0, s48")
    a("v_add_f32 v16, s48, v16")
    bf16_round(a, 16, 16)
    a("s_lshl_b32 s49, s2, 7")
    a("buffer_store_dword v16, v5, s[24:27], s49 offen")
    srd_ws(a, 52, 12, "MODB")
    a("v_lshrrev_b32 v18, 16, v16")
    a("v_lshlrev_b32 v19, 1, v0")
    a("s_lshl_b32 s49, s2, 6")
    a("buffer_store_short v18, v19, s[52:55], s49 offen")
    a("s_cmp_ge_u32 s2, 36")
    a("s_cbranch_scc1 P0_END")
    a("v_bfe_u32 v6, v0, 2, 2")
    a("v_and_b32 v7, 3, v0")
    a("v_lshrrev_b32 v17, 4, v0")
    a("v_lshl_add_u32 v7, v17, 2, v7")
    a("v_lshlrev_b32 v7, 1, v7")
    a("v_lshl_add_u32 v7, v6, 5, v7")
    a("s_lshl_b32 s50, s47, 7")
    a("s_xor_b32 s51, s46, 1")
    a("s_lshl_b32 s51, s51, 4")
    a("s_add_u32 s50, s50, s51")
    a("v_lshrrev_b32 v16, 16, v16")
    a("buffer_store_short v16, v7, s[28:31], s50 offen")
    a("s_branch P0_END")
    a.label("P0_B")
    if "B" not in only: a("s_branch P0_END")
    srd_from_ptr(a, 16, 6, 576 * 1152)
    srd_ws(a, 20, 12, "WOP")
    a(f"s_sub_u32 s32, s2, {NA}")
    a("s_lshl_b32 s32, s32, 8")
    a("v_add_u32 v1, s32, v0")
    a("v_lshrrev_b32 v2, 6, v1")
    a("v_mul_u32_u24 v3, 3641, v2")
    a("v_lshrrev_b32 v3, 16, v3")
    a("v_mul_u32_u24 v4, 18, v3")
    a("v_sub_u32 v4, v2, v4")
    a("v_and_b32 v5, 15, v0")
    a("v_lshl_add_u32 v5, v3, 4, v5")
    a("v_bfe_u32 v6, v0, 4, 2")
    a("v_lshlrev_b32 v6, 3, v6")
    a("v_lshl_add_u32 v6, v4, 5, v6")
    a("v_mul_u32_u24 v6, 1152, v6")
    a("v_lshl_add_u32 v6, v5, 1, v6")
    a("s_mov_b32 s33, 4608")
    for j in range(8):
        so = "0" if j < 4 else "s33"
        a(f"buffer_load_ushort v{8+j}, v6, s[16:19], {so} offen offset:{(j%4)*1152}")
    a("v_lshlrev_b32 v1, 4, v1")
    a("s_waitcnt vmcnt(0)")
    for d in range(4):
        a(f"v_lshl_or_b32 v{16+d}, v{9+2*d}, 16, v{8+2*d}")
    a("buffer_store_dwordx4 v[16:19], v1, s[20:23], 0 offen")
    a("s_branch P0_END")
    a.label("P0_C")
    if "C" not in only: a("s_branch P0_END")
    srd_from_ptr(a, 16, 4, 2048 * 1152)
    srd_ws(a, 20, 12, "XH")
    a(f"s_sub_u32 s32, s2, {NA+NB}")
    a("s_cmp_ge_u32 s32, 4")
    a("s_cbranch_scc1 P0_C2")
    srd_ws(a, 24, 12, "FLAGS")
    a("v_lshlrev_b32 v1, 4, v0")
    a("s_lshl_b32 s33, s32, 12")
    for i in range(4):
        a(f"v_mov_b32 v{4+i}, 0")
    a("buffer_store_dwordx4 v[4:7], v1, s[24:27], s33 offen")
    a.label("P0_C2")
    a("s_lshl_b32 s32, s32, 5")
    a("v_lshrrev_b32 v1, 3, v0")
    a("v_add_u32 v1, s32, v1")
    a("v_and_b32 v2, 3, v0")
    a("v_bfe_u32 v3, v0, 2, 1")
    a("v_mul_u32_u24 v4, 1152, v1")
    a("v_lshl_add_u32 v4, v3, 6, v4")
    a("v_lshl_add_u32 v4, v2, 3, v4")
    X = 16
    for i in range(9):
        a(f"buffer_load_dwordx2 v[{X+4*i}:{X+4*i+1}], v4, s[16:19], 0 offen offset:{i*128}")
        a(f"buffer_load_dwordx2 v[{X+4*i+2}:{X+4*i+3}], v4, s[16:19], 0 offen offset:{i*128+32}")
    a("v_lshrrev_b32 v5, 4, v1")
    a("v_mul_u32_u24 v5, 1152, v5")
    a("v_lshl_add_u32 v5, v3, 6, v5")
    a("v_lshl_add_u32 v5, v2, 4, v5")
    a("v_and_b32 v6, 15, v1")
    a("v_add_u32 v5, v5, v6")
    a("v_lshlrev_b32 v5, 4, v5")
    for i in range(9):
        a(f"s_mov_b32 s{33+i}, {2048*i}")
    a("v_mov_b32 v6, 0x3f803f80")
    a("v_mov_b32 v7, 0")
    a("v_mov_b32 v8, 0")
    a("s_waitcnt vmcnt(0)")
    for i in range(36):
        a(f"v_dot2_f32_bf16 v{7+(i&1)}, v{X+i}, v6, v{7+(i&1)}")
    a.nop(3)
    a("v_add_f32 v7, v7, v8")
    for xm in (1, 2, 4):
        a(f"ds_swizzle_b32 v8, v7 offset:{swz(xm)}")
        a("s_waitcnt lgkmcnt(0)")
        a("v_add_f32 v7, v7, v8")
    a(f"v_mul_f32 v7, 0x{np_f32(1.0/576):08x}, v7")
    D = 56
    a("v_mov_b32 v9, 0")
    a("v_mov_b32 v10, 0")
    for i in range(36):
        a(f"v_lshlrev_b32 v{D+2*i}, 16, v{X+i}")
        a(f"v_and_b32 v{D+2*i+1}, 0xffff0000, v{X+i}")
        a(f"v_sub_f32 v{D+2*i}, v{D+2*i}, v7")
        a(f"v_sub_f32 v{D+2*i+1}, v{D+2*i+1}, v7")
        a(f"v_fmac_f32 v9, v{D+2*i}, v{D+2*i}")
        a(f"v_fmac_f32 v10, v{D+2*i+1}, v{D+2*i+1}")
    a("v_add_f32 v9, v9, v10")
    for xm in (1, 2, 4):
        a(f"ds_swizzle_b32 v8, v9 offset:{swz(xm)}")
        a("s_waitcnt lgkmcnt(0)")
        a("v_add_f32 v9, v9, v8")
    ln_scalars(a, mean=7, ssq=9, rinv=9, corr=10, tmp=8)
    for i in range(36):
        a(f"v_fma_f32 v{D+2*i}, v{D+2*i}, v9, v10")
        a(f"v_fma_f32 v{D+2*i+1}, v{D+2*i+1}, v9, v10")
        a(f"v_cvt_pk_bf16_f32 v{X+i}, v{D+2*i}, v{D+2*i+1}")
    for i in range(9):
        a(f"buffer_store_dwordx4 v[{X+4*i}:{X+4*i+3}], v5, s[20:23], s{33+i} offen")
    a("s_branch P0_END")
    a.label("P0_E")
    if "E" not in only: a("s_branch P0_END")
    srd_from_ptr(a, 16, 14, 576 * 3456)
    srd_ws(a, 20, 12, "WQP")
    a(f"s_sub_u32 s32, s2, {NA+NB+NC}")
    a("s_lshl_b32 s32, s32, 10")
    for q in range(4):
        a(f"v_add_u32 v1, s32, v0")
        if q: a(f"v_add_u32 v1, {256*q}, v1")
        a("v_lshrrev_b32 v2, 1, v1")
        a("v_mul_u32_u24 v2, 58255, v2")
        a("v_lshrrev_b32 v2, 19, v2")
        a("v_mul_u32_u24 v3, 18, v2")
        a("v_sub_u32 v3, v1, v3")
        a("v_and_b32 v4, 31, v2")
        a("v_lshrrev_b32 v5, 5, v2")
        a("v_mul_u32_u24 v6, 171, v5")
        a("v_lshrrev_b32 v6, 9, v6")
        a("v_mul_u32_u24 v7, 3, v6")
        a("v_sub_u32 v7, v5, v7")
        a("v_mul_u32_u24 v8, 57, v6")
        a("v_lshrrev_b32 v8, 10, v8")
        a("v_mul_u32_u24 v9, 18, v8")
        a("v_sub_u32 v9, v6, v9")
        a("v_lshl_add_u32 v4, v9, 5, v4")
        a("v_mul_u32_u24 v4, 3456, v4")
        a("v_mul_u32_u24 v7, 1152, v7")
        a("v_mul_u32_u24 v8, 288, v8")
        a("v_add3_u32 v4, v4, v7, v8")
        a("v_lshl_add_u32 v4, v3, 4, v4")
        a(f"v_lshlrev_b32 v{12+q}, 4, v1")
        a(f"buffer_load_dwordx4 v[{16+4*q}:{19+4*q}], v4, s[16:19], 0 offen")
    for q in range(4):
        a(f"s_waitcnt vmcnt({3-q+q})" if False else f"s_waitcnt vmcnt(3)")
        a(f"buffer_store_dwordx4 v[{16+4*q}:{19+4*q}], v{12+q}, s[20:23], 0 offen")
    a.label("P0_END")
    a.end_kernel(name, vgpr=128, sgpr=64, grid=NA + NB + NC + NE, block=256, lds=10240)

import struct
def np_f32(x):
    return struct.unpack("<I", struct.pack("<f", x))[0]

def ln_scalars(a, mean, ssq, rinv, corr, tmp):
    a(f"v_mul_f32 v{rinv}, 0x{np_f32(1.0/576):08x}, v{ssq}")
    bf16_round(a, rinv, rinv)
    a(f"v_add_f32 v{rinv}, 0x{np_f32(1e-5):08x}, v{rinv}")
    bf16_round(a, rinv, rinv)
    a(f"v_sqrt_f32 v{rinv}, v{rinv}")
    a("s_nop 0")
    bf16_round(a, rinv, rinv)
    a(f"v_rcp_f32 v{rinv}, v{rinv}")
    bf16_round(a, tmp, mean)
    a(f"v_sub_f32 v{corr}, v{mean}, v{tmp}")
    a(f"v_mul_f32 v{corr}, v{corr}, v{rinv}")
```

```python
from fw import *
from gemm_common import *
from k_p0 import ln_scalars, np_f32
import os
NLOG2E = 0xbfb8aa3b
X_, WQKV_, W13_, W2_, OUT_, WS_, XH_ = "s[4:7]", "s[8:11]", "s[12:15]", "s[16:19]", "s[20:23]", "s[28:31]", "s[32:35]"
def wso(n): return WS[n][0]
WOF = 156
SC = " sc1"
DBG = os.environ.get("DBG", "").split(",")

class Ctx:
    def __init__(self, a, sync, st):
        self.a = a; self.sync = sync; self.st = st

def prologue(a, end):
    a("s_cmp_ge_u32 s2, 256")
    a(f"s_cbranch_scc1 {end}")
    a("s_load_dwordx4 s[36:39], s[0:1], 0")
    a("s_load_dwordx4 s[40:43], s[0:1], 32")
    a("s_load_dwordx2 s[44:45], s[0:1], 48")
    a("s_load_dwordx2 s[46:47], s[0:1], 72")
    a("s_load_dwordx2 s[48:49], s[0:1], 88")
    a("s_load_dwordx2 s[50:51], s[0:1], 16")
    a("s_load_dwordx4 s[52:55], s[0:1], 56")
    a("s_load_dwordx2 s[56:57], s[0:1], 80")
    a("v_lshrrev_b32 v1, 6, v0")
    a("v_and_b32 v0, 63, v0")
    a("v_readfirstlane_b32 s24, v1")
    a("s_waitcnt lgkmcnt(0)")
    srd_from_ptr(a, 4, 36, 2048 * 1152)
    srd_from_ptr(a, 8, 38, 576 * 3456)
    a("s_cmp_lt_u32 s24, 4")
    a("s_cselect_b32 s12, s40, s42")
    a("s_cselect_b32 s13, s41, s43")
    a("s_and_b32 s13, s13, 0xffff")
    a(f"s_mov_b32 s14, {576*9216}")
    a("s_mov_b32 s15, 0x00020000")
    srd_from_ptr(a, 16, 44, 4608 * 1152)
    srd_from_ptr(a, 20, 46, 2048 * 1152)
    srd_from_ptr(a, 28, 48, WS_END)
    srd_from_ptr(a, 60, 54, 576 * 6912)
    srd_from_ptr(a, 64, 52, 1152)
    srd_from_ptr(a, 68, 50, 576 * 1152)
    srd_from_ptr(a, 72, 56, 256)

def signal(c, soff, vt, pending=0):
    a = c.a
    a(f"s_waitcnt vmcnt({pending})")
    if not c.sync:
        return
    a("s_barrier")
    lab = a.newlabel("SIG")
    a("s_cmp_lg_u32 s24, 0")
    a(f"s_cbranch_scc1 {lab}")
    a(f"v_mov_b32 v{vt}, 1")
    a("s_mov_b64 exec, 1")
    a(f"buffer_atomic_add v{vt}, off, {WS_}, s{soff} sc1")
    a("s_mov_b64 exec, -1")
    a.label(lab)

def wait_ctr(c, soff, target, vt):
    a = c.a
    if not c.sync:
        return
    done = a.newlabel("WDONE"); loop = a.newlabel("WLOOP")
    a("s_cmp_lg_u32 s24, 0")
    a(f"s_cbranch_scc1 {done}")
    a("s_mov_b32 s56, 0")
    a.label(loop)
    a(f"buffer_load_dword v{vt}, off, {WS_}, s{soff} sc1")
    a("s_waitcnt vmcnt(0)")
    a(f"v_readfirstlane_b32 s57, v{vt}")
    a("s_add_u32 s56, s56, 1")
    a(f"s_cmp_ge_u32 s57, {target}")
    a(f"s_cbranch_scc1 {done}")
    a("s_cmp_gt_u32 s56, 0x400000")
    a(f"s_cbranch_scc1 {done}")
    a("s_sleep 1")
    a(f"s_branch {loop}")
    a.label(done)
    a("s_barrier")

def adv(a, r, n):
    a(f"s_add_u32 s{r}, s{r}, 1")
    a(f"s_cmp_ge_u32 s{r}, {n}")
    a(f"s_cselect_b32 s{r}, 0, s{r}")

QSLOT = 30720
NQS = 5
COEFOFF = NQS * QSLOT
QSTR = 1744
OSTR = 304
class Sprinkle:
    def __init__(self, a, q, period):
        self.a = a; self.q = list(q); self.period = period; self.n = 0; self.busy = False
    def __call__(self, s):
        self.a(s)
        if self.busy: return
        self.n += 1
        if self.q and self.n % self.period == 0 and "exec" not in s and "vcc" not in s and "s_cmp" not in s and "s_nop" not in s:
            self.busy = True; self.q.pop(0)(); self.busy = False
    def flush(self):
        while self.q: self.q.pop(0)()
    def __getattr__(self, k): return getattr(self.a, k)

H1OFF = 4 * 27648
SCR = H1OFF + 27648
def red_g(a, vals, tmp):
    for op in ("v_permlane16_swap_b32", "v_permlane32_swap_b32"):
        for i, v in enumerate(vals): a(f"v_mov_b32 v{tmp+i}, v{v}")
        a("s_nop 1")
        for i, v in enumerate(vals): a(f"{op} v{v}, v{tmp+i}")
        for i, v in enumerate(vals): a(f"v_add_f32 v{v}, v{v}, v{tmp+i}")

def ph12(c):
    a = c.a; st = c.st
    a("s_and_b32 s36, s2, 3")
    a("s_bfe_u32 s37, s2, 0x10002")
    a("s_lshl_b32 s37, s37, 5")
    a("s_lshr_b32 s38, s2, 3")
    a("s_add_u32 s37, s37, s38")
    R = Regs(1, WOF)
    T = R.alloc(8)
    VD = R.alloc(4)
    VL16 = R.alloc(1)
    VOO = R.alloc(1)
    m0 = R.mark()
    XF = R.alloc(36, 4)
    DD = R.alloc(72, 2)
    CF = R.alloc(24, 4)
    VXA = R.alloc(1); STA = R.alloc(6)
    vm = VmTracker(a)
    if c.sync:
        phase0_loads(c, DD)
        vm.issue("M", 6)
    a(f"v_mov_b32 v{VOO}, {48*QSTR}")
    a(f"v_mov_b32 v{WOF}, 0x7f000000")
    a(f"v_lshlrev_b32 v{VL16}, 4, v0")
    a("s_mul_i32 s39, s24, 12")
    for jj in range(4):
        a(f"v_add_u32 v{T}, {64*jj}, v0")
        a(f"v_mul_u32_u24 v{T+1}, 3641, v{T}")
        a(f"v_lshrrev_b32 v{T+1}, 16, v{T+1}")
        a(f"v_mul_u32_u24 v{T+2}, 18, v{T+1}")
        a(f"v_sub_u32 v{T}, v{T}, v{T+2}")
        a(f"v_add_u32 v{T+1}, s39, v{T+1}")
        a(f"v_lshrrev_b32 v{T+2}, 5, v{T+1}")
        a(f"v_bfe_u32 v{T+3}, v{T+1}, 2, 2")
        a(f"v_bfe_u32 v{T+4}, v{T+1}, 4, 1")
        a(f"v_and_b32 v{T+1}, 3, v{T+1}")
        a(f"v_lshl_add_u32 v{T+1}, v{T+3}, 3, v{T+1}")
        a(f"v_lshl_add_u32 v{T+1}, v{T+4}, 2, v{T+1}")
        a(f"v_mul_u32_u24 v{T+1}, 3456, v{T+1}")
        a(f"v_mul_u32_u24 v{T+2}, 1152, v{T+2}")
        a(f"v_add_u32 v{T+1}, v{T+1}, v{T+2}")
        a(f"v_lshl_add_u32 v{VD+jj}, v{T}, 4, v{T+1}")
    a("s_mul_i32 s40, s24, 3456")
    a("s_mul_i32 s41, s36, 288")
    a("s_mul_i32 s42, s38, 57")
    a("s_lshr_b32 s42, s42, 9")
    a("s_mul_i32 s42, s42, 9")
    a("s_sub_u32 s42, s38, s42")
    a("s_mov_b32 s43, s42")
    def dma_pieces(k):
        slot = (k % 4) * 27648
        def piece(jj):
            if jj == 0:
                a(f"s_mul_i32 s44, s42, {32*3456}")
                a(f"s_add_u32 s44, s44, s41")
                if k >= 9: a(f"s_add_u32 s44, s44, {9*32*3456}")
                adv(a, 42, 9)
            a(f"s_add_u32 m0, s40, {slot + jj*1024}")
            a("s_mov_b64 exec, 0xffffff" if jj == 3 else "s_nop 0")
            a(f"buffer_load_dwordx4 v{VD+jj}, {WQKV_}, s44 offen lds")
            if jj == 3: a("s_mov_b64 exec, -1")
            vm.issue(("D", k))
        return [(lambda jj=jj: piece(jj)) for jj in range(4)]
    a("s_lshl_b32 s45, s37, 5")
    a("s_sub_u32 s45, s45, 16")
    a(f"v_and_b32 v{T}, 15, v0")
    a(f"v_add_u32 v{T}, s45, v{T}")
    a("s_mov_b32 s46, 1152")
    a(f"v_mul_lo_u32 v{T}, v{T}, s46")
    a(f"v_lshrrev_b32 v{T+1}, 4, v0")
    a(f"v_lshl_add_u32 v{VXA}, v{T+1}, 4, v{T}")
    a("s_lshl_b32 s46, s24, 6")
    a(f"s_add_u32 s47, s46, {9*64}")
    a("s_mul_i32 s48, s24, 576")
    a(f"s_add_u32 s48, s48, {8*64}")
    a("s_cmp_ge_u32 s24, 2")
    a("s_cselect_b32 s48, 0x7f000000, s48")
    def bulk():
        save = list(vm.ops)
        for q in range(3):
            for m in range(3):
                r = XF + (q * 3 + m) * 4
                a(f"v_add_u32 v{T+7}, s{46+q}, v{VXA}")
                if m: a(f"v_add_u32 v{T+7}, {m*16*1152}, v{T+7}")
                a(f"buffer_load_dwordx4 v[{r}:{r+3}], v{T+7}, {X_}, 0 offen")
                vm.issue("X")
        for k in range(0, 4):
            for f in dma_pieces(k): f()
        return save
    if c.sync:
        def bulk0():
            keep = list(vm.ops)
            bulk()
            vm.ops = keep
        phase0(c, DD, T, vm, bulk0)
        bulk_ops = []
        keep = list(vm.ops)
        class _Null:
            def __call__(self, s): pass
        vm.ops = keep + ["X"] * 9 + [("D", 0)] * 4 + [("D", 1)] * 4 + [("D", 2)] * 4 + [("D", 3)] * 4
    else:
        bulk()
    a(f"v_mov_b32 v{T}, 0x3f803f80")
    vm.wait("X")
    for m in range(3):
        first = True
        for q in range(3):
            for d in range(4):
                r = XF + (q * 3 + m) * 4 + d
                a(f"v_dot2_f32_bf16 v{STA+m}, v{r}, v{T}, " + ("0" if first else f"v{STA+m}"))
                first = False
    a.nop(3)
    red_g(a, [STA, STA + 1, STA + 2], T + 1)
    a(f"v_and_b32 v{T}, 15, v0")
    a(f"v_lshlrev_b32 v{T}, 5, v{T}")
    a(f"v_add_u32 v{T}, {SCR + 4096}, v{T}")
    a("s_lshl_b32 s45, s24, 2")
    a(f"v_add_u32 v{T+1}, s45, v{T}")
    def xchg(off):
        for m in range(3):
            a(f"ds_write_b32 v{T+1}, v{STA+m} offset:{off + m*512}")
        a("s_waitcnt lgkmcnt(0)")
        a("s_barrier")
        for m in range(3):
            a(f"ds_read_b128 v[{CF+8*m}:{CF+8*m+3}], v{T} offset:{off + m*512}")
            a(f"ds_read_b128 v[{CF+8*m+4}:{CF+8*m+7}], v{T} offset:{off + m*512 + 16}")
        a("s_waitcnt lgkmcnt(0)")
        for m in range(3):
            b = CF + 8 * m
            for e in range(4): a(f"v_add_f32 v{b+e}, v{b+e}, v{b+4+e}")
            a(f"v_add_f32 v{b}, v{b}, v{b+1}")
            a(f"v_add_f32 v{b+2}, v{b+2}, v{b+3}")
            a(f"v_add_f32 v{STA+m}, v{b}, v{b+2}")
    xchg(0)
    for m in range(3):
        a(f"v_mul_f32 v{STA+3+m}, 0x{np_f32(1.0/576):08x}, v{STA+m}")
        a(f"v_mov_b32 v{STA+m}, 0")
    def dpass(q):
        for m in range(3):
            for d in range(4):
                r = XF + (q * 3 + m) * 4 + d; o = DD + ((q * 3 + m) * 4 + d) * 2
                a(f"v_lshlrev_b32 v{o}, 16, v{r}")
                a(f"v_and_b32 v{o+1}, 0xffff0000, v{r}")
                a(f"v_sub_f32 v{o}, v{o}, v{STA+3+m}")
                a(f"v_sub_f32 v{o+1}, v{o+1}, v{STA+3+m}")
                a(f"v_fmac_f32 v{STA+m}, v{o}, v{o}")
                a(f"v_fmac_f32 v{STA+m}, v{o+1}, v{o+1}")
    dpass(0); dpass(1)
    lab = a.newlabel("P12_Q2")
    a("s_cmp_ge_u32 s24, 2")
    a(f"s_cbranch_scc1 {lab}")
    dpass(2)
    a.label(lab)
    red_g(a, [STA, STA + 1, STA + 2], T + 2)
    xchg(2048)
    for m in range(3):
        ln_scalars(a, mean=STA + 3 + m, ssq=STA + m, rinv=STA + m, corr=STA + 3 + m, tmp=T + 2)
    for i in range(36):
        m = (i // 4) % 3
        for h in range(2):
            a(f"v_fma_f32 v{DD+2*i+h}, v{DD+2*i+h}, v{STA+m}, v{STA+3+m}")
    st.stamp(1)
    if c.sync:
        wo_pack2(c)
        wait0(c, T + 2, 0, 72)
    st.stamp()
    a(f"v_lshrrev_b32 v{T}, 4, v0")
    a(f"v_lshlrev_b32 v{T}, 4, v{T}")
    for q in range(3):
        a(f"s_add_u32 s45, s{46+q}, {wso('MODB')}")
        a(f"buffer_load_dwordx4 v[{CF+8*q}:{CF+8*q+3}], v{T}, {WS_}, s45 offen offset:1152{SC}")
        a(f"buffer_load_dwordx4 v[{CF+8*q+4}:{CF+8*q+7}], v{T}, {WS_}, s45 offen{SC}")
        vm.issue(("C", q), 2)
    for q in range(3):
        vm.wait(("C", q))
        for d in range(4):
            a(f"v_lshlrev_b32 v{T}, 16, v{CF+8*q+d}")
            a(f"v_and_b32 v{T+1}, 0xffff0000, v{CF+8*q+d}")
            a(f"v_lshlrev_b32 v{T+2}, 16, v{CF+8*q+4+d}")
            a(f"v_and_b32 v{T+3}, 0xffff0000, v{CF+8*q+4+d}")
            for m in range(3):
                o = DD + ((q * 3 + m) * 4 + d) * 2
                a(f"v_fma_f32 v{o}, v{o}, v{T}, v{T+2}")
                a(f"v_fma_f32 v{o+1}, v{o+1}, v{T+1}, v{T+3}")
                a(f"v_cvt_pk_bf16_f32 v{XF+(q*3+m)*4+d}, v{o}, v{o+1}")
    R.release(m0)
    XF = R.alloc(36, 4)
    ACC = R.alloc(40, 4); WB = R.alloc(32, 4); AB = R.alloc(24, 4); TB = R.alloc(2); VH = R.alloc(1); VHB = R.alloc(1); VHW = R.alloc(1)
    a("s_mul_i32 s45, s24, 3072")
    a(f"v_add_u32 v{VHB}, {H1OFF}, v{VL16}")
    a(f"v_add_u32 v{VHW}, s45, v{VHB}")
    def h1_write(half):
        for m in range(3):
            r = XF + (half * 3 + m) * 4
            a(f"ds_write_b128 v{VHW}, v[{r}:{r+3}] offset:{m*1024}")
        lab = a.newlabel("P12_H1")
        a(f"s_cmp_lg_u32 s24, {half}")
        a(f"s_cbranch_scc1 {lab}")
        for m in range(3):
            r = XF + (6 + m) * 4
            a(f"ds_write_b128 v{VHB}, v[{r}:{r+3}] offset:{8*3072 + m*1024}")
        a.label(lab)
        a("s_waitcnt lgkmcnt(0)")
    h1_write(0)
    if c.sync: wo_pack3(c)
    st.stamp(1)
    a(f"v_lshrrev_b32 v{T}, 2, v0")
    a(f"v_mul_u32_u24 v{T}, 288, v{T}")
    a(f"v_and_b32 v{T+1}, 3, v0")
    a(f"v_lshl_add_u32 v{T}, v{T+1}, 3, v{T}")
    a("s_cmp_ge_u32 s24, 3")
    a("s_cselect_b32 s49, 2, 1")
    a("s_cselect_b32 s50, 3, 0")
    a("s_sub_u32 s50, s24, s50")
    a("s_mul_i32 s50, s50, 3")
    a("s_sub_u32 s45, s24, 6")
    a("s_mul_i32 s45, s45, 5")
    a("s_cmp_ge_u32 s24, 6")
    a("s_cselect_b32 s49, 0, s49")
    a("s_cselect_b32 s50, s45, s50")
    a("s_mul_i32 s45, s49, 9216")
    a("s_lshl_b32 s46, s50, 5")
    a("s_add_u32 s45, s45, s46")
    a(f"v_add_u32 v{TB}, s45, v{T}")
    a(f"v_add_u32 v{TB+1}, {2*27648}, v{TB}")
    vm_save = list(vm.ops)
    labB = a.newlabel("P12_GB"); labE = a.newlabel("P12_GE")
    a("s_cmp_ge_u32 s24, 6")
    a(f"s_cbranch_scc1 {labB}")
    def gemm(NT, ms):
        lt = LTracker(a)
        vm.ops = list(vm_save)
        D = NT
        cnt = [0]; wreg = {}; pend = []
        def run(ks):
            items = [(k, n) for k in ks for n in range(NT)]
            def issue(idx):
                k, n = items[idx]
                if n == 0:
                    if "nodma" not in DBG or k < 4: vm.wait(("D", k))
                    if "nobar" not in DBG or k in (0, 9): a("s_barrier")
                    a("s_mul_i32 s45, s43, 3072")
                    adv(a, 43, 9)
                    a(f"v_add_u32 v{VH}, s45, v{VHB}")
                    for m in ms:
                        r = AB + ((k % 2) * 3 + m) * 4
                        lt.issue(("A", k), f"ds_read_b128 v[{r}:{r+3}], v{VH} offset:{m*1024}")
                    if 2 <= k and k + 2 < 18 and "nodma" not in DBG:
                        pend.extend(dma_pieces(k + 2))
                w = WB + 4 * (cnt[0] % 8); cnt[0] += 1
                wreg[(k, n)] = w
                sl = k % 4
                o = (sl % 2) * 27648 + n * 32
                lt.issue((k, n), f"ds_read_b64_tr_b16 v[{w}:{w+1}], v{TB+sl//2} offset:{o}")
                lt.issue((k, n), f"ds_read_b64_tr_b16 v[{w+2}:{w+3}], v{TB+sl//2} offset:{o + 16*288}")
            for idx in range(D): issue(idx)
            for idx, (k, n) in enumerate(items):
                if idx + D < len(items): issue(idx + D)
                lt.wait((k, n), ("A", k))
                w = wreg[(k, n)]
                for mi, m in enumerate(ms):
                    d = ACC + (n * len(ms) + mi) * 4; b = AB + ((k % 2) * 3 + m) * 4
                    cc = "0" if k == 0 else f"v[{d}:{d+3}]"
                    a(f"v_mfma_f32_16x16x32_bf16 v[{d}:{d+3}], v[{w}:{w+3}], v[{b}:{b+3}], {cc}")
                for _ in range(2 if NT == 3 else 1):
                    if pend: pend.pop(0)()
        run(range(0, 9))
        a("s_barrier")
        h1_write(1)
        run(range(9, 18))
        assert not pend
        a("s_barrier")
        a.nop(4)
        a(f"v_and_b32 v{T}, 15, v0")
        a(f"v_mul_u32_u24 v{T}, {QSTR}, v{T}")
        a(f"v_lshrrev_b32 v{T+1}, 4, v0")
        a(f"v_lshl_add_u32 v{T}, v{T+1}, 4, v{T}")
        a("s_mul_i32 s45, s49, 576")
        a("s_lshl_b32 s46, s50, 6")
        a("s_add_u32 s45, s45, s46")
        a(f"v_add_u32 v{T}, s45, v{T}")
        for n in range(NT):
            if NT == 5 and n == 4:
                labS = a.newlabel("P12_S")
                a("s_cmp_eq_u32 s24, 7")
                a(f"s_cbranch_scc1 {labS}")
            for mi, m in enumerate(ms):
                d = ACC + (n * len(ms) + mi) * 4
                a(f"ds_write_b128 v{T}, v[{d}:{d+3}] offset:{m*16*QSTR + n*64}")
        if NT == 5: a.label(labS)
    gemm(3, [0, 1, 2])
    a(f"s_branch {labE}")
    a.label(labB)
    gemm(5, [1, 2])
    a.label(labE)
    if c.sync:
        wait0(c, T + 2, 128, 256 * 4)
    st.stamp()
    a = Sprinkle(c.a, wof_pieces(c, VL16), 40)
    R.release(m0)
    Q = R.alloc(18, 2); KB = R.alloc(72, 2); LG = R.alloc(8, 2); O = R.alloc(18, 2); P = R.alloc(8, 2)
    VR = R.alloc(1); VQ = R.alloc(1); VK = R.alloc(1)
    a(f"v_lshrrev_b32 v{VR}, 4, v0")
    a("s_lshl_b32 s45, s24, 2")
    a(f"v_add_u32 v{VR}, s45, v{VR}")
    a(f"v_bfe_u32 v{T}, v0, 1, 3")
    a(f"v_mul_u32_u24 v{T}, 72, v{T}")
    a(f"v_mul_u32_u24 v{VQ}, {QSTR}, v{VR}")
    a(f"v_add_u32 v{VQ}, v{VQ}, v{T}")
    a(f"v_and_b32 v{T+1}, 1, v0")
    a(f"v_mul_u32_u24 v{T+2}, {8*QSTR}, v{T+1}")
    a(f"v_sub_u32 v{VK}, v{VQ}, v{T+2}")
    a(f"v_add_u32 v{VK}, {10*QSTR}, v{VK}")
    a("s_waitcnt lgkmcnt(0)")
    a("s_barrier")
    st.stamp(1)
    lt = LTracker(a)
    for i in range(9):
        lt.issue("q", f"ds_read_b64 v[{Q+2*i}:{Q+2*i+1}], v{VQ} offset:{16*QSTR + 8*i}")
    def rdrow(jj, part, i):
        dst = KB + 18 * jj + 2 * i
        lt.issue((part, jj, i), f"ds_read_b64 v[{dst}:{dst+1}], v{VK} offset:{(6-2*jj)*QSTR + part*576 + 8*i}")
    for i in range(9):
        for jj in range(4): rdrow(jj, 1, i)
    for i in range(9):
        lt.wait("q", (1, 3, i))
        for jj in range(4):
            k = KB + 18 * jj + 2 * i
            if i == 0:
                a(f"v_pk_mul_f32 v[{LG+2*jj}:{LG+2*jj+1}], v[{k}:{k+1}], v[{Q}:{Q+1}]")
            else:
                a(f"v_pk_fma_f32 v[{LG+2*jj}:{LG+2*jj+1}], v[{k}:{k+1}], v[{Q+2*i}:{Q+2*i+1}], v[{LG+2*jj}:{LG+2*jj+1}]")
        for jj in range(4): rdrow(jj, 2, i)
    for jj in range(4):
        a(f"v_add_f32 v{LG+2*jj}, v{LG+2*jj}, v{LG+2*jj+1}")
    labM = a.newlabel("P12_NOMASK")
    a.busy = True
    a("s_cmp_lg_u32 s37, 0")
    a(f"s_cbranch_scc1 {labM}")
    a(f"v_mov_b32 v{T}, 0x{np_f32(-1e9):08x}")
    a(f"v_lshlrev_b32 v{T+2}, 3, v{T+1}")
    for jj in range(4):
        a(f"v_add_u32 v{T+3}, {2*jj}, v{T+2}")
        a(f"v_cmp_le_u32 vcc, v{T+3}, v{VR}")
        a("s_nop 1")
        a(f"v_cndmask_b32 v{LG+2*jj}, v{T}, v{LG+2*jj}, vcc")
    a.label(labM)
    a.busy = False
    cs = np_f32(18 ** -0.5 * 1.4426950408889634)
    a(f"s_mov_b32 s45, 0x{cs:08x}")
    a(f"v_max3_f32 v{T}, v{LG}, v{LG+2}, v{LG+4}")
    a(f"v_max_f32 v{T}, v{T}, v{LG+6}")
    a("s_nop 1")
    a(f"v_max_f32_dpp v{T}, v{T}, v{T} quad_perm:[1,0,3,2] row_mask:0xf bank_mask:0xf")
    a(f"v_mul_f32 v{T}, s45, v{T}")
    for jj in range(4):
        a(f"v_fma_f32 v{LG+2*jj}, v{LG+2*jj}, s45, -v{T}")
    for jj in range(4):
        a(f"v_exp_f32 v{LG+2*jj}, v{LG+2*jj}")
    a("s_nop 0")
    a(f"v_add_f32 v{T}, v{LG}, v{LG+2}")
    a(f"v_add_f32 v{T+2}, v{LG+4}, v{LG+6}")
    a(f"v_add_f32 v{T}, v{T}, v{T+2}")
    a("s_nop 1")
    a(f"v_add_f32_dpp v{T}, v{T}, v{T} quad_perm:[1,0,3,2] row_mask:0xf bank_mask:0xf")
    a(f"v_rcp_f32 v{T}, v{T}")
    a("s_nop 0")
    for jj in range(4):
        a(f"v_mul_f32 v{P+2*jj}, v{LG+2*jj}, v{T}")
    a("s_waitcnt lgkmcnt(0)")
    st.stamp(1)
    for jj in range(4):
        for i in range(9):
            k = KB + 18 * jj + 2 * i
            if jj == 0:
                a(f"v_pk_mul_f32 v[{O+2*i}:{O+2*i+1}], v[{k}:{k+1}], v[{P}:{P+1}] op_sel_hi:[1,0]")
            else:
                a(f"v_pk_fma_f32 v[{O+2*i}:{O+2*i+1}], v[{k}:{k+1}], v[{P+2*jj}:{P+2*jj+1}], v[{O+2*i}:{O+2*i+1}] op_sel_hi:[1,0,1]")
    a("s_nop 1")
    for i in range(18):
        a(f"v_add_f32_dpp v{O+i}, v{O+i}, v{O+i} quad_perm:[1,0,3,2] row_mask:0xf bank_mask:0xf")
    OOFF = 48 * QSTR
    a(f"v_mul_u32_u24 v{T+2}, {OSTR}, v{VR}")
    a(f"v_bfe_u32 v{T}, v0, 1, 3")
    a(f"v_mul_u32_u24 v{T}, 36, v{T}")
    a(f"v_add3_u32 v{T}, v{T}, v{T+2}, v{VOO}")
    for i in range(9):
        a(f"v_cvt_pk_bf16_f32 v{O+2*i}, v{O+2*i}, v{O+2*i+1}")
        a(f"ds_write_b32 v{T}, v{O+2*i} offset:{4*i}")
    spr = a
    a = c.a
    a("s_lshl_b32 s45, s24, 6")
    a(f"v_add_u32 v{T}, s45, v0")
    a("s_mul_i32 s46, s36, 18")
    a("s_mul_i32 s47, s37, 36864")
    a(f"s_add_u32 s47, s47, {wso('OF')}")
    a("s_waitcnt lgkmcnt(0)")
    a("s_barrier")
    st.stamp()
    for ps in range(2):
        if ps == 1:
            labP = a.newlabel("P12_PUB")
            a("s_cmp_lg_u32 s24, 0")
            a(f"s_cbranch_scc1 {labP}")
            a(f"v_add_u32 v{T}, 512, v0")
        a(f"v_and_b32 v{T+1}, 31, v{T}")
        a(f"v_lshrrev_b32 v{T+2}, 5, v{T}")
        a(f"v_mul_u32_u24 v{T+3}, {OSTR}, v{T+1}")
        a(f"v_lshl_add_u32 v{T+3}, v{T+2}, 4, v{T+3}")
        a(f"v_add_u32 v{T+3}, v{T+3}, v{VOO}")
        a(f"ds_read_b128 v[{Q}:{Q+3}], v{T+3}")
        a(f"v_add_u32 v{T+2}, s46, v{T+2}")
        a(f"v_lshrrev_b32 v{T+3}, 4, v{T+1}")
        a(f"v_mul_u32_u24 v{T+3}, 1152, v{T+3}")
        a(f"v_lshl_add_u32 v{T+3}, v{T+2}, 4, v{T+3}")
        a(f"v_and_b32 v{T+1}, 15, v{T+1}")
        a(f"v_add_u32 v{T+3}, v{T+3}, v{T+1}")
        a(f"v_lshlrev_b32 v{T+3}, 4, v{T+3}")
        a("s_waitcnt lgkmcnt(0)")
        a(f"buffer_store_dwordx4 v[{Q}:{Q+3}], v{T+3}, {WS_}, s47 offen{SC}")
    a.label(labP)
    nrem = len(spr.q)
    spr.flush()
    a("s_lshl_b32 s45, s37, 6")
    a(f"s_add_u32 s45, s45, {CA()}")
    signal(c, 45, T, nrem)
    st.stamp()

def phase0_loads(c, B):
    a = c.a
    a("s_lshr_b32 s76, s2, 5")
    a("s_lshl_b32 s76, s76, 3")
    a("s_and_b32 s77, s2, 7")
    a("s_add_u32 s76, s76, s77")
    a("s_lshl_b32 s76, s76, 2")
    a("s_bfe_u32 s77, s2, 0x20003")
    a("s_add_u32 s80, s76, s77")
    a("s_lshl_b32 s76, s24, 6")
    a(f"v_add_u32 v{B}, s76, v0")
    a(f"v_and_b32 v{B+1}, 1, v{B}")
    a(f"v_lshrrev_b32 v{B+2}, 1, v{B}")
    a(f"v_mul_u32_u24 v{B+3}, 6912, v{B+2}")
    a(f"v_lshl_add_u32 v{B+3}, v{B+1}, 4, v{B+3}")
    a("s_lshl_b32 s76, s80, 5")
    a("s_cmp_ge_u32 s80, 216")
    a("s_cselect_b32 s76, 0x7f000000, s76")
    a(f"v_add_u32 v{B+3}, s76, v{B+3}")
    a(f"v_lshlrev_b32 v{B+4}, 1, v{B+2}")
    W = B + 8; C = B + 20
    a(f"s_mov_b32 s77, {256*6912}")
    a(f"s_mov_b32 s78, {512*6912}")
    for q, so in enumerate(("0", "s77", "s78")):
        a(f"buffer_load_dwordx4 v[{W+4*q}:{W+4*q+3}], v{B+3}, s[60:63], {so} offen")
        a(f"buffer_load_ushort v{C+q}, v{B+4}, s[64:67], 0 offen offset:{512*q}")

def phase0(c, B, T, vm, bulk0):
    a = c.a
    W = B + 8; C = B + 20
    a("s_waitcnt vmcnt(0)")
    c.st.stamp(1)
    A8 = B + 44
    for q in range(3):
        cc = C + q
        a(f"v_lshlrev_b32 v{cc}, 16, v{cc}")
        a(f"v_mul_f32 v{T}, {NLOG2E}, v{cc}")
        a(f"v_exp_f32 v{T}, v{T}")
        a("s_nop 0")
        a(f"v_add_f32 v{T}, 1.0, v{T}")
        a(f"v_rcp_f32 v{T}, v{T}")
        a("s_nop 0")
        a(f"v_mul_f32 v{cc}, v{cc}, v{T}")
        bf16_round(a, cc, cc)
        for d in range(4):
            w = W + 4 * q + d
            a(f"v_lshlrev_b32 v{T}, 16, v{w}")
            a(f"v_and_b32 v{T+1}, 0xffff0000, v{w}")
            if q == 0:
                a(f"v_mul_f32 v{A8+2*d}, v{cc}, v{T}")
                a(f"v_mul_f32 v{A8+2*d+1}, v{cc}, v{T+1}")
            else:
                a(f"v_fmac_f32 v{A8+2*d}, v{cc}, v{T}")
                a(f"v_fmac_f32 v{A8+2*d+1}, v{cc}, v{T+1}")
    for rr in (2, 4, 8):
        for e in range(8):
            a(f"v_add_f32_dpp v{A8+e}, v{A8+e}, v{A8+e} row_ror:{rr} row_mask:0xf bank_mask:0xf")
    a(f"v_lshrrev_b32 v{T}, 4, v{B}")
    a(f"v_lshlrev_b32 v{T}, 6, v{T}")
    a(f"v_lshl_add_u32 v{T}, v{B+1}, 5, v{T}")
    a(f"v_add_u32 v{T}, {SCR}, v{T}")
    a(f"ds_write_b128 v{T}, v[{A8}:{A8+3}]")
    a(f"ds_write_b128 v{T}, v[{A8+4}:{A8+7}] offset:16")
    a("s_waitcnt lgkmcnt(0)")
    a("s_barrier")
    labF = a.newlabel("P0_FIN"); labW = a.newlabel("P0_WO")
    a("s_cmp_lg_u32 s24, 0")
    a(f"s_cbranch_scc1 {labW}")
    a(f"v_and_b32 v{T}, 15, v0")
    a(f"v_lshrrev_b32 v{T+1}, 4, v0")
    a(f"v_lshlrev_b32 v{T+1}, 9, v{T+1}")
    a(f"v_lshl_add_u32 v{T+1}, v{T}, 2, v{T+1}")
    a(f"v_add_u32 v{T+1}, {SCR}, v{T+1}")
    for e in range(8):
        a(f"ds_read_b32 v{A8+e}, v{T+1} offset:{64*e}")
    a("s_waitcnt lgkmcnt(0)")
    for e in range(1, 8):
        a(f"v_add_f32 v{A8}, v{A8}, v{A8+e}")
    red_g(a, [A8], T + 1)
    bf16_round(a, A8, A8)
    a("s_mul_i32 s76, s80, 1821")
    a("s_lshr_b32 s76, s76, 16")
    a("s_mov_b32 s77, 0")
    a("s_cmp_eq_u32 s76, 1")
    a("s_cselect_b32 s77, 1.0, s77")
    a("s_cmp_eq_u32 s76, 4")
    a("s_cselect_b32 s77, 1.0, s77")
    a(f"v_add_f32 v{A8}, s77, v{A8}")
    bf16_round(a, A8, A8)
    a(f"v_lshlrev_b32 v{T+1}, 2, v{T}")
    a(f"v_lshlrev_b32 v{T}, 1, v{T}")
    a(f"v_lshrrev_b32 v{A8+1}, 16, v{A8}")
    a("s_lshl_b32 s76, s80, 6")
    a(f"s_add_u32 s76, s76, {wso('MOD')}")
    a("s_lshl_b32 s77, s80, 5")
    a(f"s_add_u32 s77, s77, {wso('MODB')}")
    a("s_cmp_ge_u32 s80, 216")
    a("s_cselect_b32 s76, 0x7f000000, s76")
    a("s_cselect_b32 s77, 0x7f000000, s77")
    a(f"v_mov_b32 v{A8+2}, 0")
    a("s_lshl_b32 s78, s2, 6")
    a("s_mov_b64 exec, 0xffff")
    a(f"buffer_store_short v{A8+1}, v{T}, {WS_}, s77 offen{SC}")
    a(f"buffer_store_dword v{A8}, v{T+1}, {WS_}, s76 offen{SC}")
    a(f"buffer_store_dword v{A8+2}, v{T+1}, {WS_}, s78 offen{SC}")
    a(f"v_mov_b32 v{T}, 1")
    a("s_and_b32 s76, s2, 1")
    a("s_lshl_b32 s76, s76, 6")
    a("s_add_u32 s77, s76, 128")
    a("s_cmp_ge_u32 s80, 72")
    a("s_cselect_b32 s76, 0x7f000000, s76")
    a("s_mov_b64 exec, 1")
    a("s_waitcnt vmcnt(0)")
    a(f"buffer_atomic_add v{T}, off, s[72:75], s76 sc1")
    a(f"buffer_atomic_add v{T}, off, s[72:75], s77 sc1")
    a("s_mov_b64 exec, -1")
    bulk0()
    a(f"s_branch {labF}")
    a.label(labW)
    bulk0()
    a("s_cmp_lt_u32 s24, 5")
    a(f"s_cbranch_scc1 {labF}")
    P = WOF
    a("s_mul_i32 s76, s2, 162")
    a("s_sub_u32 s76, s76, 320")
    a(f"v_add_u32 v{P}, s76, v{B}")
    a(f"v_lshrrev_b32 v{P+1}, 6, v{P}")
    a(f"v_mul_u32_u24 v{P+2}, 3641, v{P+1}")
    a(f"v_lshrrev_b32 v{P+2}, 16, v{P+2}")
    a(f"v_mul_u32_u24 v{P+3}, 18, v{P+2}")
    a(f"v_sub_u32 v{P+3}, v{P+1}, v{P+3}")
    a(f"v_and_b32 v{P+4}, 15, v{P}")
    a(f"v_lshl_add_u32 v{P+4}, v{P+2}, 4, v{P+4}")
    a(f"v_bfe_u32 v{P+5}, v{P}, 4, 2")
    a(f"v_lshlrev_b32 v{P+5}, 3, v{P+5}")
    a(f"v_lshl_add_u32 v{P+5}, v{P+3}, 5, v{P+5}")
    a(f"v_mul_u32_u24 v{P+5}, 1152, v{P+5}")
    a(f"v_lshl_add_u32 v{P+5}, v{P+4}, 1, v{P+5}")
    a(f"v_lshlrev_b32 v{P}, 4, v{P}")
    a(f"v_cmp_gt_u32 vcc, 482, v{B}")
    a(f"v_mov_b32 v{P+1}, 0x7f000000")
    a("s_nop 0")
    a(f"v_cndmask_b32 v{P}, v{P+1}, v{P}, vcc")
    a(f"v_cndmask_b32 v{P+5}, v{P+1}, v{P+5}, vcc")
    a("s_mov_b32 s77, 4608")
    for j in range(8):
        so = "0" if j < 4 else "s77"
        a(f"buffer_load_ushort v{P+8+j}, v{P+5}, s[68:71], {so} offen offset:{(j%4)*1152}")
    a.label(labF)
    c.st.stamp(1)

def wo_pack2(c):
    a = c.a; P = WOF
    lab = a.newlabel("P0_W2")
    a("s_cmp_lt_u32 s24, 5")
    a(f"s_cbranch_scc1 {lab}")
    a("s_waitcnt vmcnt(0)")
    for d in range(4):
        a(f"v_lshl_or_b32 v{P+16+d}, v{P+9+2*d}, 16, v{P+8+2*d}")
    a(f"s_mov_b32 s77, {wso('WOP')}")
    a(f"buffer_store_dwordx4 v[{P+16}:{P+19}], v{P}, {WS_}, s77 offen{SC}")
    a.label(lab)

def wo_pack3(c):
    a = c.a; P = WOF
    lab = a.newlabel("P0_W3")
    a("s_cmp_lt_u32 s24, 5")
    a(f"s_cbranch_scc1 {lab}")
    a(f"v_mov_b32 v{P+1}, 1")
    a("s_and_b32 s76, s2, 1")
    a("s_lshl_b32 s76, s76, 6")
    a("s_add_u32 s76, s76, 128")
    a("s_mov_b64 exec, 1")
    a("s_waitcnt vmcnt(0)")
    a(f"buffer_atomic_add v{P+1}, off, s[72:75], s76 sc1")
    a("s_mov_b64 exec, -1")
    a.label(lab)

def wait0(c, vt, base, target):
    a = c.a
    done = a.newlabel("W0DONE"); loop = a.newlabel("W0LOOP")
    a("s_cmp_lg_u32 s24, 0")
    a(f"s_cbranch_scc1 {done}")
    a("s_mov_b32 s56, 0")
    a(f"v_and_b32 v{vt+1}, 1, v0")
    a(f"v_lshlrev_b32 v{vt+1}, 6, v{vt+1}")
    a.label(loop)
    a(f"buffer_load_dword v{vt}, v{vt+1}, s[72:75], 0 offen offset:{base} sc1")
    a("s_waitcnt vmcnt(0)")
    a(f"v_readlane_b32 s76, v{vt}, 0")
    a(f"v_readlane_b32 s77, v{vt}, 1")
    a("s_add_u32 s56, s56, 1")
    a("s_add_u32 s76, s76, s77")
    a(f"s_cmp_ge_u32 s76, {target}")
    a(f"s_cbranch_scc1 {done}")
    a("s_cmp_gt_u32 s56, 0x400000")
    a(f"s_cbranch_scc1 {done}")
    a("s_sleep 4")
    a(f"s_branch {loop}")
    a.label(done)
    a("s_barrier")

def wof_pieces(c, VL16):
    a = c.a
    def setup():
        a("s_and_b32 s52, s2, 3")
        a("s_mul_i32 s53, s52, 9")
        a("s_and_b32 s54, s24, 1")
        a("s_mul_i32 s54, s54, 5")
        a("s_add_u32 s53, s53, s54")
        a("s_mul_i32 s53, s53, 18")
        a("s_lshr_b32 s54, s24, 1")
        a("s_mul_i32 s54, s54, 5")
        a("s_add_u32 s53, s53, s54")
        a("s_lshl_b32 s53, s53, 10")
        a(f"s_add_u32 s53, s53, {wso('WOP')}")
    def piece(i, u):
        if u == 0:
            a(f"s_add_u32 s55, s54, {i}")
            a("s_cmp_ge_u32 s55, 18")
            a("s_cselect_b32 s55, 0x7f000000, s53")
        r = WOF + (i * 5 + u) * 4
        a(f"s_add_u32 s52, s55, {u*18432 + i*1024}")
        a(f"buffer_load_dwordx4 v[{r}:{r+3}], v{VL16}, {WS_}, s52 offen{SC}")
    return [setup] + [(lambda i=i, u=u: piece(i, u)) for i in range(5) for u in range(5)]

def wof_loads(c, VL16):
    for f in wof_pieces(c, VL16): f()

RSTR = 656
def ph2w(c, standalone=False):
    a = c.a; st = c.st
    a("s_and_b32 s36, s2, 3")
    a("s_bfe_u32 s37, s2, 0x10002")
    a("s_lshl_b32 s37, s37, 5")
    a("s_lshr_b32 s38, s2, 3")
    a("s_add_u32 s37, s37, s38")
    a("s_lshr_b32 s39, s24, 1")
    a("s_and_b32 s40, s24, 1")
    R = Regs(1, WOF)
    T = R.alloc(8)
    VL16 = R.alloc(1)
    AF = R.alloc(40, 4); ACC = R.alloc(40, 4)
    XR = R.alloc(8, 4); GA = R.alloc(8, 4); C2 = R.alloc(8, 4); X1V = R.alloc(16, 2)
    VC = R.alloc(1); VX = R.alloc(1); VROW = R.alloc(1); VRD = R.alloc(2)
    a(f"v_lshlrev_b32 v{VL16}, 4, v0")
    if standalone:
        wof_loads(c, VL16)
    a(f"v_and_b32 v{VC}, 31, v0")
    a(f"v_lshrrev_b32 v{VROW}, 5, v0")
    a("s_lshl_b32 s41, s24, 1")
    a(f"v_add_u32 v{VROW}, s41, v{VROW}")
    a("s_lshl_b32 s41, s37, 5")
    a(f"v_add_u32 v{T}, s41, v{VROW}")
    a(f"v_mul_u32_u24 v{VX}, 1152, v{T}")
    a("s_mul_i32 s42, s36, 288")
    a(f"v_lshl_add_u32 v{VX}, v{VC}, 4, v{VX}")
    a(f"v_add_u32 v{VX}, s42, v{VX}")
    a(f"v_cmp_gt_u32 vcc, 18, v{VC}")
    a(f"v_mov_b32 v{T+1}, 0x7f000000")
    a("s_nop 0")
    a(f"v_cndmask_b32 v{VX}, v{T+1}, v{VX}, vcc")
    a("s_mov_b64 s[50:51], vcc")
    a(f"s_mov_b32 s43, {16*1152}")
    a(f"buffer_load_dwordx4 v[{XR}:{XR+3}], v{VX}, {X_}, 0 offen")
    a(f"buffer_load_dwordx4 v[{XR+4}:{XR+7}], v{VX}, {X_}, s43 offen")
    a(f"v_lshlrev_b32 v{T+1}, 5, v{VC}")
    a("s_mul_i32 s44, s36, 576")
    a(f"s_add_u32 s44, s44, {wso('MOD') + 2*576*4}")
    a(f"buffer_load_dwordx4 v[{GA}:{GA+3}], v{T+1}, {WS_}, s44 offen{SC}")
    a(f"buffer_load_dwordx4 v[{GA+4}:{GA+7}], v{T+1}, {WS_}, s44 offen offset:16{SC}")
    a(f"v_lshlrev_b32 v{T+1}, 4, v{VC}")
    a(f"s_add_u32 s44, s42, {wso('MODB') + 4*1152}")
    a(f"buffer_load_dwordx4 v[{C2}:{C2+3}], v{T+1}, {WS_}, s44 offen{SC}")
    a(f"s_add_u32 s44, s42, {wso('MODB') + 3*1152}")
    a(f"buffer_load_dwordx4 v[{C2+4}:{C2+7}], v{T+1}, {WS_}, s44 offen{SC}")
    a("s_lshl_b32 s45, s37, 6")
    a(f"s_add_u32 s45, s45, {CA()}")
    wait_ctr(c, 45, 4, T)
    st.stamp()
    a("s_mul_i32 s46, s37, 36864")
    a(f"s_add_u32 s46, s46, {wso('OF')}")
    a("s_mul_i32 s47, s39, 5")
    for i in range(5):
        a(f"s_add_u32 s48, s47, {i}")
        a("s_min_u32 s48, s48, 17")
        a("s_lshl_b32 s48, s48, 10")
        a("s_add_u32 s48, s48, s46")
        a("s_add_u32 s49, s48, 18432")
        for mt in range(2):
            r = AF + (i * 2 + mt) * 4
            a(f"buffer_load_dwordx4 v[{r}:{r+3}], v{VL16}, {WS_}, s{48+mt} offen{SC}")
    a(f"v_and_b32 v{T}, 15, v0")
    a(f"v_mul_u32_u24 v{T}, {RSTR}, v{T}")
    a(f"v_lshrrev_b32 v{T+1}, 4, v0")
    a(f"v_lshl_add_u32 v{T}, v{T+1}, 4, v{T}")
    a(f"s_mul_i32 s48, s39, {32*RSTR}")
    a("s_mul_i32 s49, s40, 320")
    a("s_add_u32 s48, s48, s49")
    a(f"v_add_u32 v{T}, s48, v{T}")
    a(f"v_mul_u32_u24 v{VRD}, {RSTR}, v{VROW}")
    a(f"v_min_u32 v{T+1}, 17, v{VC}")
    a(f"v_lshl_add_u32 v{VRD}, v{T+1}, 5, v{VRD}")
    a(f"v_add_u32 v{VRD+1}, {16*RSTR}, v{VRD}")
    for i in range(5):
        a(f"s_waitcnt vmcnt({8-2*i})")
        for u in range(5):
            w = WOF + (i * 5 + u) * 4
            for mt in range(2):
                d = ACC + (mt * 5 + u) * 4; b = AF + (i * 2 + mt) * 4
                cc = "0" if i == 0 else f"v[{d}:{d+3}]"
                a(f"v_mfma_f32_16x16x32_bf16 v[{d}:{d+3}], v[{w}:{w+3}], v[{b}:{b+3}], {cc}")
    a.nop(8)
    for mt in range(2):
        for u in range(5):
            d = ACC + (mt * 5 + u) * 4
            a(f"ds_write_b128 v{T}, v[{d}:{d+3}] offset:{mt*16*RSTR + u*64}")
    a("s_waitcnt lgkmcnt(0)")
    a("s_barrier")
    st.stamp(1)
    RD = AF
    S0 = ACC
    RD2 = ACC + 8
    a(f"s_mov_b32 s52, {wso('X1')}")
    a(f"s_add_u32 s53, s52, {16*1152}")
    def red32(vals, tmp):
        for ctl in ("quad_perm:[1,0,3,2]", "quad_perm:[2,3,0,1]", "row_half_mirror", "row_mirror"):
            a("s_nop 0")
            for v in vals:
                a(f"v_add_f32_dpp v{v}, v{v}, v{v} {ctl} row_mask:0xf bank_mask:0xf")
        for i, v in enumerate(vals):
            a(f"v_mov_b32 v{tmp+i}, v{v}")
        a("s_nop 1")
        for i, v in enumerate(vals):
            a(f"v_permlane16_swap_b32 v{v}, v{tmp+i}")
        for i, v in enumerate(vals):
            a(f"v_add_f32 v{v}, v{v}, v{tmp+i}")
    for ps in range(2):
        B = RD if ps == 0 else RD2
        for kq in range(4):
            for hf in range(2):
                r = B + (kq * 2 + hf) * 4
                a(f"ds_read_b128 v[{r}:{r+3}], v{VRD+ps} offset:{kq*32*RSTR + hf*16}")
    for ps in range(2):
        B = RD if ps == 0 else RD2
        a(f"s_waitcnt lgkmcnt({8 if ps == 0 else 0})")
        for e in range(8):
            a(f"v_add_f32 v{B+e}, v{B+e}, v{B+8+e}")
            a(f"v_add_f32 v{B+16+e}, v{B+16+e}, v{B+24+e}")
            a(f"v_add_f32 v{B+e}, v{B+e}, v{B+16+e}")
        XV = X1V + 8 * ps
        for d in range(4):
            x = XR + 4 * ps + d
            a(f"v_lshlrev_b32 v{T+1}, 16, v{x}")
            a(f"v_and_b32 v{T+2}, 0xffff0000, v{x}")
            a(f"v_fmac_f32 v{T+1}, v{GA+2*d}, v{B+2*d}")
            a(f"v_fmac_f32 v{T+2}, v{GA+2*d+1}, v{B+2*d+1}")
            a(f"v_cvt_pk_bf16_f32 v{x}, v{T+1}, v{T+2}")
            a(f"v_lshlrev_b32 v{XV+2*d}, 16, v{x}")
            a(f"v_and_b32 v{XV+2*d+1}, 0xffff0000, v{x}")
        a(f"buffer_store_dwordx4 v[{XR+4*ps}:{XR+4*ps+3}], v{VX}, {WS_}, s{52+ps} offen{SC}")
        sm = S0 + 2 * ps
        a(f"v_add_f32 v{sm}, v{XV}, v{XV+1}")
        for e in range(2, 8):
            a(f"v_add_f32 v{sm}, v{sm}, v{XV+e}")
        a(f"v_cndmask_b32 v{sm}, 0, v{sm}, s[50:51]")
    red32([S0, S0 + 2], T + 1)
    for ps in range(2):
        XV = X1V + 8 * ps; sm = S0 + 2 * ps; m2 = sm + 1
        a(f"v_mul_f32 v{T+2}, 0x{np_f32(1.0/144):08x}, v{sm}")
        a(f"v_sub_f32 v{T+1}, v{XV}, v{T+2}")
        a(f"v_mul_f32 v{m2}, v{T+1}, v{T+1}")
        for e in range(1, 8):
            a(f"v_sub_f32 v{T+1}, v{XV+e}, v{T+2}")
            a(f"v_fmac_f32 v{m2}, v{T+1}, v{T+1}")
        a(f"v_cndmask_b32 v{m2}, 0, v{m2}, s[50:51]")
    red32([S0 + 1, S0 + 3], T + 1)
    a("s_lshl_b32 s46, s37, 10")
    a(f"s_add_u32 s46, s46, {wso('ST')}")
    a("s_lshl_b32 s47, s36, 8")
    a("s_add_u32 s47, s47, s46")
    a(f"v_lshlrev_b32 v{T}, 3, v{VROW}")
    a(f"v_cmp_eq_u32 vcc, 0, v{VC}")
    a(f"v_mov_b32 v{T+1}, 0x7f000000")
    a("s_nop 0")
    a(f"v_cndmask_b32 v{T+1}, v{T+1}, v{T}, vcc")
    a(f"buffer_store_dwordx2 v[{S0}:{S0+1}], v{T+1}, {WS_}, s47 offen{SC}")
    a(f"buffer_store_dwordx2 v[{S0+2}:{S0+3}], v{T+1}, {WS_}, s47 offen offset:128{SC}")
    a("s_lshl_b32 s45, s37, 6")
    a(f"s_add_u32 s45, s45, {CS()}")
    signal(c, 45, T + 2)
    return dict(T=T, VROW=VROW, VC=VC, X1V=X1V, C2=C2, RD=RD, XR=XR)

def ph2c(c, r):
    a = c.a; st = c.st
    T, VROW, VC, X1V, C2, RD, XR = r["T"], r["VROW"], r["VC"], r["X1V"], r["C2"], r["RD"], r["XR"]
    wait_ctr(c, 45, 4, T + 2)
    st.stamp()
    for ps in range(2):
        for q in range(4):
            d = RD + (ps * 4 + q) * 2
            a(f"buffer_load_dwordx2 v[{d}:{d+1}], v{T}, {WS_}, s46 offen offset:{q*256 + ps*128}{SC}")
    a("s_mul_i32 s47, s36, 18")
    a(f"v_add_u32 v{T+1}, s47, v{VC}")
    a(f"v_lshrrev_b32 v{T+2}, 1, v{T+1}")
    a(f"v_lshlrev_b32 v{T+2}, 6, v{T+2}")
    a(f"v_and_b32 v{T+1}, 1, v{T+1}")
    a(f"v_add_u32 v{T+2}, v{T+2}, v{T+1}")
    a(f"v_lshl_add_u32 v{T+2}, v{VROW}, 1, v{T+2}")
    a(f"v_lshlrev_b32 v{T+2}, 4, v{T+2}")
    a(f"v_mov_b32 v{T+1}, 0x7f000000")
    a(f"v_cndmask_b32 v{T+2}, v{T+1}, v{T+2}, s[50:51]")
    a("s_mul_i32 s47, s37, 36864")
    a(f"s_add_u32 s47, s47, {wso('H2')}")
    UA = RD + 16
    for d in range(4):
        a(f"v_lshlrev_b32 v{UA+2*d}, 16, v{C2+d}")
        a(f"v_and_b32 v{UA+2*d+1}, 0xffff0000, v{C2+d}")
        a(f"v_lshlrev_b32 v{UA+8+2*d}, 16, v{C2+4+d}")
        a(f"v_and_b32 v{UA+8+2*d+1}, 0xffff0000, v{C2+4+d}")
    a("s_waitcnt vmcnt(0)")
    for ps in range(2):
        b = RD + ps * 8
        mean = T + 3; m2 = T + 4
        a(f"v_add_f32 v{mean}, v{b}, v{b+2}")
        a(f"v_add_f32 v{T+5}, v{b+4}, v{b+6}")
        a(f"v_add_f32 v{mean}, v{mean}, v{T+5}")
        a(f"v_mul_f32 v{mean}, 0x{np_f32(1.0/576):08x}, v{mean}")
        a(f"v_add_f32 v{m2}, v{b+1}, v{b+3}")
        a(f"v_add_f32 v{T+5}, v{b+5}, v{b+7}")
        a(f"v_add_f32 v{m2}, v{m2}, v{T+5}")
        a(f"v_mov_b32 v{T+6}, 0x{np_f32(144.0):08x}")
        for q in range(4):
            a(f"v_mul_f32 v{T+5}, 0x{np_f32(1.0/144):08x}, v{b+2*q}")
            a(f"v_sub_f32 v{T+5}, v{T+5}, v{mean}")
            a(f"v_mul_f32 v{T+5}, v{T+5}, v{T+5}")
            a(f"v_fmac_f32 v{m2}, v{T+5}, v{T+6}")
        ln_scalars(a, mean=mean, ssq=m2, rinv=m2, corr=T + 5, tmp=T + 6)
        XV = X1V + 8 * ps
        for e in range(8):
            a(f"v_sub_f32 v{XV+e}, v{XV+e}, v{mean}")
            a(f"v_fma_f32 v{XV+e}, v{XV+e}, v{m2}, v{T+5}")
            a(f"v_fma_f32 v{XV+e}, v{XV+e}, v{UA+e}, v{UA+8+e}")
        for d in range(4):
            a(f"v_cvt_pk_bf16_f32 v{XR+4*ps+d}, v{XV+2*d}, v{XV+2*d+1}")
        a(f"buffer_store_dwordx4 v[{XR+4*ps}:{XR+4*ps+3}], v{T+2}, {WS_}, s47 offen offset:{ps*512}{SC}")
    a("s_lshr_b32 s45, s37, 3")
    a("s_lshl_b32 s45, s45, 6")
    a(f"s_add_u32 s45, s45, {CB()}")
    signal(c, 45, T + 1)
    st.stamp()

SLOT3 = 36992
UPOFF = 18560
def ph3(c):
    a = c.a; st = c.st
    a("s_and_b32 s36, s2, 31")
    a("s_lshr_b32 s37, s2, 5")
    a("s_and_b32 s38, s24, 3")
    a("s_lshr_b32 s39, s24, 2")
    R = Regs(1)
    T = R.alloc(6); VD = R.alloc(5); VA = R.alloc(1); TRB = R.alloc(4); VST = R.alloc(1)
    ACT = R.alloc(64, 4); WB = R.alloc(24, 4); ACC = R.alloc(144, 4)
    dma_voffsets(a, VD, 5, 0, 9216, T)
    vm = VmTracker(a)
    a(f"s_mul_i32 s40, s39, {UPOFF}")
    a("s_mul_i32 s41, s38, 4608")
    a("s_add_u32 s40, s40, s41")
    a(f"s_mul_i32 s41, s38, {16*9216}")
    a("s_mul_i32 s42, s36, 288")
    a("s_add_u32 s41, s41, s42")
    a(f"v_and_b32 v{T}, 31, v0")
    a(f"v_lshrrev_b32 v{T+1}, 5, v0")
    a(f"v_lshl_add_u32 v{VA}, v{T}, 1, v{T+1}")
    a(f"v_lshlrev_b32 v{VA}, 4, v{VA}")
    a("s_lshl_b32 s43, s37, 3")
    a("s_add_u32 s43, s43, s24")
    a(f"s_mul_i32 s44, s43, {36*1024}")
    a(f"s_add_u32 s44, s44, {wso('H2')}")
    a("s_lshr_b32 s46, s36, 3")
    a("s_lshl_b32 s46, s46, 1")
    a("s_add_u32 s46, s46, s37")
    a("s_cmp_ge_u32 s46, 9")
    a("s_cselect_b32 s47, 9, 0")
    a("s_sub_u32 s46, s46, s47")
    a("s_mov_b32 s47, s46")
    def dma_pieces(i):
        slot = (i % 4) * SLOT3
        def piece(j):
            if j == 0:
                a(f"s_mul_i32 s42, s46, {64*9216}")
                a("s_add_u32 s42, s42, s41")
                adv(a, 46, 9)
            a(f"s_add_u32 m0, s40, {slot + j*1024}")
            a("s_mov_b64 exec, 0xffffffff" if j == 4 else "s_nop 0")
            a(f"buffer_load_dwordx4 v{VD+j}, {W13_}, s42 offen lds")
            if j == 4: a("s_mov_b64 exec, -1")
            vm.issue(("D", i))
        return [(lambda j=j: piece(j)) for j in range(5)]
    def a_pieces(i):
        def piece(s):
            if s == 0:
                a("s_lshl_b32 s48, s47, 12")
                a("s_add_u32 s48, s48, s44")
                adv(a, 47, 9)
            r = ACT + ((i % 4) * 4 + s) * 4
            a(f"buffer_load_dwordx4 v[{r}:{r+3}], v{VA}, {WS_}, s48 offen offset:{s*1024}{SC}")
            vm.issue(("A", i))
        return [(lambda s=s: piece(s)) for s in range(4)]
    for i in range(3):
        for f in dma_pieces(i): f()
    a(f"v_and_b32 v{T}, 3, v0")
    a(f"v_bfe_u32 v{T+1}, v0, 2, 2")
    a(f"v_bfe_u32 v{T+2}, v0, 4, 1")
    a(f"v_lshrrev_b32 v{T+3}, 5, v0")
    a(f"v_lshl_add_u32 v{T+1}, v{T+3}, 3, v{T+1}")
    a(f"v_mul_u32_u24 v{T+1}, 288, v{T+1}")
    a(f"v_lshrrev_b32 v{T+3}, 1, v{T}")
    a(f"v_mul_u32_u24 v{T+3}, {UPOFF}, v{T+3}")
    a(f"v_add_u32 v{T+1}, v{T+1}, v{T+3}")
    a(f"v_lshl_add_u32 v{T+1}, v{T+2}, 4, v{T+1}")
    a(f"v_and_b32 v{T}, 1, v{T}")
    a(f"v_lshl_add_u32 v{TRB}, v{T}, 3, v{T+1}")
    for k in range(1, 4):
        a(f"v_add_u32 v{TRB+k}, {k*SLOT3}, v{TRB}")
    a(f"v_bfe_u32 v{T}, v0, 4, 1")
    a(f"v_lshrrev_b32 v{T+1}, 5, v0")
    a(f"v_and_b32 v{T+2}, 15, v0")
    a(f"v_lshl_add_u32 v{T+2}, v{T}, 6, v{T+2}")
    a(f"v_lshl_add_u32 v{T+2}, v{T+1}, 4, v{T+2}")
    a(f"v_lshlrev_b32 v{VST}, 4, v{T+2}")
    a("s_lshl_b32 s45, s37, 6")
    a(f"s_add_u32 s45, s45, {CB()}")
    wait_ctr(c, 45, 32, T)
    st.stamp()
    for i in range(2):
        for f in a_pieces(i): f()
    pipe = TrPipe(a, WB, 6, 5)
    a("s_mul_i32 s50, s36, 9")
    a("s_lshl_b32 s51, s43, 11")
    a(f"s_add_u32 s51, s51, {wso('HH')}")
    def boundary(i):
        tags = [("A", i), ("D", i)]
        if 1 <= i < 6: tags.append(("D", i + 1))
        if i == 6: tags += [("A", 7), ("A", 8), ("D", 7), ("D", 8)]
        vm.wait(*tags)
        a("s_barrier")
        if i in (0, 1): st.stamp(1)
    def spread(i):
        p = []
        if i + 3 < 9: p += dma_pieces(i + 3)
        if i < 4: p += a_pieces(i + 2)
        elif i == 4: p += a_pieces(6) + a_pieces(7)
        elif i == 5: p += a_pieces(8)
        return p
    def item(i, s, j):
        def fn(w):
            d = ACC + j * 16
            b = ACT + ((i % 4) * 4 + s) * 4
            cc = "0" if (i == 0 and s == 0) else f"v[{d}:{d+15}]"
            a(f"v_mfma_f32_32x32x16_bf16 v[{d}:{d+15}], v[{w}:{w+3}], v[{b}:{b+3}], {cc}")
        o = 16 * s * 288 + 32 * j
        return (TRB + i % 4, o, o + 4 * 288, fn)
    def epi_pieces(j):
        d = ACC + j * 16
        def quarter(half, e):
            g0 = d + 8 * half + e; u0 = g0 + 4
            for q in range(2): a(f"v_mul_f32 v{T+q}, {NLOG2E}, v{g0+q}")
            for q in range(2): a(f"v_exp_f32 v{T+q}, v{T+q}")
            for q in range(2): a(f"v_mul_f32 v{g0+q}, v{g0+q}, v{u0+q}")
            for q in range(2): a(f"v_add_f32 v{T+q}, 1.0, v{T+q}")
            for q in range(2): a(f"v_rcp_f32 v{T+q}, v{T+q}")
            a("s_nop 0")
            for q in range(2): a(f"v_mul_f32 v{g0+q}, v{g0+q}, v{T+q}")
            a(f"v_cvt_pk_bf16_f32 v{d+4+2*half+e//2}, v{g0}, v{g0+1}")
        def store():
            a(f"s_add_u32 s48, s50, {j}")
            a("s_lshr_b32 s49, s48, 1")
            a("s_lshl_b32 s49, s49, 17")
            a("s_and_b32 s48, s48, 1")
            a("s_lshl_b32 s48, s48, 9")
            a("s_add_u32 s49, s49, s48")
            a("s_add_u32 s49, s49, s51")
            a(f"buffer_store_dwordx4 v[{d+4}:{d+7}], v{VST}, {WS_}, s49 offen{SC}")
        return [(lambda h=h, e=e: quarter(h, e)) for h in range(2) for e in (0, 2)] + [store]
    stages = [[item(i, s, j) for s in range(4) for j in range(9)] for i in range(6)]
    stages.append([item(i, s, j) for j in range(9) for i in range(6, 9) for s in range(4)])
    def hooks(i):
        h = {}
        if i == 6:
            for j in range(8):
                for q, f in enumerate(epi_pieces(j)):
                    h.setdefault((j + 1) * 12 + 3 + 2 * q, []).append(f)
        return h
    run_stages(a, pipe, stages, boundary, spread, hooks)
    st.stamp()
    a.nop(12)
    for f in epi_pieces(8): f()
    a("s_lshl_b32 s45, s37, 2")
    a("s_lshr_b32 s46, s36, 3")
    a("s_add_u32 s45, s45, s46")
    a("s_lshl_b32 s45, s45, 6")
    a(f"s_add_u32 s45, s45, {CC()}")
    signal(c, 45, T)
    st.stamp()

SLOT4 = 36864
def ph4(c):
    a = c.a; st = c.st
    a("s_bfe_u32 s36, s2, 0x20001")
    a("s_and_b32 s37, s2, 1")
    a("s_lshl_b32 s37, s37, 3")
    a("s_bfe_u32 s38, s2, 0x30003")
    a("s_add_u32 s37, s37, s38")
    a("s_lshr_b32 s39, s2, 6")
    a("s_and_b32 s40, s24, 3")
    a("s_lshr_b32 s41, s24, 2")
    R = Regs(1)
    T = R.alloc(6); VD = R.alloc(5); VL16 = R.alloc(1); TRB = R.alloc(4)
    ACT = R.alloc(48, 4); WB = R.alloc(32, 4); ACC = R.alloc(72, 4)
    dma_voffsets(a, VD, 5, 0, 1152, T)
    vm = VmTracker(a)
    a("s_mul_i32 s42, s41, 18432")
    a("s_mul_i32 s43, s40, 4608")
    a("s_add_u32 s42, s42, s43")
    a("s_mul_i32 s43, s36, 1152")
    a("s_mul_i32 s44, s41, 576")
    a("s_add_u32 s43, s43, s44")
    a("s_lshl_b32 s44, s40, 4")
    a("s_add_u32 s43, s43, s44")
    a("s_mul_i32 s43, s43, 1152")
    a("s_mul_i32 s44, s39, 288")
    a("s_add_u32 s43, s43, s44")
    a(f"v_lshlrev_b32 v{VL16}, 4, v0")
    a("s_mul_i32 s46, s36, 36")
    a("s_mul_i32 s47, s41, 18")
    a("s_add_u32 s46, s46, s47")
    a("s_lshl_b32 s46, s46, 7")
    a("s_lshl_b32 s47, s37, 3")
    a("s_add_u32 s46, s46, s47")
    a("s_lshl_b32 s47, s40, 1")
    a("s_add_u32 s46, s46, s47")
    a("s_add_u32 s47, s46, s41")
    a("s_xor_b32 s48, s41, 1")
    a("s_add_u32 s48, s46, s48")
    a("s_lshl_b32 s47, s47, 10")
    a("s_lshl_b32 s48, s48, 10")
    a(f"s_add_u32 s47, s47, {wso('HH')}")
    a(f"s_add_u32 s48, s48, {wso('HH')}")
    a("s_lshl_b32 s49, s39, 1")
    a("s_add_u32 s49, s49, s38")
    a("s_cmp_ge_u32 s49, 9")
    a("s_cselect_b32 s50, 9, 0")
    a("s_sub_u32 s49, s49, s50")
    a("s_mov_b32 s50, s49")
    def dma_pieces(i):
        slot = (i % 4) * SLOT4
        def piece(j):
            if j == 0:
                a(f"s_mul_i32 s44, s49, {64*1152}")
                a("s_add_u32 s44, s44, s43")
                adv(a, 49, 9)
            a(f"s_add_u32 m0, s42, {slot + j*1024}")
            a("s_mov_b64 exec, 0xffffffff" if j == 4 else "s_nop 0")
            a(f"buffer_load_dwordx4 v{VD+j}, {W2_}, s44 offen lds")
            if j == 4: a("s_mov_b64 exec, -1")
            vm.issue(("D", i))
        return [(lambda j=j: piece(j)) for j in range(5)]
    def a_pieces(i):
        def piece(s, t):
            if s == 0 and t == 0:
                a("s_lshl_b32 s51, s50, 18")
                adv(a, 50, 9)
            r = ACT + (((i % 3) * 2 + s) * 2 + t) * 4
            a(f"s_add_u32 s52, s{47+t}, s51")
            if s: a("s_add_u32 s52, s52, 131072")
            a(f"buffer_load_dwordx4 v[{r}:{r+3}], v{VL16}, {WS_}, s52 offen{SC}")
            vm.issue(("A", i))
        return [(lambda s=s, t=t: piece(s, t)) for s in range(2) for t in range(2)]
    for i in range(3):
        for f in dma_pieces(i): f()
    a(f"v_lshrrev_b32 v{T}, 5, v0")
    a(f"v_lshlrev_b32 v{T}, 4, v{T}")
    a(f"v_bfe_u32 v{T+1}, v0, 2, 3")
    a(f"v_add_u32 v{T}, v{T}, v{T+1}")
    a(f"v_mul_u32_u24 v{T}, 288, v{T}")
    a(f"v_and_b32 v{T+1}, 3, v0")
    a(f"v_lshl_add_u32 v{T}, v{T+1}, 3, v{T}")
    a("s_mul_i32 s52, s41, 18432")
    a(f"v_add_u32 v{TRB}, s52, v{T}")
    for k in range(1, 4):
        a(f"v_add_u32 v{TRB+k}, {k*SLOT4}, v{TRB}")
    a("s_lshr_b32 s45, s37, 1")
    a("s_lshl_b32 s45, s45, 2")
    a("s_add_u32 s45, s45, s36")
    a("s_lshl_b32 s45, s45, 6")
    a(f"s_add_u32 s45, s45, {CC()}")
    wait_ctr(c, 45, 8, T)
    st.stamp()
    for i in range(2):
        for f in a_pieces(i): f()
    pipe = TrPipe(a, WB, 8, 6)
    def boundary(i):
        tags = [("A", i), ("D", i)]
        if 1 <= i < 8: tags.append(("D", i + 1))
        vm.wait(*tags)
        a("s_barrier")
        if i in (0, 1): st.stamp(1)
    def spread(i):
        p = []
        if i + 2 < 9: p += a_pieces(i + 2)
        if i + 3 < 9: p += dma_pieces(i + 3)
        return p
    stages = []
    for i in range(9):
        its = []
        for s in range(2):
            for t9 in range(9):
                def fn(w, i=i, s=s, t9=t9):
                    for t in range(2):
                        d = ACC + (t * 9 + t9) * 4
                        b = ACT + (((i % 3) * 2 + s) * 2 + t) * 4
                        cc = "0" if (i == 0 and s == 0) else f"v[{d}:{d+3}]"
                        a(f"v_mfma_f32_16x16x32_bf16 v[{d}:{d+3}], v[{w}:{w+3}], v[{b}:{b+3}], {cc}")
                o = 32 * s * 288 + 32 * t9
                its.append((TRB + i % 4, o, o + 8 * 288, fn))
        stages.append(its)
    run_stages(a, pipe, stages, boundary, spread)
    st.stamp()
    a("s_lshl_b32 s46, s40, 1")
    a("s_add_u32 s47, s46, s41")
    a("s_xor_b32 s48, s47, 1")
    a("s_mul_i32 s49, s47, 9216")
    a("s_mul_i32 s48, s48, 9216")
    a(f"s_add_u32 s50, s49, {SLOT4}")
    a(f"s_add_u32 s48, s48, {SLOT4}")
    a(f"v_add_u32 v{T}, s50, v{VL16}")
    a(f"v_add_u32 v{T+1}, s48, v{VL16}")
    a.nop(4)
    for t9 in range(9):
        d = ACC + (9 + t9) * 4
        a(f"ds_write_b128 v{T}, v[{d}:{d+3}] offset:{t9*1024}")
    a("s_lshl_b32 s46, s37, 2")
    a("s_add_u32 s46, s46, s39")
    a("s_lshl_b32 s50, s46, 2")
    a("s_add_u32 s50, s50, s36")
    a("s_mul_i32 s50, s50, 73728")
    a("s_add_u32 s50, s50, s49")
    a(f"s_add_u32 s50, s50, {wso('PART')}")
    a("s_add_u32 s51, s50, 4096")
    a("s_add_u32 s52, s50, 8192")
    a("s_waitcnt lgkmcnt(0)")
    a("s_barrier")
    for t9 in range(9):
        d = ACC + (9 + t9) * 4
        a(f"ds_read_b128 v[{d}:{d+3}], v{T+1} offset:{t9*1024}")
    for t9 in range(9):
        d = ACC + t9 * 4; e = ACC + (9 + t9) * 4
        a(f"s_waitcnt lgkmcnt({8-t9})")
        for k in range(4):
            a(f"v_add_f32 v{d+k}, v{d+k}, v{e+k}")
        a(f"buffer_store_dwordx4 v[{d}:{d+3}], v{VL16}, {WS_}, s{50+t9//4} offen offset:{(t9%4)*1024}{SC}")
    a("s_lshl_b32 s45, s46, 6")
    a(f"s_add_u32 s45, s45, {CD()}")
    signal(c, 45, T)
    st.stamp()

def ph5(c):
    a = c.a; st = c.st
    a("s_bfe_u32 s36, s2, 0x20001")
    a("s_and_b32 s37, s2, 1")
    a("s_lshl_b32 s37, s37, 3")
    a("s_bfe_u32 s38, s2, 0x30003")
    a("s_add_u32 s37, s37, s38")
    a("s_lshr_b32 s39, s2, 6")
    a("s_lshl_b32 s46, s37, 2")
    a("s_add_u32 s46, s46, s39")
    R = Regs(1)
    T = R.alloc(6); VL16 = R.alloc(1); VO = R.alloc(3); VG = R.alloc(1)
    PB = R.alloc(48, 4); XR = R.alloc(6, 2); GB = R.alloc(12, 4)
    a(f"v_lshlrev_b32 v{VL16}, 4, v0")
    a("s_lshl_b32 s40, s37, 7")
    a("s_lshl_b32 s41, s36, 5")
    a("s_add_u32 s40, s40, s41")
    a(f"v_and_b32 v{T}, 15, v0")
    a(f"v_add_u32 v{T}, s40, v{T}")
    a(f"v_mul_u32_u24 v{T}, 1152, v{T}")
    a(f"v_lshrrev_b32 v{VG}, 4, v0")
    a(f"v_lshl_add_u32 v{T}, v{VG}, 3, v{T}")
    a(f"v_lshlrev_b32 v{VG}, 4, v{VG}")
    a("s_mul_i32 s41, s39, 288")
    a(f"s_mov_b32 s53, {wso('X1')}")
    for q in range(3):
        a(f"s_add_u32 s42, s24, {8*q}")
        a("s_cmp_ge_u32 s42, 9")
        a("s_cselect_b32 s43, 1, 0")
        a("s_mul_i32 s44, s43, 9")
        a("s_sub_u32 s44, s42, s44")
        a(f"s_mul_i32 s47, s43, {16*1152}")
        a("s_lshl_b32 s48, s44, 5")
        a("s_add_u32 s47, s47, s48")
        a("s_add_u32 s47, s47, s41")
        a("s_cmp_ge_u32 s42, 18")
        a("s_cselect_b32 s47, 0x7f000000, s47")
        a(f"v_add_u32 v{VO+q}, s47, v{T}")
        a(f"buffer_load_dwordx2 v[{XR+2*q}:{XR+2*q+1}], v{VO+q}, {WS_}, s53 offen{SC}")
        a("s_lshl_b32 s48, s44, 6")
        a("s_mul_i32 s49, s39, 576")
        a("s_add_u32 s48, s48, s49")
        a(f"s_add_u32 s48, s48, {wso('MOD') + 5*576*4}")
        a(f"buffer_load_dwordx4 v[{GB+4*q}:{GB+4*q+3}], v{VG}, {WS_}, s48 offen{SC}")
    a("s_lshl_b32 s45, s46, 6")
    a(f"s_add_u32 s45, s45, {CD()}")
    wait_ctr(c, 45, 4, T + 1)
    st.stamp()
    a("s_mul_i32 s50, s46, 294912")
    a("s_mul_i32 s51, s36, 18432")
    a("s_add_u32 s50, s50, s51")
    a("s_lshl_b32 s51, s24, 10")
    a("s_add_u32 s50, s50, s51")
    a(f"s_add_u32 s50, s50, {wso('PART')}")
    for q in range(3):
        for src in range(4):
            r = PB + (q * 4 + src) * 4
            a(f"s_add_u32 s51, s50, {src*73728 + q*8192}")
            a(f"buffer_load_dwordx4 v[{r}:{r+3}], v{VL16}, {WS_}, s51 offen{SC}")
    for q in range(3):
        a(f"s_waitcnt vmcnt({8-4*q+q})")
        p = PB + q * 16
        for e in range(4):
            a(f"v_add_f32 v{p+e}, v{p+e}, v{p+4+e}")
            a(f"v_add_f32 v{p+8+e}, v{p+8+e}, v{p+12+e}")
            a(f"v_add_f32 v{p+e}, v{p+e}, v{p+8+e}")
        for d in range(2):
            x = XR + 2 * q + d
            a(f"v_lshlrev_b32 v{T+1}, 16, v{x}")
            a(f"v_and_b32 v{T+2}, 0xffff0000, v{x}")
            a(f"v_fmac_f32 v{T+1}, v{GB+4*q+2*d}, v{p+2*d}")
            a(f"v_fmac_f32 v{T+2}, v{GB+4*q+2*d+1}, v{p+2*d+1}")
            a(f"v_cvt_pk_bf16_f32 v{x}, v{T+1}, v{T+2}")
        a(f"buffer_store_dwordx2 v[{XR+2*q}:{XR+2*q+1}], v{VO+q}, {OUT_}, 0 offen")

LDS_MEGA = 163840
def gen_split(a):
    def wrap(name, fn):
        a.begin_kernel(name)
        end = name.upper() + "_END"
        st = Stamper(a, name[:-7])
        c = Ctx(a, False, st)
        prologue(a, end)
        st.stamp()
        fn(c)
        st.finish(24, 1)
        a.label(end)
        a.end_kernel(name, vgpr=256, sgpr=102, grid=256, block=512, lds=LDS_MEGA)
    wrap("p12_kernel", ph12)
    wrap("p2w_kernel", lambda c: ph2w(c, True))
    wrap("p2c_kernel", lambda c: ph2c(c, ph2w(c, True)))
    wrap("p3_kernel", ph3)
    wrap("p4_kernel", ph4)
    wrap("p5_kernel", ph5)

def gen_mega(a):
    name = "pmega_kernel"
    a.begin_kernel(name)
    st = Stamper(a, "mega", wg=int(os.environ.get("STAMP_WG", "0")))
    st.level = int(os.environ.get('STAMP_LEVEL', '0'))
    c = Ctx(a, True, st)
    prologue(a, "MEGA_END")
    st.stamp()
    ph12(c)
    r = ph2w(c)
    ph2c(c, r)
    ph3(c)
    ph4(c)
    ph5(c)
    st.finish(24, 1)
    a.label("MEGA_END")
    a.end_kernel(name, vgpr=256, sgpr=102, grid=256, block=512, lds=LDS_MEGA)
```

```python
import sys
sys.path.insert(0, "dev")
from fw import *
import k_p0, mega
NAME = "adaLN_cond__sliding_local_dilated__glu_gated_swiglu__prompt"
ref = open(f"cdna_kernels/{NAME}.s.ref").read().split("\n")
header = "\n".join(l for l in ref if l.startswith(";") and "@launch" not in l and "Override launch" not in l and "grid=ceil" not in l)
a = Asm()
if sys.argv[2] == "split":
    k_p0.gen_p0(a)
    mega.gen_split(a)
else: mega.gen_mega(a)
open(sys.argv[1], "w").write(a.text(header))
```

```python
from fw import *
from gemm_common import *
from k_p0 import ln_scalars, np_f32
import os
NLOG2E = 0xbfb8aa3b
X_, WQKV_, W13_, W2_, OUT_, WS_, XH_ = "s[4:7]", "s[8:11]", "s[12:15]", "s[16:19]", "s[20:23]", "s[28:31]", "s[32:35]"
def wso(n): return WS[n][0]
WOF = 156
SC = " sc1"
DBG = os.environ.get("DBG", "").split(",")

class Ctx:
    def __init__(self, a, sync, st):
        self.a = a; self.sync = sync; self.st = st

def prologue(a, end):
    a("s_cmp_ge_u32 s2, 256")
    a(f"s_cbranch_scc1 {end}")
    a("s_load_dwordx4 s[36:39], s[0:1], 0")
    a("s_load_dwordx4 s[40:43], s[0:1], 32")
    a("s_load_dwordx2 s[44:45], s[0:1], 48")
    a("s_load_dwordx2 s[46:47], s[0:1], 72")
    a("s_load_dwordx2 s[48:49], s[0:1], 88")
    a("s_load_dwordx2 s[50:51], s[0:1], 16")
    a("s_load_dwordx4 s[52:55], s[0:1], 56")
    a("s_load_dwordx2 s[56:57], s[0:1], 80")
    a("v_lshrrev_b32 v1, 6, v0")
    a("v_and_b32 v0, 63, v0")
    a("v_readfirstlane_b32 s24, v1")
    a("s_waitcnt lgkmcnt(0)")
    srd_from_ptr(a, 4, 36, 2048 * 1152)
    srd_from_ptr(a, 8, 38, 576 * 3456)
    a("s_cmp_lt_u32 s24, 4")
    a("s_cselect_b32 s12, s40, s42")
    a("s_cselect_b32 s13, s41, s43")
    a("s_and_b32 s13, s13, 0xffff")
    a(f"s_mov_b32 s14, {576*9216}")
    a("s_mov_b32 s15, 0x00020000")
    srd_from_ptr(a, 16, 44, 4608 * 1152)
    srd_from_ptr(a, 20, 46, 2048 * 1152)
    srd_from_ptr(a, 28, 48, WS_END)
    srd_from_ptr(a, 60, 54, 576 * 6912)
    srd_from_ptr(a, 64, 52, 1152)
    srd_from_ptr(a, 68, 50, 576 * 1152)
    srd_from_ptr(a, 72, 56, 256)

def signal(c, soff, vt, pending=0):
    a = c.a
    a(f"s_waitcnt vmcnt({pending})")
    if not c.sync:
        return
    a("s_barrier")
    lab = a.newlabel("SIG")
    a("s_cmp_lg_u32 s24, 0")
    a(f"s_cbranch_scc1 {lab}")
    a(f"v_mov_b32 v{vt}, 1")
    a("s_mov_b64 exec, 1")
    a(f"buffer_atomic_add v{vt}, off, {WS_}, s{soff} sc1")
    a("s_mov_b64 exec, -1")
    a.label(lab)

def wait_ctr(c, soff, target, vt):
    a = c.a
    if not c.sync:
        return
    done = a.newlabel("WDONE"); loop = a.newlabel("WLOOP")
    a("s_cmp_lg_u32 s24, 0")
    a(f"s_cbranch_scc1 {done}")
    a("s_mov_b32 s56, 0")
    a.label(loop)
    a(f"buffer_load_dword v{vt}, off, {WS_}, s{soff} sc1")
    a("s_waitcnt vmcnt(0)")
    a(f"v_readfirstlane_b32 s57, v{vt}")
    a("s_add_u32 s56, s56, 1")
    a(f"s_cmp_ge_u32 s57, {target}")
    a(f"s_cbranch_scc1 {done}")
    a("s_cmp_gt_u32 s56, 0x400000")
    a(f"s_cbranch_scc1 {done}")
    a("s_sleep 1")
    a(f"s_branch {loop}")
    a.label(done)
    a("s_barrier")

def umax_chain(a, regs, tmp):
    regs = list(regs)
    if len(regs) == 1:
        a(f"v_mov_b32 v{tmp}, v{regs[0]}"); return
    if len(regs) == 2:
        a(f"v_max_u32 v{tmp}, v{regs[0]}, v{regs[1]}"); return
    a(f"v_max3_u32 v{tmp}, v{regs[0]}, v{regs[1]}, v{regs[2]}")
    regs = regs[3:]
    while regs:
        if len(regs) == 1:
            a(f"v_max_u32 v{tmp}, v{tmp}, v{regs[0]}"); regs = []
        else:
            a(f"v_max3_u32 v{tmp}, v{tmp}, v{regs[0]}, v{regs[1]}"); regs = regs[2:]

def poll_loads(c, issue, regs, tmp):
    a = c.a
    if not c.sync:
        issue(); a("s_waitcnt vmcnt(0)"); return
    loop = a.newlabel("PL"); done = a.newlabel("PLD")
    a("s_mov_b32 s56, 0")
    a.label(loop)
    issue()
    a("s_waitcnt vmcnt(0)")
    umax_chain(a, regs, tmp)
    a(f"v_cmp_eq_u32 vcc, -1, v{tmp}")
    a("s_add_u32 s56, s56, 1")
    a("s_nop 0")
    a(f"s_cbranch_vccz {done}")
    a("s_cmp_gt_u32 s56, 0x400000")
    a(f"s_cbranch_scc1 {done}")
    a("s_sleep 1")
    a(f"s_branch {loop}")
    a.label(done)

def arrive(c, soff, vt):
    a = c.a
    if not c.sync: return
    lab = a.newlabel("ARR")
    a("s_cmp_lg_u32 s24, 0")
    a(f"s_cbranch_scc1 {lab}")
    a(f"v_mov_b32 v{vt}, 1")
    a("s_mov_b64 exec, 1")
    a(f"buffer_atomic_add v{vt}, off, {WS_}, s{soff} sc1")
    a("s_mov_b64 exec, -1")
    a.label(lab)

def wait_ctr2(c, s1, t1, s2, t2, vt):
    a = c.a
    if not c.sync: return
    done = a.newlabel("WDONE"); loop = a.newlabel("WLOOP"); more = a.newlabel("WMORE")
    a("s_cmp_lg_u32 s24, 0")
    a(f"s_cbranch_scc1 {done}")
    a("s_mov_b32 s56, 0")
    a.label(loop)
    a(f"buffer_load_dword v{vt}, off, {WS_}, s{s1} sc1")
    a(f"buffer_load_dword v{vt+1}, off, {WS_}, s{s2} sc1")
    a("s_waitcnt vmcnt(0)")
    a(f"v_readfirstlane_b32 s57, v{vt}")
    a(f"v_readfirstlane_b32 s58, v{vt+1}")
    a("s_add_u32 s56, s56, 1")
    a(f"s_cmp_lt_u32 s57, {t1}")
    a(f"s_cbranch_scc1 {more}")
    a(f"s_cmp_ge_u32 s58, {t2}")
    a(f"s_cbranch_scc1 {done}")
    a.label(more)
    a("s_cmp_gt_u32 s56, 0x400000")
    a(f"s_cbranch_scc1 {done}")
    a("s_sleep 1")
    a(f"s_branch {loop}")
    a.label(done)
    a("s_barrier")

def prefill(c, B):
    a = c.a
    for i in range(4): a(f"v_mov_b32 v{B+8+i}, -1")
    a("s_mul_i32 s76, s37, 36864")
    a(f"s_add_u32 s77, s76, {wso('OF')}")
    a(f"s_add_u32 s78, s76, {wso('H2')}")
    a("s_mul_i32 s79, s36, 18")
    a("s_lshl_b32 s76, s24, 6")
    a(f"v_add_u32 v{B}, s76, v0")
    lab = a.newlabel("PF")
    for ps in range(2):
        if ps == 1:
            a("s_cmp_lg_u32 s24, 1")
            a(f"s_cbranch_scc1 {lab}")
            a(f"v_add_u32 v{B}, 512, v0")
        a(f"v_and_b32 v{B+1}, 31, v{B}")
        a(f"v_lshrrev_b32 v{B+2}, 5, v{B}")
        a(f"v_add_u32 v{B+2}, s79, v{B+2}")
        a(f"v_lshrrev_b32 v{B+3}, 4, v{B+1}")
        a(f"v_mul_u32_u24 v{B+3}, 1152, v{B+3}")
        a(f"v_lshl_add_u32 v{B+3}, v{B+2}, 4, v{B+3}")
        a(f"v_and_b32 v{B+4}, 15, v{B+1}")
        a(f"v_add_u32 v{B+3}, v{B+3}, v{B+4}")
        a(f"v_lshlrev_b32 v{B+3}, 4, v{B+3}")
        a(f"buffer_store_dwordx4 v[{B+8}:{B+11}], v{B+3}, {WS_}, s77 offen{SC}")
    a("s_lshl_b32 s76, s37, 10")
    a("s_lshl_b32 s77, s36, 8")
    a("s_add_u32 s76, s76, s77")
    a(f"s_add_u32 s76, s76, {wso('ST')}")
    a(f"v_lshlrev_b32 v{B+1}, 4, v0")
    a("s_mov_b64 exec, 0xffff")
    a(f"buffer_store_dwordx4 v[{B+8}:{B+11}], v{B+1}, {WS_}, s76 offen{SC}")
    a("s_mov_b64 exec, -1")
    a.label(lab)

def warm_w13(c, T):
    a = c.a
    a("s_lshr_b32 s76, s2, 5")
    a("s_lshl_b32 s76, s76, 2")
    a("s_and_b32 s77, s24, 3")
    a("s_add_u32 s76, s76, s77")
    a("s_mul_i32 s76, s76, 54")
    a(f"v_add_u32 v{T}, s76, v0")
    a(f"v_mul_u32_u24 v{T+1}, 21846, v{T}")
    a(f"v_lshrrev_b32 v{T+1}, 16, v{T+1}")
    a(f"v_mul_u32_u24 v{T+2}, 3, v{T+1}")
    a(f"v_sub_u32 v{T}, v{T}, v{T+2}")
    a(f"v_mul_u32_u24 v{T}, 142, v{T}")
    a(f"v_and_b32 v{T}, 0x1fc, v{T}")
    a(f"v_mul_u32_u24 v{T+1}, 9216, v{T+1}")
    a(f"v_add_u32 v{T}, v{T}, v{T+1}")
    a("s_and_b32 s76, s2, 31")
    a("s_mul_i32 s76, s76, 288")
    a("s_mov_b32 exec_hi, 0x3fffff")
    a(f"buffer_load_dword v{T+3}, v{T}, {W13_}, s76 offen")
    a("s_mov_b64 exec, -1")

def warm_w2(c, T):
    a = c.a
    a("s_bfe_u32 s56, s2, 0x30003")
    a("s_lshl_b32 s56, s56, 3")
    a("s_add_u32 s56, s56, s24")
    a("s_mul_i32 s56, s56, 54")
    a(f"v_add_u32 v{T}, s56, v0")
    a(f"v_mul_u32_u24 v{T+1}, 21846, v{T}")
    a(f"v_lshrrev_b32 v{T+1}, 16, v{T+1}")
    a(f"v_mul_u32_u24 v{T+2}, 3, v{T+1}")
    a(f"v_sub_u32 v{T}, v{T}, v{T+2}")
    a(f"v_mul_u32_u24 v{T}, 142, v{T}")
    a(f"v_and_b32 v{T}, 0x1fc, v{T}")
    a(f"v_mul_u32_u24 v{T+1}, 1152, v{T+1}")
    a(f"v_add_u32 v{T}, v{T}, v{T+1}")
    a("s_bfe_u32 s56, s2, 0x20001")
    a(f"s_mul_i32 s56, s56, {1152*1152}")
    a("s_lshr_b32 s57, s2, 6")
    a("s_mul_i32 s57, s57, 288")
    a("s_add_u32 s56, s56, s57")
    a("s_mov_b32 exec_hi, 0x3fffff")
    a(f"buffer_load_dword v{T+3}, v{T}, {W2_}, s56 offen")
    a("s_mov_b64 exec, -1")

def warm_code(c, T):
    a = c.a
    a("s_getpc_b64 s[76:77]")
    a.label("MEGA_PC")
    a("s_sub_u32 s76, s76, MEGA_PC-pmega_kernel")
    a("s_subb_u32 s77, s77, 0")
    a("s_lshl_b32 s78, s24, 13")
    a(f"v_lshlrev_b32 v{T}, 7, v0")
    a(f"v_add_u32 v{T}, s78, v{T}")
    a(f"v_min_u32 v{T}, MEGA_END-pmega_kernel, v{T}")
    a(f"global_load_dword v{T+1}, v{T}, s[76:77]")

def adv(a, r, n):
    a(f"s_add_u32 s{r}, s{r}, 1")
    a(f"s_cmp_ge_u32 s{r}, {n}")
    a(f"s_cselect_b32 s{r}, 0, s{r}")

QSLOT = 30720
NQS = 5
COEFOFF = NQS * QSLOT
QSTR = 1744
OSTR = 304
class Sprinkle:
    def __init__(self, a, q, period):
        self.a = a; self.q = list(q); self.period = period; self.n = 0; self.busy = False
    def __call__(self, s):
        self.a(s)
        if self.busy: return
        self.n += 1
        if self.q and self.n % self.period == 0 and "exec" not in s and "vcc" not in s and "s_cmp" not in s and "s_nop" not in s:
            self.busy = True; self.q.pop(0)(); self.busy = False
    def flush(self):
        while self.q: self.q.pop(0)()
    def __getattr__(self, k): return getattr(self.a, k)

H1OFF = 4 * 27648
SCR = H1OFF + 27648
def red_g(a, vals, tmp):
    for op in ("v_permlane16_swap_b32", "v_permlane32_swap_b32"):
        for i, v in enumerate(vals): a(f"v_mov_b32 v{tmp+i}, v{v}")
        a("s_nop 1")
        for i, v in enumerate(vals): a(f"{op} v{v}, v{tmp+i}")
        for i, v in enumerate(vals): a(f"v_add_f32 v{v}, v{v}, v{tmp+i}")

def ph12(c):
    a = c.a; st = c.st
    a("s_and_b32 s36, s2, 3")
    a("s_bfe_u32 s37, s2, 0x10002")
    a("s_lshl_b32 s37, s37, 5")
    a("s_lshr_b32 s38, s2, 3")
    a("s_add_u32 s37, s37, s38")
    R = Regs(1, WOF)
    T = R.alloc(8)
    VD = R.alloc(4)
    VL16 = R.alloc(1)
    VOO = R.alloc(1)
    m0 = R.mark()
    XF = R.alloc(36, 4)
    DD = R.alloc(72, 2)
    CF = R.alloc(24, 4)
    VXA = R.alloc(1); STA = R.alloc(6)
    vm = VmTracker(a)
    if c.sync:
        phase0_loads(c, DD)
        warm_code(c, WOF + 30)
        vm.issue("M", 7)
    a(f"v_mov_b32 v{VOO}, {48*QSTR}")
    a(f"v_mov_b32 v{WOF}, 0x7f000000")
    a(f"v_lshlrev_b32 v{VL16}, 4, v0")
    a("s_mul_i32 s39, s24, 12")
    for jj in range(4):
        a(f"v_add_u32 v{T}, {64*jj}, v0")
        a(f"v_mul_u32_u24 v{T+1}, 3641, v{T}")
        a(f"v_lshrrev_b32 v{T+1}, 16, v{T+1}")
        a(f"v_mul_u32_u24 v{T+2}, 18, v{T+1}")
        a(f"v_sub_u32 v{T}, v{T}, v{T+2}")
        a(f"v_add_u32 v{T+1}, s39, v{T+1}")
        a(f"v_lshrrev_b32 v{T+2}, 5, v{T+1}")
        a(f"v_bfe_u32 v{T+3}, v{T+1}, 2, 2")
        a(f"v_bfe_u32 v{T+4}, v{T+1}, 4, 1")
        a(f"v_and_b32 v{T+1}, 3, v{T+1}")
        a(f"v_lshl_add_u32 v{T+1}, v{T+3}, 3, v{T+1}")
        a(f"v_lshl_add_u32 v{T+1}, v{T+4}, 2, v{T+1}")
        a(f"v_mul_u32_u24 v{T+1}, 3456, v{T+1}")
        a(f"v_mul_u32_u24 v{T+2}, 1152, v{T+2}")
        a(f"v_add_u32 v{T+1}, v{T+1}, v{T+2}")
        a(f"v_lshl_add_u32 v{VD+jj}, v{T}, 4, v{T+1}")
    a("s_mul_i32 s40, s24, 3456")
    a("s_mul_i32 s41, s36, 288")
    a("s_mul_i32 s42, s38, 57")
    a("s_lshr_b32 s42, s42, 9")
    a("s_mul_i32 s42, s42, 9")
    a("s_sub_u32 s42, s38, s42")
    a("s_mov_b32 s43, s42")
    def dma_pieces(k):
        slot = (k % 4) * 27648
        def piece(jj):
            if jj == 0:
                a(f"s_mul_i32 s44, s42, {32*3456}")
                a(f"s_add_u32 s44, s44, s41")
                if k >= 9: a(f"s_add_u32 s44, s44, {9*32*3456}")
                adv(a, 42, 9)
            a(f"s_add_u32 m0, s40, {slot + jj*1024}")
            a("s_mov_b64 exec, 0xffffff" if jj == 3 else "s_nop 0")
            a(f"buffer_load_dwordx4 v{VD+jj}, {WQKV_}, s44 offen lds")
            if jj == 3: a("s_mov_b64 exec, -1")
            vm.issue(("D", k))
        return [(lambda jj=jj: piece(jj)) for jj in range(4)]
    a("s_lshl_b32 s45, s37, 5")
    a("s_sub_u32 s45, s45, 16")
    a(f"v_and_b32 v{T}, 15, v0")
    a(f"v_add_u32 v{T}, s45, v{T}")
    a("s_mov_b32 s46, 1152")
    a(f"v_mul_lo_u32 v{T}, v{T}, s46")
    a(f"v_lshrrev_b32 v{T+1}, 4, v0")
    a(f"v_lshl_add_u32 v{VXA}, v{T+1}, 4, v{T}")
    a("s_lshl_b32 s46, s24, 6")
    a(f"s_add_u32 s47, s46, {9*64}")
    a("s_mul_i32 s48, s24, 576")
    a(f"s_add_u32 s48, s48, {8*64}")
    a("s_cmp_ge_u32 s24, 2")
    a("s_cselect_b32 s48, 0x7f000000, s48")
    def bulk():
        save = list(vm.ops)
        for q in range(3):
            for m in range(3):
                r = XF + (q * 3 + m) * 4
                a(f"v_add_u32 v{T+7}, s{46+q}, v{VXA}")
                if m: a(f"v_add_u32 v{T+7}, {m*16*1152}, v{T+7}")
                a(f"buffer_load_dwordx4 v[{r}:{r+3}], v{T+7}, {X_}, 0 offen")
                vm.issue("X")
        for k in range(0, 4):
            for f in dma_pieces(k): f()
        return save
    if c.sync:
        def bulk0():
            keep = list(vm.ops)
            bulk()
            vm.ops = keep
        phase0(c, DD, T, vm, bulk0)
        bulk_ops = []
        keep = list(vm.ops)
        class _Null:
            def __call__(self, s): pass
        vm.ops = keep + ["X"] * 9 + [("D", 0)] * 4 + [("D", 1)] * 4 + [("D", 2)] * 4 + [("D", 3)] * 4
    else:
        bulk()
    a(f"v_mov_b32 v{T}, 0x3f803f80")
    vm.wait("X")
    for m in range(3):
        first = True
        for q in range(3):
            for d in range(4):
                r = XF + (q * 3 + m) * 4 + d
                a(f"v_dot2_f32_bf16 v{STA+m}, v{r}, v{T}, " + ("0" if first else f"v{STA+m}"))
                first = False
    a.nop(3)
    red_g(a, [STA, STA + 1, STA + 2], T + 1)
    a(f"v_and_b32 v{T}, 15, v0")
    a(f"v_lshlrev_b32 v{T}, 5, v{T}")
    a(f"v_add_u32 v{T}, {SCR + 4096}, v{T}")
    a("s_lshl_b32 s45, s24, 2")
    a(f"v_add_u32 v{T+1}, s45, v{T}")
    def xchg(off):
        for m in range(3):
            a(f"ds_write_b32 v{T+1}, v{STA+m} offset:{off + m*512}")
        a("s_waitcnt lgkmcnt(0)")
        a("s_barrier")
        for m in range(3):
            a(f"ds_read_b128 v[{CF+8*m}:{CF+8*m+3}], v{T} offset:{off + m*512}")
            a(f"ds_read_b128 v[{CF+8*m+4}:{CF+8*m+7}], v{T} offset:{off + m*512 + 16}")
        a("s_waitcnt lgkmcnt(0)")
        for m in range(3):
            b = CF + 8 * m
            for e in range(4): a(f"v_add_f32 v{b+e}, v{b+e}, v{b+4+e}")
            a(f"v_add_f32 v{b}, v{b}, v{b+1}")
            a(f"v_add_f32 v{b+2}, v{b+2}, v{b+3}")
            a(f"v_add_f32 v{STA+m}, v{b}, v{b+2}")
    xchg(0)
    for m in range(3):
        a(f"v_mul_f32 v{STA+3+m}, 0x{np_f32(1.0/576):08x}, v{STA+m}")
        a(f"v_mov_b32 v{STA+m}, 0")
    def dpass(q):
        for m in range(3):
            for d in range(4):
                r = XF + (q * 3 + m) * 4 + d; o = DD + ((q * 3 + m) * 4 + d) * 2
                a(f"v_lshlrev_b32 v{o}, 16, v{r}")
                a(f"v_and_b32 v{o+1}, 0xffff0000, v{r}")
                a(f"v_sub_f32 v{o}, v{o}, v{STA+3+m}")
                a(f"v_sub_f32 v{o+1}, v{o+1}, v{STA+3+m}")
                a(f"v_fmac_f32 v{STA+m}, v{o}, v{o}")
                a(f"v_fmac_f32 v{STA+m}, v{o+1}, v{o+1}")
    dpass(0); dpass(1)
    lab = a.newlabel("P12_Q2")
    a("s_cmp_ge_u32 s24, 2")
    a(f"s_cbranch_scc1 {lab}")
    dpass(2)
    a.label(lab)
    red_g(a, [STA, STA + 1, STA + 2], T + 2)
    xchg(2048)
    for m in range(3):
        ln_scalars(a, mean=STA + 3 + m, ssq=STA + m, rinv=STA + m, corr=STA + 3 + m, tmp=T + 2)
    for i in range(36):
        m = (i // 4) % 3
        for h in range(2):
            a(f"v_fma_f32 v{DD+2*i+h}, v{DD+2*i+h}, v{STA+m}, v{STA+3+m}")
    st.stamp(1)
    if c.sync:
        wo_pack2(c)
        wait0(c, T + 2, 0, 72)
    st.stamp()
    a(f"v_lshrrev_b32 v{T}, 4, v0")
    a(f"v_lshlrev_b32 v{T}, 4, v{T}")
    for q in range(3):
        a(f"s_add_u32 s45, s{46+q}, {wso('MODB')}")
        a(f"buffer_load_dwordx4 v[{CF+8*q}:{CF+8*q+3}], v{T}, {WS_}, s45 offen offset:1152{SC}")
        a(f"buffer_load_dwordx4 v[{CF+8*q+4}:{CF+8*q+7}], v{T}, {WS_}, s45 offen{SC}")
        vm.issue(("C", q), 2)
    for q in range(3):
        vm.wait(("C", q))
        for d in range(4):
            a(f"v_lshlrev_b32 v{T}, 16, v{CF+8*q+d}")
            a(f"v_and_b32 v{T+1}, 0xffff0000, v{CF+8*q+d}")
            a(f"v_lshlrev_b32 v{T+2}, 16, v{CF+8*q+4+d}")
            a(f"v_and_b32 v{T+3}, 0xffff0000, v{CF+8*q+4+d}")
            for m in range(3):
                o = DD + ((q * 3 + m) * 4 + d) * 2
                a(f"v_fma_f32 v{o}, v{o}, v{T}, v{T+2}")
                a(f"v_fma_f32 v{o+1}, v{o+1}, v{T+1}, v{T+3}")
                a(f"v_cvt_pk_bf16_f32 v{XF+(q*3+m)*4+d}, v{o}, v{o+1}")
    R.release(m0)
    XF = R.alloc(36, 4)
    ACC = R.alloc(40, 4); WB = R.alloc(32, 4); AB = R.alloc(24, 4); TB = R.alloc(2); VH = R.alloc(1); VHB = R.alloc(1); VHW = R.alloc(1)
    a("s_mul_i32 s45, s24, 3072")
    a(f"v_add_u32 v{VHB}, {H1OFF}, v{VL16}")
    a(f"v_add_u32 v{VHW}, s45, v{VHB}")
    def h1_write(half):
        for m in range(3):
            r = XF + (half * 3 + m) * 4
            a(f"ds_write_b128 v{VHW}, v[{r}:{r+3}] offset:{m*1024}")
        lab = a.newlabel("P12_H1")
        a(f"s_cmp_lg_u32 s24, {half}")
        a(f"s_cbranch_scc1 {lab}")
        for m in range(3):
            r = XF + (6 + m) * 4
            a(f"ds_write_b128 v{VHB}, v[{r}:{r+3}] offset:{8*3072 + m*1024}")
        a.label(lab)
        a("s_waitcnt lgkmcnt(0)")
    h1_write(0)
    st.stamp(1)
    a(f"v_lshrrev_b32 v{T}, 2, v0")
    a(f"v_mul_u32_u24 v{T}, 288, v{T}")
    a(f"v_and_b32 v{T+1}, 3, v0")
    a(f"v_lshl_add_u32 v{T}, v{T+1}, 3, v{T}")
    a("s_cmp_ge_u32 s24, 3")
    a("s_cselect_b32 s49, 2, 1")
    a("s_cselect_b32 s50, 3, 0")
    a("s_sub_u32 s50, s24, s50")
    a("s_mul_i32 s50, s50, 3")
    a("s_sub_u32 s45, s24, 6")
    a("s_mul_i32 s45, s45, 5")
    a("s_cmp_ge_u32 s24, 6")
    a("s_cselect_b32 s49, 0, s49")
    a("s_cselect_b32 s50, s45, s50")
    a("s_mul_i32 s45, s49, 9216")
    a("s_lshl_b32 s46, s50, 5")
    a("s_add_u32 s45, s45, s46")
    a(f"v_add_u32 v{TB}, s45, v{T}")
    a(f"v_add_u32 v{TB+1}, {2*27648}, v{TB}")
    vm_save = list(vm.ops)
    labB = a.newlabel("P12_GB"); labE = a.newlabel("P12_GE")
    a("s_cmp_ge_u32 s24, 6")
    a(f"s_cbranch_scc1 {labB}")
    def gemm(NT, ms):
        lt = LTracker(a)
        vm.ops = list(vm_save)
        D = NT
        cnt = [0]; wreg = {}; pend = []
        def run(ks):
            items = [(k, n) for k in ks for n in range(NT)]
            def issue(idx):
                k, n = items[idx]
                if n == 0:
                    if "nodma" not in DBG or k < 4: vm.wait(("D", k))
                    if "nobar" not in DBG or k in (0, 9): a("s_barrier")
                    a("s_mul_i32 s45, s43, 3072")
                    adv(a, 43, 9)
                    a(f"v_add_u32 v{VH}, s45, v{VHB}")
                    for m in ms:
                        r = AB + ((k % 2) * 3 + m) * 4
                        lt.issue(("A", k), f"ds_read_b128 v[{r}:{r+3}], v{VH} offset:{m*1024}")
                    if 2 <= k and k + 2 < 18 and "nodma" not in DBG:
                        pend.extend(dma_pieces(k + 2))
                w = WB + 4 * (cnt[0] % 8); cnt[0] += 1
                wreg[(k, n)] = w
                sl = k % 4
                o = (sl % 2) * 27648 + n * 32
                lt.issue((k, n), f"ds_read_b64_tr_b16 v[{w}:{w+1}], v{TB+sl//2} offset:{o}")
                lt.issue((k, n), f"ds_read_b64_tr_b16 v[{w+2}:{w+3}], v{TB+sl//2} offset:{o + 16*288}")
            for idx in range(D): issue(idx)
            for idx, (k, n) in enumerate(items):
                if idx + D < len(items): issue(idx + D)
                lt.wait((k, n), ("A", k))
                w = wreg[(k, n)]
                for mi, m in enumerate(ms):
                    d = ACC + (n * len(ms) + mi) * 4; b = AB + ((k % 2) * 3 + m) * 4
                    cc = "0" if k == 0 else f"v[{d}:{d+3}]"
                    a(f"v_mfma_f32_16x16x32_bf16 v[{d}:{d+3}], v[{w}:{w+3}], v[{b}:{b+3}], {cc}")
                for _ in range(2 if NT == 3 else 1):
                    if pend: pend.pop(0)()
        run(range(0, 9))
        a("s_barrier")
        if c.sync and NT == 3:
            labZ = a.newlabel("P12_ARR2")
            a("s_cmp_lg_u32 s24, 0")
            a(f"s_cbranch_scc1 {labZ}")
            a(f"v_mov_b32 v{T}, 1")
            a("s_and_b32 s76, s2, 1")
            a("s_lshl_b32 s76, s76, 6")
            a("s_add_u32 s76, s76, 128")
            a("s_mov_b64 exec, 1")
            a(f"buffer_atomic_add v{T}, off, s[72:75], s76 sc1")
            a("s_mov_b64 exec, -1")
            a.label(labZ)
        h1_write(1)
        run(range(9, 18))
        assert not pend
        a("s_barrier")
        a.nop(4)
        a(f"v_and_b32 v{T}, 15, v0")
        a(f"v_mul_u32_u24 v{T}, {QSTR}, v{T}")
        a(f"v_lshrrev_b32 v{T+1}, 4, v0")
        a(f"v_lshl_add_u32 v{T}, v{T+1}, 4, v{T}")
        a("s_mul_i32 s45, s49, 576")
        a("s_lshl_b32 s46, s50, 6")
        a("s_add_u32 s45, s45, s46")
        a(f"v_add_u32 v{T}, s45, v{T}")
        for n in range(NT):
            if NT == 5 and n == 4:
                labS = a.newlabel("P12_S")
                a("s_cmp_eq_u32 s24, 7")
                a(f"s_cbranch_scc1 {labS}")
            for mi, m in enumerate(ms):
                d = ACC + (n * len(ms) + mi) * 4
                a(f"ds_write_b128 v{T}, v[{d}:{d+3}] offset:{m*16*QSTR + n*64}")
        if NT == 5: a.label(labS)
    gemm(3, [0, 1, 2])
    a(f"s_branch {labE}")
    a.label(labB)
    gemm(5, [1, 2])
    a.label(labE)
    if c.sync:
        wait0(c, T + 2, 128, 256)
    st.stamp()
    a = Sprinkle(c.a, wof_pieces(c, VL16), 40)
    R.release(m0)
    Q = R.alloc(18, 2); KB = R.alloc(72, 2); LG = R.alloc(8, 2); O = R.alloc(18, 2); P = R.alloc(8, 2)
    VR = R.alloc(1); VQ = R.alloc(1); VK = R.alloc(1)
    a(f"v_lshrrev_b32 v{VR}, 4, v0")
    a("s_lshl_b32 s45, s24, 2")
    a(f"v_add_u32 v{VR}, s45, v{VR}")
    a(f"v_bfe_u32 v{T}, v0, 1, 3")
    a(f"v_mul_u32_u24 v{T}, 72, v{T}")
    a(f"v_mul_u32_u24 v{VQ}, {QSTR}, v{VR}")
    a(f"v_add_u32 v{VQ}, v{VQ}, v{T}")
    a(f"v_and_b32 v{T+1}, 1, v0")
    a(f"v_mul_u32_u24 v{T+2}, {8*QSTR}, v{T+1}")
    a(f"v_sub_u32 v{VK}, v{VQ}, v{T+2}")
    a(f"v_add_u32 v{VK}, {10*QSTR}, v{VK}")
    a("s_waitcnt lgkmcnt(0)")
    a("s_barrier")
    st.stamp(1)
    lt = LTracker(a)
    for i in range(9):
        lt.issue("q", f"ds_read_b64 v[{Q+2*i}:{Q+2*i+1}], v{VQ} offset:{16*QSTR + 8*i}")
    def rdrow(jj, part, i):
        dst = KB + 18 * jj + 2 * i
        lt.issue((part, jj, i), f"ds_read_b64 v[{dst}:{dst+1}], v{VK} offset:{(6-2*jj)*QSTR + part*576 + 8*i}")
    for i in range(9):
        for jj in range(4): rdrow(jj, 1, i)
    for i in range(9):
        lt.wait("q", (1, 3, i))
        for jj in range(4):
            k = KB + 18 * jj + 2 * i
            if i == 0:
                a(f"v_pk_mul_f32 v[{LG+2*jj}:{LG+2*jj+1}], v[{k}:{k+1}], v[{Q}:{Q+1}]")
            else:
                a(f"v_pk_fma_f32 v[{LG+2*jj}:{LG+2*jj+1}], v[{k}:{k+1}], v[{Q+2*i}:{Q+2*i+1}], v[{LG+2*jj}:{LG+2*jj+1}]")
        for jj in range(4): rdrow(jj, 2, i)
    for jj in range(4):
        a(f"v_add_f32 v{LG+2*jj}, v{LG+2*jj}, v{LG+2*jj+1}")
    labM = a.newlabel("P12_NOMASK")
    a.busy = True
    a("s_cmp_lg_u32 s37, 0")
    a(f"s_cbranch_scc1 {labM}")
    a(f"v_mov_b32 v{T}, 0x{np_f32(-1e9):08x}")
    a(f"v_lshlrev_b32 v{T+2}, 3, v{T+1}")
    for jj in range(4):
        a(f"v_add_u32 v{T+3}, {2*jj}, v{T+2}")
        a(f"v_cmp_le_u32 vcc, v{T+3}, v{VR}")
        a("s_nop 1")
        a(f"v_cndmask_b32 v{LG+2*jj}, v{T}, v{LG+2*jj}, vcc")
    a.label(labM)
    a.busy = False
    cs = np_f32(18 ** -0.5 * 1.4426950408889634)
    a(f"s_mov_b32 s45, 0x{cs:08x}")
    a(f"v_max3_f32 v{T}, v{LG}, v{LG+2}, v{LG+4}")
    a(f"v_max_f32 v{T}, v{T}, v{LG+6}")
    a("s_nop 1")
    a(f"v_max_f32_dpp v{T}, v{T}, v{T} quad_perm:[1,0,3,2] row_mask:0xf bank_mask:0xf")
    a(f"v_mul_f32 v{T}, s45, v{T}")
    for jj in range(4):
        a(f"v_fma_f32 v{LG+2*jj}, v{LG+2*jj}, s45, -v{T}")
    for jj in range(4):
        a(f"v_exp_f32 v{LG+2*jj}, v{LG+2*jj}")
    a("s_nop 0")
    a(f"v_add_f32 v{T}, v{LG}, v{LG+2}")
    a(f"v_add_f32 v{T+2}, v{LG+4}, v{LG+6}")
    a(f"v_add_f32 v{T}, v{T}, v{T+2}")
    a("s_nop 1")
    a(f"v_add_f32_dpp v{T}, v{T}, v{T} quad_perm:[1,0,3,2] row_mask:0xf bank_mask:0xf")
    a(f"v_rcp_f32 v{T}, v{T}")
    a("s_nop 0")
    for jj in range(4):
        a(f"v_mul_f32 v{P+2*jj}, v{LG+2*jj}, v{T}")
    a("s_waitcnt lgkmcnt(0)")
    st.stamp(1)
    for jj in range(4):
        for i in range(9):
            k = KB + 18 * jj + 2 * i
            if jj == 0:
                a(f"v_pk_mul_f32 v[{O+2*i}:{O+2*i+1}], v[{k}:{k+1}], v[{P}:{P+1}] op_sel_hi:[1,0]")
            else:
                a(f"v_pk_fma_f32 v[{O+2*i}:{O+2*i+1}], v[{k}:{k+1}], v[{P+2*jj}:{P+2*jj+1}], v[{O+2*i}:{O+2*i+1}] op_sel_hi:[1,0,1]")
    a("s_nop 1")
    for i in range(18):
        a(f"v_add_f32_dpp v{O+i}, v{O+i}, v{O+i} quad_perm:[1,0,3,2] row_mask:0xf bank_mask:0xf")
    OOFF = 48 * QSTR
    a(f"v_mul_u32_u24 v{T+2}, {OSTR}, v{VR}")
    a(f"v_bfe_u32 v{T}, v0, 1, 3")
    a(f"v_mul_u32_u24 v{T}, 36, v{T}")
    a(f"v_add3_u32 v{T}, v{T}, v{T+2}, v{VOO}")
    for i in range(9):
        a(f"v_cvt_pk_bf16_f32 v{O+2*i}, v{O+2*i}, v{O+2*i+1}")
        a(f"ds_write_b32 v{T}, v{O+2*i} offset:{4*i}")
    spr = a
    a = c.a
    a("s_lshl_b32 s45, s24, 6")
    a(f"v_add_u32 v{T}, s45, v0")
    a("s_mul_i32 s46, s36, 18")
    a("s_mul_i32 s47, s37, 36864")
    a(f"s_add_u32 s47, s47, {wso('OF')}")
    a("s_waitcnt lgkmcnt(0)")
    a("s_barrier")
    st.stamp()
    for ps in range(2):
        if ps == 1:
            labP = a.newlabel("P12_PUB")
            a("s_cmp_lg_u32 s24, 0")
            a(f"s_cbranch_scc1 {labP}")
            a(f"v_add_u32 v{T}, 512, v0")
        a(f"v_and_b32 v{T+1}, 31, v{T}")
        a(f"v_lshrrev_b32 v{T+2}, 5, v{T}")
        a(f"v_mul_u32_u24 v{T+3}, {OSTR}, v{T+1}")
        a(f"v_lshl_add_u32 v{T+3}, v{T+2}, 4, v{T+3}")
        a(f"v_add_u32 v{T+3}, v{T+3}, v{VOO}")
        a(f"ds_read_b128 v[{Q}:{Q+3}], v{T+3}")
        a(f"v_add_u32 v{T+2}, s46, v{T+2}")
        a(f"v_lshrrev_b32 v{T+3}, 4, v{T+1}")
        a(f"v_mul_u32_u24 v{T+3}, 1152, v{T+3}")
        a(f"v_lshl_add_u32 v{T+3}, v{T+2}, 4, v{T+3}")
        a(f"v_and_b32 v{T+1}, 15, v{T+1}")
        a(f"v_add_u32 v{T+3}, v{T+3}, v{T+1}")
        a(f"v_lshlrev_b32 v{T+3}, 4, v{T+3}")
        a("s_waitcnt lgkmcnt(0)")
        a(f"v_min_u32 v{Q}, -2, v{Q}")
        a(f"buffer_store_dwordx4 v[{Q}:{Q+3}], v{T+3}, {WS_}, s47 offen{SC}")
    a.label(labP)
    spr.flush()
    a("s_barrier")
    st.stamp()

def phase0_loads(c, B):
    a = c.a
    a("s_lshr_b32 s76, s2, 5")
    a("s_lshl_b32 s76, s76, 3")
    a("s_and_b32 s77, s2, 7")
    a("s_add_u32 s76, s76, s77")
    a("s_lshl_b32 s76, s76, 2")
    a("s_bfe_u32 s77, s2, 0x20003")
    a("s_add_u32 s80, s76, s77")
    a("s_lshl_b32 s76, s24, 6")
    a(f"v_add_u32 v{B}, s76, v0")
    a(f"v_and_b32 v{B+1}, 1, v{B}")
    a(f"v_lshrrev_b32 v{B+2}, 1, v{B}")
    a(f"v_mul_u32_u24 v{B+3}, 6912, v{B+2}")
    a(f"v_lshl_add_u32 v{B+3}, v{B+1}, 4, v{B+3}")
    a("s_lshl_b32 s76, s80, 5")
    a("s_cmp_ge_u32 s80, 216")
    a("s_cselect_b32 s76, 0x7f000000, s76")
    a(f"v_add_u32 v{B+3}, s76, v{B+3}")
    a(f"v_lshlrev_b32 v{B+4}, 1, v{B+2}")
    W = B + 8; C = B + 20
    a(f"s_mov_b32 s77, {256*6912}")
    a(f"s_mov_b32 s78, {512*6912}")
    for q, so in enumerate(("0", "s77", "s78")):
        a(f"buffer_load_dwordx4 v[{W+4*q}:{W+4*q+3}], v{B+3}, s[60:63], {so} offen")
        a(f"buffer_load_ushort v{C+q}, v{B+4}, s[64:67], 0 offen offset:{512*q}")

def phase0(c, B, T, vm, bulk0):
    a = c.a
    W = B + 8; C = B + 20
    a("s_waitcnt vmcnt(0)")
    c.st.stamp(1)
    A8 = B + 44
    for q in range(3):
        cc = C + q
        a(f"v_lshlrev_b32 v{cc}, 16, v{cc}")
        a(f"v_mul_f32 v{T}, {NLOG2E}, v{cc}")
        a(f"v_exp_f32 v{T}, v{T}")
        a("s_nop 0")
        a(f"v_add_f32 v{T}, 1.0, v{T}")
        a(f"v_rcp_f32 v{T}, v{T}")
        a("s_nop 0")
        a(f"v_mul_f32 v{cc}, v{cc}, v{T}")
        bf16_round(a, cc, cc)
        for d in range(4):
            w = W + 4 * q + d
            a(f"v_lshlrev_b32 v{T}, 16, v{w}")
            a(f"v_and_b32 v{T+1}, 0xffff0000, v{w}")
            if q == 0:
                a(f"v_mul_f32 v{A8+2*d}, v{cc}, v{T}")
                a(f"v_mul_f32 v{A8+2*d+1}, v{cc}, v{T+1}")
            else:
                a(f"v_fmac_f32 v{A8+2*d}, v{cc}, v{T}")
                a(f"v_fmac_f32 v{A8+2*d+1}, v{cc}, v{T+1}")
    for rr in (2, 4, 8):
        for e in range(8):
            a(f"v_add_f32_dpp v{A8+e}, v{A8+e}, v{A8+e} row_ror:{rr} row_mask:0xf bank_mask:0xf")
    a(f"v_lshrrev_b32 v{T}, 4, v{B}")
    a(f"v_lshlrev_b32 v{T}, 6, v{T}")
    a(f"v_lshl_add_u32 v{T}, v{B+1}, 5, v{T}")
    a(f"v_add_u32 v{T}, {SCR}, v{T}")
    a(f"ds_write_b128 v{T}, v[{A8}:{A8+3}]")
    a(f"ds_write_b128 v{T}, v[{A8+4}:{A8+7}] offset:16")
    a("s_waitcnt lgkmcnt(0)")
    a("s_barrier")
    labF = a.newlabel("P0_FIN"); labW = a.newlabel("P0_WO")
    a("s_cmp_lg_u32 s24, 0")
    a(f"s_cbranch_scc1 {labW}")
    a(f"v_and_b32 v{T}, 15, v0")
    a(f"v_lshrrev_b32 v{T+1}, 4, v0")
    a(f"v_lshlrev_b32 v{T+1}, 9, v{T+1}")
    a(f"v_lshl_add_u32 v{T+1}, v{T}, 2, v{T+1}")
    a(f"v_add_u32 v{T+1}, {SCR}, v{T+1}")
    for e in range(8):
        a(f"ds_read_b32 v{A8+e}, v{T+1} offset:{64*e}")
    a("s_waitcnt lgkmcnt(0)")
    for e in range(1, 8):
        a(f"v_add_f32 v{A8}, v{A8}, v{A8+e}")
    red_g(a, [A8], T + 1)
    bf16_round(a, A8, A8)
    a("s_mul_i32 s76, s80, 1821")
    a("s_lshr_b32 s76, s76, 16")
    a("s_mov_b32 s77, 0")
    a("s_cmp_eq_u32 s76, 1")
    a("s_cselect_b32 s77, 1.0, s77")
    a("s_cmp_eq_u32 s76, 4")
    a("s_cselect_b32 s77, 1.0, s77")
    a(f"v_add_f32 v{A8}, s77, v{A8}")
    bf16_round(a, A8, A8)
    a(f"v_lshlrev_b32 v{T+1}, 2, v{T}")
    a(f"v_lshlrev_b32 v{T}, 1, v{T}")
    a(f"v_lshrrev_b32 v{A8+1}, 16, v{A8}")
    a("s_lshl_b32 s76, s80, 6")
    a(f"s_add_u32 s76, s76, {wso('MOD')}")
    a("s_lshl_b32 s77, s80, 5")
    a(f"s_add_u32 s77, s77, {wso('MODB')}")
    a("s_cmp_ge_u32 s80, 216")
    a("s_cselect_b32 s76, 0x7f000000, s76")
    a("s_cselect_b32 s77, 0x7f000000, s77")
    a(f"v_mov_b32 v{A8+2}, 0")
    a("s_lshl_b32 s78, s2, 6")
    a("s_mov_b64 exec, 0xffff")
    a(f"buffer_store_short v{A8+1}, v{T}, {WS_}, s77 offen{SC}")
    a(f"buffer_store_dword v{A8}, v{T+1}, {WS_}, s76 offen{SC}")
    a(f"buffer_store_dword v{A8+2}, v{T+1}, {WS_}, s78 offen{SC}")
    a(f"v_mov_b32 v{T}, 1")
    a("s_and_b32 s76, s2, 1")
    a("s_lshl_b32 s76, s76, 6")
    a("s_add_u32 s77, s76, 128")
    a("s_cmp_ge_u32 s80, 72")
    a("s_cselect_b32 s76, 0x7f000000, s76")
    a("s_mov_b64 exec, 1")
    a("s_waitcnt vmcnt(0)")
    a(f"buffer_atomic_add v{T}, off, s[72:75], s76 sc1")
    a("s_mov_b64 exec, -1")
    bulk0()
    a(f"s_branch {labF}")
    a.label(labW)
    bulk0()
    a("s_cmp_lt_u32 s24, 5")
    a(f"s_cbranch_scc1 {labF}")
    P = WOF
    a("s_mul_i32 s76, s2, 162")
    a("s_sub_u32 s76, s76, 320")
    a(f"v_add_u32 v{P}, s76, v{B}")
    a(f"v_lshrrev_b32 v{P+1}, 6, v{P}")
    a(f"v_mul_u32_u24 v{P+2}, 3641, v{P+1}")
    a(f"v_lshrrev_b32 v{P+2}, 16, v{P+2}")
    a(f"v_mul_u32_u24 v{P+3}, 18, v{P+2}")
    a(f"v_sub_u32 v{P+3}, v{P+1}, v{P+3}")
    a(f"v_and_b32 v{P+4}, 15, v{P}")
    a(f"v_lshl_add_u32 v{P+4}, v{P+2}, 4, v{P+4}")
    a(f"v_bfe_u32 v{P+5}, v{P}, 4, 2")
    a(f"v_lshlrev_b32 v{P+5}, 3, v{P+5}")
    a(f"v_lshl_add_u32 v{P+5}, v{P+3}, 5, v{P+5}")
    a(f"v_mul_u32_u24 v{P+5}, 1152, v{P+5}")
    a(f"v_lshl_add_u32 v{P+5}, v{P+4}, 1, v{P+5}")
    a(f"v_lshlrev_b32 v{P}, 4, v{P}")
    a(f"v_cmp_gt_u32 vcc, 482, v{B}")
    a(f"v_mov_b32 v{P+1}, 0x7f000000")
    a("s_nop 0")
    a(f"v_cndmask_b32 v{P}, v{P+1}, v{P}, vcc")
    a(f"v_cndmask_b32 v{P+5}, v{P+1}, v{P+5}, vcc")
    a("s_mov_b32 s77, 4608")
    for j in range(8):
        so = "0" if j < 4 else "s77"
        a(f"buffer_load_ushort v{P+8+j}, v{P+5}, s[68:71], {so} offen offset:{(j%4)*1152}")
    a.label(labF)
    prefill(c, B + 24)
    warm_w13(c, WOF + 24)
    c.st.stamp(1)

def wo_pack2(c):
    a = c.a; P = WOF
    lab = a.newlabel("P0_W2")
    a("s_cmp_lt_u32 s24, 5")
    a(f"s_cbranch_scc1 {lab}")
    a("s_waitcnt vmcnt(0)")
    for d in range(4):
        a(f"v_lshl_or_b32 v{P+16+d}, v{P+9+2*d}, 16, v{P+8+2*d}")
    a(f"s_mov_b32 s77, {wso('WOP')}")
    a(f"buffer_store_dwordx4 v[{P+16}:{P+19}], v{P}, {WS_}, s77 offen{SC}")
    a.label(lab)

def wo_pack3(c):
    a = c.a; P = WOF
    lab = a.newlabel("P0_W3")
    a("s_cmp_lt_u32 s24, 5")
    a(f"s_cbranch_scc1 {lab}")
    a(f"v_mov_b32 v{P+1}, 1")
    a("s_and_b32 s76, s2, 1")
    a("s_lshl_b32 s76, s76, 6")
    a("s_add_u32 s76, s76, 128")
    a("s_mov_b64 exec, 1")
    a("s_waitcnt vmcnt(0)")
    a(f"buffer_atomic_add v{P+1}, off, s[72:75], s76 sc1")
    a("s_mov_b64 exec, -1")
    a.label(lab)

def wait0(c, vt, base, target):
    a = c.a
    done = a.newlabel("W0DONE"); loop = a.newlabel("W0LOOP")
    a("s_cmp_lg_u32 s24, 0")
    a(f"s_cbranch_scc1 {done}")
    a("s_mov_b32 s56, 0")
    a(f"v_and_b32 v{vt+1}, 1, v0")
    a(f"v_lshlrev_b32 v{vt+1}, 6, v{vt+1}")
    a.label(loop)
    a(f"buffer_load_dword v{vt}, v{vt+1}, s[72:75], 0 offen offset:{base} sc1")
    a("s_waitcnt vmcnt(0)")
    a(f"v_readlane_b32 s76, v{vt}, 0")
    a(f"v_readlane_b32 s77, v{vt}, 1")
    a("s_add_u32 s56, s56, 1")
    a("s_add_u32 s76, s76, s77")
    a(f"s_cmp_ge_u32 s76, {target}")
    a(f"s_cbranch_scc1 {done}")
    a("s_cmp_gt_u32 s56, 0x400000")
    a(f"s_cbranch_scc1 {done}")
    a("s_sleep 4")
    a(f"s_branch {loop}")
    a.label(done)
    a("s_barrier")

def wof_pieces(c, VL16):
    a = c.a
    def setup():
        a("s_and_b32 s52, s2, 3")
        a("s_mul_i32 s53, s52, 9")
        a("s_and_b32 s54, s24, 1")
        a("s_mul_i32 s54, s54, 5")
        a("s_add_u32 s53, s53, s54")
        a("s_mul_i32 s53, s53, 18")
        a("s_lshr_b32 s54, s24, 1")
        a("s_mul_i32 s54, s54, 5")
        a("s_add_u32 s53, s53, s54")
        a("s_lshl_b32 s53, s53, 10")
        a(f"s_add_u32 s53, s53, {wso('WOP')}")
    def piece(i, u):
        if u == 0:
            a(f"s_add_u32 s55, s54, {i}")
            a("s_cmp_ge_u32 s55, 18")
            a("s_cselect_b32 s55, 0x7f000000, s53")
        r = WOF + (i * 5 + u) * 4
        a(f"s_add_u32 s52, s55, {u*18432 + i*1024}")
        a(f"buffer_load_dwordx4 v[{r}:{r+3}], v{VL16}, {WS_}, s52 offen")
    return [setup] + [(lambda i=i, u=u: piece(i, u)) for i in range(5) for u in range(5)]

def wof_loads(c, VL16):
    for f in wof_pieces(c, VL16): f()

SLOT3 = 36992
UPOFF = 18560
VD3 = 150
REDOFF = 2 * SLOT3
class WStream:
    def __init__(self, c, sg, srd, ldw, slot_of):
        self.c = c; self.sg = sg; self.srd = srd; self.ldw = ldw; self.slot_of = slot_of; self.VD = None
    def pieces(self, i, vm=None):
        a = self.c.a; g = self.sg
        slot = self.slot_of(i) * SLOT3
        def piece(j):
            if j == 0:
                a(f"s_mul_i32 s{g+3}, s{g+2}, {64*self.ldw}")
                a(f"s_add_u32 s{g+3}, s{g+3}, s{g+1}")
                adv(a, g + 2, 9)
            a(f"s_add_u32 m0, s{g}, {slot + j*1024}")
            a("s_mov_b64 exec, 0xffffffff" if j == 4 else "s_nop 0")
            a(f"buffer_load_dwordx4 v{self.VD+j}, {self.srd}, s{g+3} offen lds")
            if j == 4: a("s_mov_b64 exec, -1")
            if vm is not None: vm.issue(("D", i))
        return [(lambda j=j: piece(j)) for j in range(5)]

def w3_setup(c, VD, T):
    a = c.a
    w = WStream(c, 76, W13_, 9216, lambda i: i % 4); w.VD = VD
    dma_voffsets(a, VD, 5, 0, 9216, T)
    a("s_and_b32 s79, s24, 3")
    a("s_lshr_b32 s76, s24, 2")
    a(f"s_mul_i32 s76, s76, {UPOFF}")
    a("s_mul_i32 s77, s79, 4608")
    a("s_add_u32 s76, s76, s77")
    a(f"s_mul_i32 s77, s79, {16*9216}")
    a("s_and_b32 s79, s2, 31")
    a("s_mul_i32 s78, s79, 288")
    a("s_add_u32 s77, s77, s78")
    a("s_lshr_b32 s78, s79, 3")
    a("s_lshl_b32 s78, s78, 1")
    a("s_lshr_b32 s79, s2, 5")
    a("s_add_u32 s78, s78, s79")
    a("s_cmp_ge_u32 s78, 9")
    a("s_cselect_b32 s79, 9, 0")
    a("s_sub_u32 s78, s78, s79")
    a("s_mov_b32 s3, s78")
    return w

def w4_setup(c, VD, T):
    a = c.a
    w = WStream(c, 80, W2_, 1152, lambda i: (i + 1) % 4); w.VD = VD
    dma_voffsets(a, VD, 5, 0, 1152, T)
    a("s_lshr_b32 s83, s24, 2")
    a("s_mul_i32 s80, s83, 18432")
    a("s_and_b32 s82, s24, 3")
    a("s_mul_i32 s81, s82, 4608")
    a("s_add_u32 s80, s80, s81")
    a("s_bfe_u32 s81, s2, 0x20001")
    a("s_mul_i32 s81, s81, 1152")
    a("s_mul_i32 s83, s83, 576")
    a("s_add_u32 s81, s81, s83")
    a("s_lshl_b32 s82, s82, 4")
    a("s_add_u32 s81, s81, s82")
    a("s_mul_i32 s81, s81, 1152")
    a("s_lshr_b32 s82, s2, 6")
    a("s_mul_i32 s83, s82, 288")
    a("s_add_u32 s81, s81, s83")
    a("s_lshl_b32 s82, s82, 1")
    a("s_bfe_u32 s83, s2, 0x30003")
    a("s_add_u32 s82, s82, s83")
    a("s_cmp_ge_u32 s82, 9")
    a("s_cselect_b32 s83, 9, 0")
    a("s_sub_u32 s82, s82, s83")
    a("s_mov_b32 s25, s82")
    return w

RSTR = 656
def ph2w(c, standalone=False):
    a = c.a; st = c.st
    a("s_and_b32 s36, s2, 3")
    a("s_bfe_u32 s37, s2, 0x10002")
    a("s_lshl_b32 s37, s37, 5")
    a("s_lshr_b32 s38, s2, 3")
    a("s_add_u32 s37, s37, s38")
    a("s_lshr_b32 s39, s24, 1")
    a("s_and_b32 s40, s24, 1")
    R = Regs(1, VD3)
    T = R.alloc(8)
    VL16 = R.alloc(1)
    AF = R.alloc(40, 4); ACC = R.alloc(40, 4)
    XR = R.alloc(8, 4); GA = R.alloc(8, 4); C2 = R.alloc(8, 4); X1V = R.alloc(16, 2)
    VC = R.alloc(1); VX = R.alloc(1); VROW = R.alloc(1); VRD = R.alloc(2)
    a(f"v_lshlrev_b32 v{VL16}, 4, v0")
    if standalone:
        wof_loads(c, VL16)
    a(f"v_and_b32 v{VC}, 31, v0")
    a(f"v_lshrrev_b32 v{VROW}, 5, v0")
    a("s_lshl_b32 s41, s24, 1")
    a(f"v_add_u32 v{VROW}, s41, v{VROW}")
    a("s_lshl_b32 s41, s37, 5")
    a(f"v_add_u32 v{T}, s41, v{VROW}")
    a(f"v_mul_u32_u24 v{VX}, 1152, v{T}")
    a("s_mul_i32 s42, s36, 288")
    a(f"v_lshl_add_u32 v{VX}, v{VC}, 4, v{VX}")
    a(f"v_add_u32 v{VX}, s42, v{VX}")
    a(f"v_cmp_gt_u32 vcc, 18, v{VC}")
    a(f"v_mov_b32 v{T+1}, 0x7f000000")
    a("s_nop 0")
    a(f"v_cndmask_b32 v{VX}, v{T+1}, v{VX}, vcc")
    a("s_mov_b64 s[50:51], vcc")
    a(f"s_mov_b32 s43, {16*1152}")
    a(f"buffer_load_dwordx4 v[{XR}:{XR+3}], v{VX}, {X_}, 0 offen")
    a(f"buffer_load_dwordx4 v[{XR+4}:{XR+7}], v{VX}, {X_}, s43 offen")
    a(f"v_lshlrev_b32 v{T+1}, 5, v{VC}")
    a("s_mul_i32 s44, s36, 576")
    a(f"s_add_u32 s44, s44, {wso('MOD') + 2*576*4}")
    a(f"buffer_load_dwordx4 v[{GA}:{GA+3}], v{T+1}, {WS_}, s44 offen{SC}")
    a(f"buffer_load_dwordx4 v[{GA+4}:{GA+7}], v{T+1}, {WS_}, s44 offen offset:16{SC}")
    a(f"v_lshlrev_b32 v{T+1}, 4, v{VC}")
    a(f"s_add_u32 s44, s42, {wso('MODB') + 4*1152}")
    a(f"buffer_load_dwordx4 v[{C2}:{C2+3}], v{T+1}, {WS_}, s44 offen{SC}")
    a(f"s_add_u32 s44, s42, {wso('MODB') + 3*1152}")
    a(f"buffer_load_dwordx4 v[{C2+4}:{C2+7}], v{T+1}, {WS_}, s44 offen{SC}")
    st.stamp()
    if c.sync:
        c.w3 = w3_setup(c, VD3, T)
    a("s_mul_i32 s46, s37, 36864")
    a(f"s_add_u32 s46, s46, {wso('OF')}")
    a("s_mul_i32 s47, s39, 5")
    def act_loads():
        for i in range(5):
            a(f"s_add_u32 s48, s47, {i}")
            a("s_min_u32 s48, s48, 17")
            a("s_lshl_b32 s48, s48, 10")
            a("s_add_u32 s48, s48, s46")
            a("s_add_u32 s49, s48, 18432")
            for mt in range(2):
                r = AF + (i * 2 + mt) * 4
                a(f"buffer_load_dwordx4 v[{r}:{r+3}], v{VL16}, {WS_}, s{48+mt} offen{SC}")
    poll_loads(c, act_loads, [AF + 4 * q for q in range(10)], T)
    st.stamp(1)
    a(f"v_and_b32 v{T}, 15, v0")
    a(f"v_mul_u32_u24 v{T}, {RSTR}, v{T}")
    a(f"v_lshrrev_b32 v{T+1}, 4, v0")
    a(f"v_lshl_add_u32 v{T}, v{T+1}, 4, v{T}")
    a(f"s_mul_i32 s48, s39, {32*RSTR}")
    a("s_mul_i32 s49, s40, 320")
    a("s_add_u32 s48, s48, s49")
    a(f"s_add_u32 s48, s48, {REDOFF}")
    a(f"v_add_u32 v{T}, s48, v{T}")
    a(f"v_mul_u32_u24 v{VRD}, {RSTR}, v{VROW}")
    a(f"v_min_u32 v{T+1}, 17, v{VC}")
    a(f"v_lshl_add_u32 v{VRD}, v{T+1}, 5, v{VRD}")
    a(f"v_add_u32 v{VRD}, {REDOFF}, v{VRD}")
    a(f"v_add_u32 v{VRD+1}, {16*RSTR}, v{VRD}")
    early = (c.w3.pieces(0) + c.w3.pieces(1)) if c.sync else []
    for i in range(5):
        for u in range(5):
            w = WOF + (i * 5 + u) * 4
            for mt in range(2):
                d = ACC + (mt * 5 + u) * 4; b = AF + (i * 2 + mt) * 4
                cc = "0" if i == 0 else f"v[{d}:{d+3}]"
                a(f"v_mfma_f32_16x16x32_bf16 v[{d}:{d+3}], v[{w}:{w+3}], v[{b}:{b+3}], {cc}")
            if early and u % 2 == 1: early.pop(0)()
    assert not early
    a.nop(8)
    for mt in range(2):
        for u in range(5):
            d = ACC + (mt * 5 + u) * 4
            a(f"ds_write_b128 v{T}, v[{d}:{d+3}] offset:{mt*16*RSTR + u*64}")
    a("s_waitcnt lgkmcnt(0)")
    a("s_barrier")
    st.stamp(1)
    RD = AF
    S0 = ACC
    RD2 = ACC + 8
    a(f"s_mov_b32 s52, {wso('X1')}")
    a(f"s_add_u32 s53, s52, {16*1152}")
    def red32(vals, tmp):
        for ctl in ("quad_perm:[1,0,3,2]", "quad_perm:[2,3,0,1]", "row_half_mirror", "row_mirror"):
            a("s_nop 0")
            for v in vals:
                a(f"v_add_f32_dpp v{v}, v{v}, v{v} {ctl} row_mask:0xf bank_mask:0xf")
        for i, v in enumerate(vals):
            a(f"v_mov_b32 v{tmp+i}, v{v}")
        a("s_nop 1")
        for i, v in enumerate(vals):
            a(f"v_permlane16_swap_b32 v{v}, v{tmp+i}")
        for i, v in enumerate(vals):
            a(f"v_add_f32 v{v}, v{v}, v{tmp+i}")
    for ps in range(2):
        B = RD if ps == 0 else RD2
        for kq in range(4):
            for hf in range(2):
                r = B + (kq * 2 + hf) * 4
                a(f"ds_read_b128 v[{r}:{r+3}], v{VRD+ps} offset:{kq*32*RSTR + hf*16}")
    for ps in range(2):
        B = RD if ps == 0 else RD2
        a(f"s_waitcnt lgkmcnt({8 if ps == 0 else 0})")
        for e in range(8):
            a(f"v_add_f32 v{B+e}, v{B+e}, v{B+8+e}")
            a(f"v_add_f32 v{B+16+e}, v{B+16+e}, v{B+24+e}")
            a(f"v_add_f32 v{B+e}, v{B+e}, v{B+16+e}")
        XV = X1V + 8 * ps
        for d in range(4):
            x = XR + 4 * ps + d
            a(f"v_lshlrev_b32 v{T+1}, 16, v{x}")
            a(f"v_and_b32 v{T+2}, 0xffff0000, v{x}")
            a(f"v_fmac_f32 v{T+1}, v{GA+2*d}, v{B+2*d}")
            a(f"v_fmac_f32 v{T+2}, v{GA+2*d+1}, v{B+2*d+1}")
            a(f"v_cvt_pk_bf16_f32 v{x}, v{T+1}, v{T+2}")
            a(f"v_lshlrev_b32 v{XV+2*d}, 16, v{x}")
            a(f"v_and_b32 v{XV+2*d+1}, 0xffff0000, v{x}")
        a(f"buffer_store_dwordx4 v[{XR+4*ps}:{XR+4*ps+3}], v{VX}, {WS_}, s{52+ps} offen{SC}")
        sm = S0 + 2 * ps
        a(f"v_add_f32 v{sm}, v{XV}, v{XV+1}")
        for e in range(2, 8):
            a(f"v_add_f32 v{sm}, v{sm}, v{XV+e}")
        a(f"v_cndmask_b32 v{sm}, 0, v{sm}, s[50:51]")
    red32([S0, S0 + 2], T + 1)
    for ps in range(2):
        XV = X1V + 8 * ps; sm = S0 + 2 * ps; m2 = sm + 1
        a(f"v_mul_f32 v{T+2}, 0x{np_f32(1.0/144):08x}, v{sm}")
        a(f"v_sub_f32 v{T+1}, v{XV}, v{T+2}")
        a(f"v_mul_f32 v{m2}, v{T+1}, v{T+1}")
        for e in range(1, 8):
            a(f"v_sub_f32 v{T+1}, v{XV+e}, v{T+2}")
            a(f"v_fmac_f32 v{m2}, v{T+1}, v{T+1}")
        a(f"v_cndmask_b32 v{m2}, 0, v{m2}, s[50:51]")
    red32([S0 + 1, S0 + 3], T + 1)
    a("s_lshl_b32 s46, s37, 10")
    a(f"s_add_u32 s46, s46, {wso('ST')}")
    a("s_lshl_b32 s47, s36, 8")
    a("s_add_u32 s47, s47, s46")
    a(f"v_lshlrev_b32 v{T}, 3, v{VROW}")
    a(f"v_cmp_eq_u32 vcc, 0, v{VC}")
    a(f"v_mov_b32 v{T+1}, 0x7f000000")
    a("s_nop 0")
    a(f"v_cndmask_b32 v{T+1}, v{T+1}, v{T}, vcc")
    a(f"v_min_u32 v{S0}, -2, v{S0}")
    a(f"v_min_u32 v{S0+2}, -2, v{S0+2}")
    a(f"buffer_store_dwordx2 v[{S0}:{S0+1}], v{T+1}, {WS_}, s47 offen{SC}")
    a(f"buffer_store_dwordx2 v[{S0+2}:{S0+3}], v{T+1}, {WS_}, s47 offen offset:128{SC}")
    if not c.sync: a("s_waitcnt vmcnt(0)")
    st.stamp(1)
    return dict(T=T, VROW=VROW, VC=VC, X1V=X1V, C2=C2, RD=RD, XR=XR)

def ph2c(c, r):
    a = c.a; st = c.st
    T, VROW, VC, X1V, C2, RD, XR = r["T"], r["VROW"], r["VC"], r["X1V"], r["C2"], r["RD"], r["XR"]
    a("s_mul_i32 s47, s36, 18")
    a(f"v_add_u32 v{T+1}, s47, v{VC}")
    a(f"v_lshrrev_b32 v{T+2}, 1, v{T+1}")
    a(f"v_lshlrev_b32 v{T+2}, 6, v{T+2}")
    a(f"v_and_b32 v{T+1}, 1, v{T+1}")
    a(f"v_add_u32 v{T+2}, v{T+2}, v{T+1}")
    a(f"v_lshl_add_u32 v{T+2}, v{VROW}, 1, v{T+2}")
    a(f"v_lshlrev_b32 v{T+2}, 4, v{T+2}")
    a(f"v_mov_b32 v{T+1}, 0x7f000000")
    a(f"v_cndmask_b32 v{T+2}, v{T+1}, v{T+2}, s[50:51]")
    a("s_mul_i32 s47, s37, 36864")
    a(f"s_add_u32 s47, s47, {wso('H2')}")
    UA = RD + 16
    for d in range(4):
        a(f"v_lshlrev_b32 v{UA+2*d}, 16, v{C2+d}")
        a(f"v_and_b32 v{UA+2*d+1}, 0xffff0000, v{C2+d}")
        a(f"v_lshlrev_b32 v{UA+8+2*d}, 16, v{C2+4+d}")
        a(f"v_and_b32 v{UA+8+2*d+1}, 0xffff0000, v{C2+4+d}")
    def st_loads():
        for ps in range(2):
            for q in range(4):
                d = RD + (ps * 4 + q) * 2
                a(f"buffer_load_dwordx2 v[{d}:{d+1}], v{T}, {WS_}, s46 offen offset:{q*256 + ps*128}{SC}")
    poll_loads(c, st_loads, [RD + 2 * q for q in range(8)], T + 3)
    st.stamp()
    for ps in range(2):
        b = RD + ps * 8
        mean = T + 3; m2 = T + 4
        a(f"v_add_f32 v{mean}, v{b}, v{b+2}")
        a(f"v_add_f32 v{T+5}, v{b+4}, v{b+6}")
        a(f"v_add_f32 v{mean}, v{mean}, v{T+5}")
        a(f"v_mul_f32 v{mean}, 0x{np_f32(1.0/576):08x}, v{mean}")
        a(f"v_add_f32 v{m2}, v{b+1}, v{b+3}")
        a(f"v_add_f32 v{T+5}, v{b+5}, v{b+7}")
        a(f"v_add_f32 v{m2}, v{m2}, v{T+5}")
        a(f"v_mov_b32 v{T+6}, 0x{np_f32(144.0):08x}")
        for q in range(4):
            a(f"v_mul_f32 v{T+5}, 0x{np_f32(1.0/144):08x}, v{b+2*q}")
            a(f"v_sub_f32 v{T+5}, v{T+5}, v{mean}")
            a(f"v_mul_f32 v{T+5}, v{T+5}, v{T+5}")
            a(f"v_fmac_f32 v{m2}, v{T+5}, v{T+6}")
        ln_scalars(a, mean=mean, ssq=m2, rinv=m2, corr=T + 5, tmp=T + 6)
        XV = X1V + 8 * ps
        for e in range(8):
            a(f"v_sub_f32 v{XV+e}, v{XV+e}, v{mean}")
            a(f"v_fma_f32 v{XV+e}, v{XV+e}, v{m2}, v{T+5}")
            a(f"v_fma_f32 v{XV+e}, v{XV+e}, v{UA+e}, v{UA+8+e}")
        for d in range(4):
            a(f"v_cvt_pk_bf16_f32 v{XR+4*ps+d}, v{XV+2*d}, v{XV+2*d+1}")
        a(f"v_min_u32 v{XR+4*ps}, -2, v{XR+4*ps}")
        a(f"buffer_store_dwordx4 v[{XR+4*ps}:{XR+4*ps+3}], v{T+2}, {WS_}, s47 offen offset:{ps*512}{SC}")
    a("s_lshr_b32 s59, s37, 3")
    a("s_lshl_b32 s59, s59, 6")
    a(f"s_add_u32 s59, s59, {CB()}")
    signal(c, 59, T + 1)
    st.stamp()

SLOT3 = 36992
UPOFF = 18560
def ph3(c):
    a = c.a; st = c.st
    a("s_and_b32 s36, s2, 31")
    a("s_lshr_b32 s37, s2, 5")
    a("s_and_b32 s38, s24, 3")
    a("s_lshr_b32 s39, s24, 2")
    R = Regs(1)
    T = R.alloc(6); VD = R.alloc(5); VA = R.alloc(1); TRB = R.alloc(4); VST = R.alloc(1)
    ACT = R.alloc(64, 4); WB = R.alloc(24, 4); ACC = R.alloc(144, 4)
    vm = VmTracker(a)
    if c.sync:
        w3 = c.w3
        for j in range(5): a(f"v_mov_b32 v{VD+j}, v{VD3+j}")
        w3.VD = VD
        vm.issue(("D", 0), 5); vm.issue(("D", 1), 5)
    else:
        w3 = w3_setup(c, VD, T)
        for i in range(2):
            for f in w3.pieces(i, vm): f()
    a(f"v_and_b32 v{T}, 31, v0")
    a(f"v_lshrrev_b32 v{T+1}, 5, v0")
    a(f"v_lshl_add_u32 v{VA}, v{T}, 1, v{T+1}")
    a(f"v_lshlrev_b32 v{VA}, 4, v{VA}")
    a("s_lshl_b32 s43, s37, 3")
    a("s_add_u32 s43, s43, s24")
    a(f"s_mul_i32 s44, s43, {36*1024}")
    a(f"s_add_u32 s44, s44, {wso('H2')}")
    a("s_mov_b32 s47, s3")
    def dma_pieces(i): return w3.pieces(i, vm)
    def a_pieces(i):
        def piece(s):
            if s == 0:
                a(f"s_lshl_b32 s{52+i%4}, s47, 12")
                a(f"s_add_u32 s{52+i%4}, s{52+i%4}, s44")
                adv(a, 47, 9)
            r = ACT + ((i % 4) * 4 + s) * 4
            a(f"buffer_load_dwordx4 v[{r}:{r+3}], v{VA}, {WS_}, s{52+i%4} offen offset:{s*1024}")
            vm.issue(("A", i))
        return [(lambda s=s: piece(s)) for s in range(4)]
    for f in dma_pieces(2): f()
    if c.sync:
        warm_w2(c, 252)
        vm.issue("W")
    a(f"v_and_b32 v{T}, 3, v0")
    a(f"v_bfe_u32 v{T+1}, v0, 2, 2")
    a(f"v_bfe_u32 v{T+2}, v0, 4, 1")
    a(f"v_lshrrev_b32 v{T+3}, 5, v0")
    a(f"v_lshl_add_u32 v{T+1}, v{T+3}, 3, v{T+1}")
    a(f"v_mul_u32_u24 v{T+1}, 288, v{T+1}")
    a(f"v_lshrrev_b32 v{T+3}, 1, v{T}")
    a(f"v_mul_u32_u24 v{T+3}, {UPOFF}, v{T+3}")
    a(f"v_add_u32 v{T+1}, v{T+1}, v{T+3}")
    a(f"v_lshl_add_u32 v{T+1}, v{T+2}, 4, v{T+1}")
    a(f"v_and_b32 v{T}, 1, v{T}")
    a(f"v_lshl_add_u32 v{TRB}, v{T}, 3, v{T+1}")
    for k in range(1, 4):
        a(f"v_add_u32 v{TRB+k}, {k*SLOT3}, v{TRB}")
    a(f"v_bfe_u32 v{T}, v0, 4, 1")
    a(f"v_lshrrev_b32 v{T+1}, 5, v0")
    a(f"v_and_b32 v{T+2}, 15, v0")
    a(f"v_lshl_add_u32 v{T+2}, v{T}, 6, v{T+2}")
    a(f"v_lshl_add_u32 v{T+2}, v{T+1}, 4, v{T+2}")
    a(f"v_lshlrev_b32 v{VST}, 4, v{T+2}")
    a("s_lshl_b32 s45, s37, 6")
    a(f"s_add_u32 s45, s45, {CB()}")
    wait_ctr(c, 45, 32, T)
    st.stamp()
    for i in range(2):
        for f in a_pieces(i): f()
    pipe = TrPipe(a, WB, 6, 5)
    slows = []
    a("s_mul_i32 s50, s36, 9")
    a("s_lshl_b32 s51, s43, 11")
    a(f"s_add_u32 s51, s51, {wso('HH')}")
    def boundary(i):
        tags = [("A", i), ("D", i)]
        if 1 <= i < 6: tags.append(("D", i + 1))
        if i == 6: tags += [("A", 7), ("A", 8), ("D", 7), ("D", 8)]
        vm.wait(*tags)
        if False:
            sts = [i] if i < 6 else [6, 7, 8]
            regs = [ACT + ((q % 4) * 4 + s) * 4 for q in sts for s in range(4)]
            back = a.newlabel("P3B"); slow = a.newlabel("P3S")
            umax_chain(a, regs, T + 2)
            a(f"v_cmp_eq_u32 vcc, -1, v{T+2}")
            a("s_nop 1")
            a(f"s_cbranch_vccnz {slow}")
            a.label(back)
            slows.append((slow, back, sts, regs))
        a("s_barrier")
        if i in (0, 1): st.stamp(1)
    def spread(i):
        p = []
        if i + 3 < 9: p += dma_pieces(i + 3)
        if i < 4: p += a_pieces(i + 2)
        elif i == 4: p += a_pieces(6) + a_pieces(7)
        elif i == 5: p += a_pieces(8)
        return p
    def item(i, s, j):
        def fn(w):
            d = ACC + j * 16
            b = ACT + ((i % 4) * 4 + s) * 4
            cc = "0" if (i == 0 and s == 0) else f"v[{d}:{d+15}]"
            a(f"v_mfma_f32_32x32x16_bf16 v[{d}:{d+15}], v[{w}:{w+3}], v[{b}:{b+3}], {cc}")
        o = 16 * s * 288 + 32 * j
        return (TRB + i % 4, o, o + 4 * 288, fn)
    def epi_pieces(j):
        d = ACC + j * 16
        def quarter(half, e):
            g0 = d + 8 * half + e; u0 = g0 + 4
            for q in range(2): a(f"v_mul_f32 v{T+q}, {NLOG2E}, v{g0+q}")
            for q in range(2): a(f"v_exp_f32 v{T+q}, v{T+q}")
            for q in range(2): a(f"v_mul_f32 v{g0+q}, v{g0+q}, v{u0+q}")
            for q in range(2): a(f"v_add_f32 v{T+q}, 1.0, v{T+q}")
            for q in range(2): a(f"v_rcp_f32 v{T+q}, v{T+q}")
            a("s_nop 0")
            for q in range(2): a(f"v_mul_f32 v{g0+q}, v{g0+q}, v{T+q}")
            a(f"v_cvt_pk_bf16_f32 v{d+4+2*half+e//2}, v{g0}, v{g0+1}")
        def store():
            a(f"s_add_u32 s48, s50, {j}")
            a("s_lshr_b32 s49, s48, 1")
            a("s_lshl_b32 s49, s49, 17")
            a("s_and_b32 s48, s48, 1")
            a("s_lshl_b32 s48, s48, 9")
            a("s_add_u32 s49, s49, s48")
            a("s_add_u32 s49, s49, s51")
            a(f"buffer_store_dwordx4 v[{d+4}:{d+7}], v{VST}, {WS_}, s49 offen{SC}")
        return [(lambda h=h, e=e: quarter(h, e)) for h in range(2) for e in (0, 2)] + [store]
    stages = [[item(i, s, j) for s in range(4) for j in range(9)] for i in range(6)]
    stages.append([item(i, s, j) for j in range(9) for i in range(6, 9) for s in range(4)])
    def hooks(i):
        h = {}
        if i == 6 and c.sync:
            def setup4(): c.w4 = w4_setup(c, VD, T)
            h.setdefault(1, []).append(setup4)
            for q in range(5):
                h.setdefault(3 + 2 * q, []).append(lambda q=q: c.w4.pieces(0)[q]())
        if i == 6:
            for j in range(8):
                for q, f in enumerate(epi_pieces(j)):
                    h.setdefault((j + 1) * 12 + 3 + 2 * q, []).append(f)
        return h
    run_stages(a, pipe, stages, boundary, spread, hooks)
    st.stamp()
    a.nop(12)
    for f in epi_pieces(8): f()
    a("s_lshl_b32 s45, s37, 2")
    a("s_lshr_b32 s46, s36, 3")
    a("s_add_u32 s45, s45, s46")
    a("s_lshl_b32 s45, s45, 6")
    a(f"s_add_u32 s45, s45, {CC()}")
    signal(c, 45, T)
    st.stamp()
    if slows:
        over = a.newlabel("P3OVER")
        a(f"s_branch {over}")
        for slow, back, sts, regs in slows:
            a.label(slow)
            def reload(sts=sts):
                for q in sts:
                    for s in range(4):
                        r = ACT + ((q % 4) * 4 + s) * 4
                        a(f"buffer_load_dwordx4 v[{r}:{r+3}], v{VA}, {WS_}, s{52+q%4} offen offset:{s*1024}{SC}")
            poll_loads(c, reload, regs, T + 2)
            a(f"s_branch {back}")
        a.label(over)

SLOT4 = 36864
def ph4(c):
    a = c.a; st = c.st
    a("s_bfe_u32 s36, s2, 0x20001")
    a("s_and_b32 s37, s2, 1")
    a("s_lshl_b32 s37, s37, 3")
    a("s_bfe_u32 s38, s2, 0x30003")
    a("s_add_u32 s37, s37, s38")
    a("s_lshr_b32 s39, s2, 6")
    a("s_and_b32 s40, s24, 3")
    a("s_lshr_b32 s41, s24, 2")
    R = Regs(1)
    T = R.alloc(6); VD = R.alloc(5); VL16 = R.alloc(1); TRB = R.alloc(4)
    ACT = R.alloc(48, 4); WB = R.alloc(32, 4); ACC = R.alloc(72, 4)
    vm = VmTracker(a)
    if c.sync:
        w4 = c.w4
        assert w4.VD == VD
        vm.issue(("D", 0), 5)
    else:
        w4 = w4_setup(c, VD, T)
        for f in w4.pieces(0, vm): f()
    a(f"v_lshlrev_b32 v{VL16}, 4, v0")
    a("s_mul_i32 s46, s36, 36")
    a("s_mul_i32 s47, s41, 18")
    a("s_add_u32 s46, s46, s47")
    a("s_lshl_b32 s46, s46, 7")
    a("s_lshl_b32 s47, s37, 3")
    a("s_add_u32 s46, s46, s47")
    a("s_lshl_b32 s47, s40, 1")
    a("s_add_u32 s46, s46, s47")
    a("s_add_u32 s47, s46, s41")
    a("s_xor_b32 s48, s41, 1")
    a("s_add_u32 s48, s46, s48")
    a("s_lshl_b32 s47, s47, 10")
    a("s_lshl_b32 s48, s48, 10")
    a(f"s_add_u32 s47, s47, {wso('HH')}")
    a(f"s_add_u32 s48, s48, {wso('HH')}")
    a("s_mov_b32 s50, s25")
    def dma_pieces(i): return w4.pieces(i, vm)
    def a_pieces(i):
        def piece(s, t):
            if s == 0 and t == 0:
                a("s_lshl_b32 s51, s50, 18")
                adv(a, 50, 9)
            r = ACT + (((i % 3) * 2 + s) * 2 + t) * 4
            a(f"s_add_u32 s52, s{47+t}, s51")
            if s: a("s_add_u32 s52, s52, 131072")
            a(f"buffer_load_dwordx4 v[{r}:{r+3}], v{VL16}, {WS_}, s52 offen")
            vm.issue(("A", i))
        return [(lambda s=s, t=t: piece(s, t)) for s in range(2) for t in range(2)]
    for i in range(1, 3):
        for f in dma_pieces(i): f()
    a(f"v_lshrrev_b32 v{T}, 5, v0")
    a(f"v_lshlrev_b32 v{T}, 4, v{T}")
    a(f"v_bfe_u32 v{T+1}, v0, 2, 3")
    a(f"v_add_u32 v{T}, v{T}, v{T+1}")
    a(f"v_mul_u32_u24 v{T}, 288, v{T}")
    a(f"v_and_b32 v{T+1}, 3, v0")
    a(f"v_lshl_add_u32 v{T}, v{T+1}, 3, v{T}")
    a("s_mul_i32 s52, s41, 18432")
    a(f"v_add_u32 v{TRB}, s52, v{T}")
    for k in range(1, 4):
        a(f"v_add_u32 v{TRB+k}, {k*SLOT3}, v{TRB}")
    a("s_lshr_b32 s45, s37, 1")
    a("s_lshl_b32 s45, s45, 2")
    a("s_add_u32 s45, s45, s36")
    a("s_lshl_b32 s45, s45, 6")
    a(f"s_add_u32 s45, s45, {CC()}")
    a("s_lshr_b32 s53, s37, 1")
    a("s_lshl_b32 s53, s53, 6")
    a(f"s_add_u32 s53, s53, {CB()}")
    wait_ctr2(c, 45, 8, 53, 32, T)
    st.stamp()
    for i in range(2):
        for f in a_pieces(i): f()
    pipe = TrPipe(a, WB, 8, 6)
    def boundary(i):
        tags = [("A", i), ("D", i)]
        if 1 <= i < 8: tags.append(("D", i + 1))
        vm.wait(*tags)
        a("s_barrier")
        if i in (0, 1): st.stamp(1)
    def spread(i):
        p = []
        if i + 2 < 9: p += a_pieces(i + 2)
        if i + 3 < 9: p += dma_pieces(i + 3)
        return p
    stages = []
    for i in range(9):
        its = []
        for s in range(2):
            for t9 in range(9):
                def fn(w, i=i, s=s, t9=t9):
                    for t in range(2):
                        d = ACC + (t * 9 + t9) * 4
                        b = ACT + (((i % 3) * 2 + s) * 2 + t) * 4
                        cc = "0" if (i == 0 and s == 0) else f"v[{d}:{d+3}]"
                        a(f"v_mfma_f32_16x16x32_bf16 v[{d}:{d+3}], v[{w}:{w+3}], v[{b}:{b+3}], {cc}")
                o = 32 * s * 288 + 32 * t9
                its.append((TRB + (i + 1) % 4, o, o + 8 * 288, fn))
        stages.append(its)
    run_stages(a, pipe, stages, boundary, spread)
    st.stamp()
    a("s_lshl_b32 s46, s40, 1")
    a("s_add_u32 s47, s46, s41")
    a("s_xor_b32 s48, s47, 1")
    a("s_mul_i32 s49, s47, 9216")
    a("s_mul_i32 s48, s48, 9216")
    a(f"s_add_u32 s50, s49, {2*SLOT3}")
    a(f"s_add_u32 s48, s48, {2*SLOT3}")
    a(f"v_add_u32 v{T}, s50, v{VL16}")
    a(f"v_add_u32 v{T+1}, s48, v{VL16}")
    a.nop(4)
    for t9 in range(9):
        d = ACC + (9 + t9) * 4
        a(f"ds_write_b128 v{T}, v[{d}:{d+3}] offset:{t9*1024}")
    a("s_lshl_b32 s46, s37, 2")
    a("s_add_u32 s46, s46, s39")
    a("s_lshl_b32 s50, s46, 2")
    a("s_add_u32 s50, s50, s36")
    a("s_mul_i32 s50, s50, 73728")
    a("s_add_u32 s50, s50, s49")
    a(f"s_add_u32 s50, s50, {wso('PART')}")
    a("s_add_u32 s51, s50, 4096")
    a("s_add_u32 s52, s50, 8192")
    a("s_waitcnt lgkmcnt(0)")
    a("s_barrier")
    for t9 in range(9):
        d = ACC + (9 + t9) * 4
        a(f"ds_read_b128 v[{d}:{d+3}], v{T+1} offset:{t9*1024}")
    for t9 in range(9):
        d = ACC + t9 * 4; e = ACC + (9 + t9) * 4
        a(f"s_waitcnt lgkmcnt({8-t9})")
        for k in range(4):
            a(f"v_add_f32 v{d+k}, v{d+k}, v{e+k}")
        a(f"buffer_store_dwordx4 v[{d}:{d+3}], v{VL16}, {WS_}, s{50+t9//4} offen offset:{(t9%4)*1024}{SC}")
    a("s_lshl_b32 s45, s46, 6")
    a(f"s_add_u32 s45, s45, {CD()}")
    signal(c, 45, T)
    st.stamp()

def ph5(c):
    a = c.a; st = c.st
    a("s_bfe_u32 s36, s2, 0x20001")
    a("s_and_b32 s37, s2, 1")
    a("s_lshl_b32 s37, s37, 3")
    a("s_bfe_u32 s38, s2, 0x30003")
    a("s_add_u32 s37, s37, s38")
    a("s_lshr_b32 s39, s2, 6")
    a("s_lshl_b32 s46, s37, 2")
    a("s_add_u32 s46, s46, s39")
    R = Regs(1)
    T = R.alloc(6); VL16 = R.alloc(1); VO = R.alloc(3); VG = R.alloc(1)
    PB = R.alloc(48, 4); XR = R.alloc(6, 2); GB = R.alloc(12, 4)
    a(f"v_lshlrev_b32 v{VL16}, 4, v0")
    a("s_lshl_b32 s40, s37, 7")
    a("s_lshl_b32 s41, s36, 5")
    a("s_add_u32 s40, s40, s41")
    a(f"v_and_b32 v{T}, 15, v0")
    a(f"v_add_u32 v{T}, s40, v{T}")
    a(f"v_mul_u32_u24 v{T}, 1152, v{T}")
    a(f"v_lshrrev_b32 v{VG}, 4, v0")
    a(f"v_lshl_add_u32 v{T}, v{VG}, 3, v{T}")
    a(f"v_lshlrev_b32 v{VG}, 4, v{VG}")
    a("s_mul_i32 s41, s39, 288")
    a(f"s_mov_b32 s53, {wso('X1')}")
    for q in range(3):
        a(f"s_add_u32 s42, s24, {8*q}")
        a("s_cmp_ge_u32 s42, 9")
        a("s_cselect_b32 s43, 1, 0")
        a("s_mul_i32 s44, s43, 9")
        a("s_sub_u32 s44, s42, s44")
        a(f"s_mul_i32 s47, s43, {16*1152}")
        a("s_lshl_b32 s48, s44, 5")
        a("s_add_u32 s47, s47, s48")
        a("s_add_u32 s47, s47, s41")
        a("s_cmp_ge_u32 s42, 18")
        a("s_cselect_b32 s47, 0x7f000000, s47")
        a(f"v_add_u32 v{VO+q}, s47, v{T}")
        a(f"buffer_load_dwordx2 v[{XR+2*q}:{XR+2*q+1}], v{VO+q}, {WS_}, s53 offen{SC}")
        a("s_lshl_b32 s48, s44, 6")
        a("s_mul_i32 s49, s39, 576")
        a("s_add_u32 s48, s48, s49")
        a(f"s_add_u32 s48, s48, {wso('MOD') + 5*576*4}")
        a(f"buffer_load_dwordx4 v[{GB+4*q}:{GB+4*q+3}], v{VG}, {WS_}, s48 offen{SC}")
    a("s_lshl_b32 s45, s46, 6")
    a(f"s_add_u32 s45, s45, {CD()}")
    wait_ctr(c, 45, 4, T + 1)
    st.stamp()
    a("s_mul_i32 s50, s46, 294912")
    a("s_mul_i32 s51, s36, 18432")
    a("s_add_u32 s50, s50, s51")
    a("s_lshl_b32 s51, s24, 10")
    a("s_add_u32 s50, s50, s51")
    a(f"s_add_u32 s50, s50, {wso('PART')}")
    for q in range(3):
        for src in range(4):
            r = PB + (q * 4 + src) * 4
            a(f"s_add_u32 s51, s50, {src*73728 + q*8192}")
            a(f"buffer_load_dwordx4 v[{r}:{r+3}], v{VL16}, {WS_}, s51 offen{SC}")
    for q in range(3):
        a(f"s_waitcnt vmcnt({8-4*q+q})")
        p = PB + q * 16
        for e in range(4):
            a(f"v_add_f32 v{p+e}, v{p+e}, v{p+4+e}")
            a(f"v_add_f32 v{p+8+e}, v{p+8+e}, v{p+12+e}")
            a(f"v_add_f32 v{p+e}, v{p+e}, v{p+8+e}")
        for d in range(2):
            x = XR + 2 * q + d
            a(f"v_lshlrev_b32 v{T+1}, 16, v{x}")
            a(f"v_and_b32 v{T+2}, 0xffff0000, v{x}")
            a(f"v_fmac_f32 v{T+1}, v{GB+4*q+2*d}, v{p+2*d}")
            a(f"v_fmac_f32 v{T+2}, v{GB+4*q+2*d+1}, v{p+2*d+1}")
            a(f"v_cvt_pk_bf16_f32 v{x}, v{T+1}, v{T+2}")
        a(f"buffer_store_dwordx2 v[{XR+2*q}:{XR+2*q+1}], v{VO+q}, {OUT_}, 0 offen")

LDS_MEGA = 163840
def gen_split(a):
    def wrap(name, fn):
        a.begin_kernel(name)
        end = name.upper() + "_END"
        st = Stamper(a, name[:-7])
        c = Ctx(a, False, st)
        prologue(a, end)
        st.stamp()
        fn(c)
        st.finish(24, 1)
        a.label(end)
        a.end_kernel(name, vgpr=256, sgpr=102, grid=256, block=512, lds=LDS_MEGA)
    wrap("p12_kernel", ph12)
    wrap("p2w_kernel", lambda c: ph2w(c, True))
    wrap("p2c_kernel", lambda c: ph2c(c, ph2w(c, True)))
    wrap("p3_kernel", ph3)
    wrap("p4_kernel", ph4)
    wrap("p5_kernel", ph5)

def gen_mega(a):
    name = "pmega_kernel"
    a.begin_kernel(name)
    st = Stamper(a, "mega", wg=int(os.environ.get("STAMP_WG", "0")))
    st.level = int(os.environ.get('STAMP_LEVEL', '0'))
    c = Ctx(a, True, st)
    prologue(a, "MEGA_END")
    st.stamp()
    ph12(c)
    r = ph2w(c)
    ph2c(c, r)
    ph3(c)
    ph4(c)
    ph5(c)
    st.finish(24, 1)
    a.label("MEGA_END")
    a.end_kernel(name, vgpr=256, sgpr=102, grid=256, block=512, lds=LDS_MEGA)
```

```python
from fw import *
from gemm_common import *
from k_p0 import ln_scalars, np_f32
import os
NLOG2E = 0xbfb8aa3b
X_, WQKV_, W13_, W2_, OUT_, WS_, XH_ = "s[4:7]", "s[8:11]", "s[12:15]", "s[16:19]", "s[20:23]", "s[28:31]", "s[32:35]"
def wso(n): return WS[n][0]
WOF = 156
SC = " sc1"
DBG = os.environ.get("DBG", "").split(",")
_OPT = dict(warm="late", spr="40", early="1")
_OPT.update(dict(kv.split("=") for kv in os.environ.get("OPT", "").split(",") if kv))
def OPT(k): return _OPT[k]

class Ctx:
    def __init__(self, a, sync, st):
        self.a = a; self.sync = sync; self.st = st

def prologue(a, end):
    a("s_cmp_ge_u32 s2, 256")
    a(f"s_cbranch_scc1 {end}")
    a("s_load_dwordx4 s[36:39], s[0:1], 0")
    a("s_load_dwordx4 s[40:43], s[0:1], 32")
    a("s_load_dwordx2 s[44:45], s[0:1], 48")
    a("s_load_dwordx2 s[46:47], s[0:1], 72")
    a("s_load_dwordx2 s[48:49], s[0:1], 88")
    a("s_load_dwordx2 s[50:51], s[0:1], 16")
    a("s_load_dwordx4 s[52:55], s[0:1], 56")
    a("s_load_dwordx2 s[56:57], s[0:1], 80")
    a("v_lshrrev_b32 v1, 6, v0")
    a("v_and_b32 v0, 63, v0")
    a("v_readfirstlane_b32 s24, v1")
    a("s_waitcnt lgkmcnt(0)")
    srd_from_ptr(a, 4, 36, 2048 * 1152)
    srd_from_ptr(a, 8, 38, 576 * 3456)
    a("s_cmp_lt_u32 s24, 4")
    a("s_cselect_b32 s12, s40, s42")
    a("s_cselect_b32 s13, s41, s43")
    a("s_and_b32 s13, s13, 0xffff")
    a(f"s_mov_b32 s14, {576*9216}")
    a("s_mov_b32 s15, 0x00020000")
    srd_from_ptr(a, 16, 44, 4608 * 1152)
    srd_from_ptr(a, 20, 46, 2048 * 1152)
    srd_from_ptr(a, 28, 48, WS_END)
    srd_from_ptr(a, 60, 54, 576 * 6912)
    srd_from_ptr(a, 64, 52, 1152)
    srd_from_ptr(a, 68, 50, 576 * 1152)
    srd_from_ptr(a, 72, 56, 256)

def signal(c, soff, vt, pending=0):
    a = c.a
    a(f"s_waitcnt vmcnt({pending})")
    if not c.sync:
        return
    a("s_barrier")
    lab = a.newlabel("SIG")
    a("s_cmp_lg_u32 s24, 0")
    a(f"s_cbranch_scc1 {lab}")
    a(f"v_mov_b32 v{vt}, 1")
    a("s_mov_b64 exec, 1")
    a(f"buffer_atomic_add v{vt}, off, {WS_}, s{soff} sc1")
    a("s_mov_b64 exec, -1")
    a.label(lab)

def wait_ctr(c, soff, target, vt):
    a = c.a
    if not c.sync:
        return
    done = a.newlabel("WDONE"); loop = a.newlabel("WLOOP")
    a("s_cmp_lg_u32 s24, 0")
    a(f"s_cbranch_scc1 {done}")
    a("s_mov_b32 s56, 0")
    a.label(loop)
    a(f"buffer_load_dword v{vt}, off, {WS_}, s{soff} sc1")
    a("s_waitcnt vmcnt(0)")
    a(f"v_readfirstlane_b32 s57, v{vt}")
    a("s_add_u32 s56, s56, 1")
    a(f"s_cmp_ge_u32 s57, {target}")
    a(f"s_cbranch_scc1 {done}")
    a("s_cmp_gt_u32 s56, 0x400000")
    a(f"s_cbranch_scc1 {done}")
    a("s_sleep 1")
    a(f"s_branch {loop}")
    a.label(done)
    a("s_barrier")

def umax_chain(a, regs, tmp):
    regs = list(regs)
    if len(regs) == 1:
        a(f"v_mov_b32 v{tmp}, v{regs[0]}"); return
    if len(regs) == 2:
        a(f"v_max_u32 v{tmp}, v{regs[0]}, v{regs[1]}"); return
    a(f"v_max3_u32 v{tmp}, v{regs[0]}, v{regs[1]}, v{regs[2]}")
    regs = regs[3:]
    while regs:
        if len(regs) == 1:
            a(f"v_max_u32 v{tmp}, v{tmp}, v{regs[0]}"); regs = []
        else:
            a(f"v_max3_u32 v{tmp}, v{tmp}, v{regs[0]}, v{regs[1]}"); regs = regs[2:]

def poll_loads(c, issue, regs, tmp):
    a = c.a
    if not c.sync:
        issue(); a("s_waitcnt vmcnt(0)"); return
    loop = a.newlabel("PL"); done = a.newlabel("PLD")
    a("s_mov_b32 s56, 0")
    a.label(loop)
    issue()
    a("s_waitcnt vmcnt(0)")
    umax_chain(a, regs, tmp)
    a(f"v_cmp_eq_u32 vcc, -1, v{tmp}")
    a("s_add_u32 s56, s56, 1")
    a("s_nop 0")
    a(f"s_cbranch_vccz {done}")
    a("s_cmp_gt_u32 s56, 0x400000")
    a(f"s_cbranch_scc1 {done}")
    a("s_sleep 1")
    a(f"s_branch {loop}")
    a.label(done)

def arrive(c, soff, vt):
    a = c.a
    if not c.sync: return
    lab = a.newlabel("ARR")
    a("s_cmp_lg_u32 s24, 0")
    a(f"s_cbranch_scc1 {lab}")
    a(f"v_mov_b32 v{vt}, 1")
    a("s_mov_b64 exec, 1")
    a(f"buffer_atomic_add v{vt}, off, {WS_}, s{soff} sc1")
    a("s_mov_b64 exec, -1")
    a.label(lab)

def wait_ctr2(c, s1, t1, s2, t2, vt):
    a = c.a
    if not c.sync: return
    done = a.newlabel("WDONE"); loop = a.newlabel("WLOOP"); more = a.newlabel("WMORE")
    a("s_cmp_lg_u32 s24, 0")
    a(f"s_cbranch_scc1 {done}")
    a("s_mov_b32 s56, 0")
    a.label(loop)
    a(f"buffer_load_dword v{vt}, off, {WS_}, s{s1} sc1")
    a(f"buffer_load_dword v{vt+1}, off, {WS_}, s{s2} sc1")
    a("s_waitcnt vmcnt(0)")
    a(f"v_readfirstlane_b32 s57, v{vt}")
    a(f"v_readfirstlane_b32 s58, v{vt+1}")
    a("s_add_u32 s56, s56, 1")
    a(f"s_cmp_lt_u32 s57, {t1}")
    a(f"s_cbranch_scc1 {more}")
    a(f"s_cmp_ge_u32 s58, {t2}")
    a(f"s_cbranch_scc1 {done}")
    a.label(more)
    a("s_cmp_gt_u32 s56, 0x400000")
    a(f"s_cbranch_scc1 {done}")
    a("s_sleep 1")
    a(f"s_branch {loop}")
    a.label(done)
    a("s_barrier")

def prefill(c, B):
    a = c.a
    for i in range(4): a(f"v_mov_b32 v{B+8+i}, -1")
    a("s_mul_i32 s76, s37, 36864")
    a(f"s_add_u32 s77, s76, {wso('OF')}")
    a(f"s_add_u32 s78, s76, {wso('H2')}")
    a("s_mul_i32 s79, s36, 18")
    a("s_lshl_b32 s76, s24, 6")
    a(f"v_add_u32 v{B}, s76, v0")
    lab = a.newlabel("PF")
    for ps in range(2):
        if ps == 1:
            a("s_cmp_lg_u32 s24, 1")
            a(f"s_cbranch_scc1 {lab}")
            a(f"v_add_u32 v{B}, 512, v0")
        a(f"v_and_b32 v{B+1}, 31, v{B}")
        a(f"v_lshrrev_b32 v{B+2}, 5, v{B}")
        a(f"v_add_u32 v{B+2}, s79, v{B+2}")
        a(f"v_lshrrev_b32 v{B+3}, 4, v{B+1}")
        a(f"v_mul_u32_u24 v{B+3}, 1152, v{B+3}")
        a(f"v_lshl_add_u32 v{B+3}, v{B+2}, 4, v{B+3}")
        a(f"v_and_b32 v{B+4}, 15, v{B+1}")
        a(f"v_add_u32 v{B+3}, v{B+3}, v{B+4}")
        a(f"v_lshlrev_b32 v{B+3}, 4, v{B+3}")
        a(f"buffer_store_dwordx4 v[{B+8}:{B+11}], v{B+3}, {WS_}, s77 offen{SC}")
    a("s_lshl_b32 s76, s37, 10")
    a("s_lshl_b32 s77, s36, 8")
    a("s_add_u32 s76, s76, s77")
    a(f"s_add_u32 s76, s76, {wso('ST')}")
    a(f"v_lshlrev_b32 v{B+1}, 4, v0")
    a("s_mov_b64 exec, 0xffff")
    a(f"buffer_store_dwordx4 v[{B+8}:{B+11}], v{B+1}, {WS_}, s76 offen{SC}")
    a("s_mov_b64 exec, -1")
    a.label(lab)

def warm_w13(c, T):
    a = c.a
    a("s_lshr_b32 s76, s2, 5")
    a("s_lshl_b32 s76, s76, 2")
    a("s_and_b32 s77, s24, 3")
    a("s_add_u32 s76, s76, s77")
    a("s_mul_i32 s76, s76, 54")
    a(f"v_add_u32 v{T}, s76, v0")
    a(f"v_mul_u32_u24 v{T+1}, 21846, v{T}")
    a(f"v_lshrrev_b32 v{T+1}, 16, v{T+1}")
    a(f"v_mul_u32_u24 v{T+2}, 3, v{T+1}")
    a(f"v_sub_u32 v{T}, v{T}, v{T+2}")
    a(f"v_mul_u32_u24 v{T}, 142, v{T}")
    a(f"v_and_b32 v{T}, 0x1fc, v{T}")
    a(f"v_mul_u32_u24 v{T+1}, 9216, v{T+1}")
    a(f"v_add_u32 v{T}, v{T}, v{T+1}")
    a("s_and_b32 s76, s2, 31")
    a("s_mul_i32 s76, s76, 288")
    a("s_mov_b32 exec_hi, 0x3fffff")
    a(f"buffer_load_dword v155, v{T}, {W13_}, s76 offen")
    a("s_mov_b64 exec, -1")

def warm_w2(c, T):
    a = c.a
    a("s_bfe_u32 s56, s2, 0x30003")
    a("s_lshl_b32 s56, s56, 3")
    a("s_add_u32 s56, s56, s24")
    a("s_mul_i32 s56, s56, 54")
    a(f"v_add_u32 v{T}, s56, v0")
    a(f"v_mul_u32_u24 v{T+1}, 21846, v{T}")
    a(f"v_lshrrev_b32 v{T+1}, 16, v{T+1}")
    a(f"v_mul_u32_u24 v{T+2}, 3, v{T+1}")
    a(f"v_sub_u32 v{T}, v{T}, v{T+2}")
    a(f"v_mul_u32_u24 v{T}, 142, v{T}")
    a(f"v_and_b32 v{T}, 0x1fc, v{T}")
    a(f"v_mul_u32_u24 v{T+1}, 1152, v{T+1}")
    a(f"v_add_u32 v{T}, v{T}, v{T+1}")
    a("s_bfe_u32 s56, s2, 0x20001")
    a(f"s_mul_i32 s56, s56, {1152*1152}")
    a("s_lshr_b32 s57, s2, 6")
    a("s_mul_i32 s57, s57, 288")
    a("s_add_u32 s56, s56, s57")
    a("s_mov_b32 exec_hi, 0x3fffff")
    a(f"buffer_load_dword v{T+3}, v{T}, {W2_}, s56 offen")
    a("s_mov_b64 exec, -1")

def warm_code(c, T):
    a = c.a
    a("s_getpc_b64 s[76:77]")
    a.label("MEGA_PC")
    a("s_sub_u32 s76, s76, MEGA_PC-pmega_kernel")
    a("s_subb_u32 s77, s77, 0")
    a("s_lshl_b32 s78, s24, 13")
    a(f"v_lshlrev_b32 v{T}, 7, v0")
    a(f"v_add_u32 v{T}, s78, v{T}")
    a(f"v_min_u32 v{T}, MEGA_END-pmega_kernel, v{T}")
    a(f"global_load_dword v{T+1}, v{T}, s[76:77]")

def adv(a, r, n):
    a(f"s_add_u32 s{r}, s{r}, 1")
    a(f"s_cmp_ge_u32 s{r}, {n}")
    a(f"s_cselect_b32 s{r}, 0, s{r}")

QSLOT = 30720
NQS = 5
COEFOFF = NQS * QSLOT
QSTR = 1744
OSTR = 304
class Sprinkle:
    def __init__(self, a, q, period):
        self.a = a; self.q = list(q); self.period = period; self.n = 0; self.busy = False
    def __call__(self, s):
        self.a(s)
        if self.busy: return
        self.n += 1
        if self.q and self.n % self.period == 0 and "exec" not in s and "vcc" not in s and "s_cmp" not in s and "s_nop" not in s:
            self.busy = True; self.q.pop(0)(); self.busy = False
    def flush(self):
        while self.q: self.q.pop(0)()
    def __getattr__(self, k): return getattr(self.a, k)

H1OFF = 4 * 27648
SCR = H1OFF + 27648
def red_g(a, vals, tmp):
    for op in ("v_permlane16_swap_b32", "v_permlane32_swap_b32"):
        for i, v in enumerate(vals): a(f"v_mov_b32 v{tmp+i}, v{v}")
        a("s_nop 1")
        for i, v in enumerate(vals): a(f"{op} v{v}, v{tmp+i}")
        for i, v in enumerate(vals): a(f"v_add_f32 v{v}, v{v}, v{tmp+i}")

def ph12(c):
    a = c.a; st = c.st
    a("s_and_b32 s36, s2, 3")
    a("s_bfe_u32 s37, s2, 0x10002")
    a("s_lshl_b32 s37, s37, 5")
    a("s_lshr_b32 s38, s2, 3")
    a("s_add_u32 s37, s37, s38")
    R = Regs(1, 155)
    T = R.alloc(8)
    VD = R.alloc(4)
    VL16 = R.alloc(1)
    VOO = R.alloc(1)
    m0 = R.mark()
    XF = R.alloc(36, 4)
    DD = R.alloc(72, 2)
    CF = R.alloc(24, 4)
    VXA = R.alloc(1); STA = R.alloc(6)
    vm = VmTracker(a)
    if c.sync:
        phase0_loads(c, DD)
        warm_code(c, WOF + 30)
        vm.issue("M", 7)
    a(f"v_mov_b32 v{VOO}, {48*QSTR}")
    a(f"v_mov_b32 v{WOF}, 0x7f000000")
    a(f"v_lshlrev_b32 v{VL16}, 4, v0")
    a("s_mul_i32 s39, s24, 12")
    for jj in range(4):
        a(f"v_add_u32 v{T}, {64*jj}, v0")
        a(f"v_mul_u32_u24 v{T+1}, 3641, v{T}")
        a(f"v_lshrrev_b32 v{T+1}, 16, v{T+1}")
        a(f"v_mul_u32_u24 v{T+2}, 18, v{T+1}")
        a(f"v_sub_u32 v{T}, v{T}, v{T+2}")
        a(f"v_add_u32 v{T+1}, s39, v{T+1}")
        a(f"v_lshrrev_b32 v{T+2}, 5, v{T+1}")
        a(f"v_bfe_u32 v{T+3}, v{T+1}, 2, 2")
        a(f"v_bfe_u32 v{T+4}, v{T+1}, 4, 1")
        a(f"v_and_b32 v{T+1}, 3, v{T+1}")
        a(f"v_lshl_add_u32 v{T+1}, v{T+3}, 3, v{T+1}")
        a(f"v_lshl_add_u32 v{T+1}, v{T+4}, 2, v{T+1}")
        a(f"v_mul_u32_u24 v{T+1}, 3456, v{T+1}")
        a(f"v_mul_u32_u24 v{T+2}, 1152, v{T+2}")
        a(f"v_add_u32 v{T+1}, v{T+1}, v{T+2}")
        a(f"v_lshl_add_u32 v{VD+jj}, v{T}, 4, v{T+1}")
    a("s_mul_i32 s40, s24, 3456")
    a("s_mul_i32 s41, s36, 288")
    a("s_mul_i32 s42, s38, 57")
    a("s_lshr_b32 s42, s42, 9")
    a("s_mul_i32 s42, s42, 9")
    a("s_sub_u32 s42, s38, s42")
    a("s_mov_b32 s43, s42")
    def dma_pieces(k):
        slot = (k % 4) * 27648
        def piece(jj):
            if jj == 0:
                a(f"s_mul_i32 s44, s42, {32*3456}")
                a(f"s_add_u32 s44, s44, s41")
                if k >= 9: a(f"s_add_u32 s44, s44, {9*32*3456}")
                adv(a, 42, 9)
            a(f"s_add_u32 m0, s40, {slot + jj*1024}")
            a("s_mov_b64 exec, 0xffffff" if jj == 3 else "s_nop 0")
            a(f"buffer_load_dwordx4 v{VD+jj}, {WQKV_}, s44 offen lds")
            if jj == 3: a("s_mov_b64 exec, -1")
            vm.issue(("D", k))
        return [(lambda jj=jj: piece(jj)) for jj in range(4)]
    a("s_lshl_b32 s45, s37, 5")
    a("s_sub_u32 s45, s45, 16")
    a(f"v_and_b32 v{T}, 15, v0")
    a(f"v_add_u32 v{T}, s45, v{T}")
    a("s_mov_b32 s46, 1152")
    a(f"v_mul_lo_u32 v{T}, v{T}, s46")
    a(f"v_lshrrev_b32 v{T+1}, 4, v0")
    a(f"v_lshl_add_u32 v{VXA}, v{T+1}, 4, v{T}")
    a("s_lshl_b32 s46, s24, 6")
    a(f"s_add_u32 s47, s46, {9*64}")
    a("s_mul_i32 s48, s24, 576")
    a(f"s_add_u32 s48, s48, {8*64}")
    a("s_cmp_ge_u32 s24, 2")
    a("s_cselect_b32 s48, 0x7f000000, s48")
    def bulk():
        save = list(vm.ops)
        for q in range(3):
            for m in range(3):
                r = XF + (q * 3 + m) * 4
                a(f"v_add_u32 v{T+7}, s{46+q}, v{VXA}")
                if m: a(f"v_add_u32 v{T+7}, {m*16*1152}, v{T+7}")
                a(f"buffer_load_dwordx4 v[{r}:{r+3}], v{T+7}, {X_}, 0 offen")
                vm.issue("X")
        for k in range(0, 4):
            for f in dma_pieces(k): f()
        return save
    if c.sync:
        def bulk0():
            keep = list(vm.ops)
            bulk()
            vm.ops = keep
        phase0(c, DD, T, vm, bulk0)
        bulk_ops = []
        keep = list(vm.ops)
        class _Null:
            def __call__(self, s): pass
        vm.ops = keep + ["X"] * 9 + [("D", 0)] * 4 + [("D", 1)] * 4 + [("D", 2)] * 4 + [("D", 3)] * 4
    else:
        bulk()
    a(f"v_mov_b32 v{T}, 0x3f803f80")
    vm.wait("X")
    for m in range(3):
        first = True
        for q in range(3):
            for d in range(4):
                r = XF + (q * 3 + m) * 4 + d
                a(f"v_dot2_f32_bf16 v{STA+m}, v{r}, v{T}, " + ("0" if first else f"v{STA+m}"))
                first = False
    a.nop(3)
    red_g(a, [STA, STA + 1, STA + 2], T + 1)
    a(f"v_and_b32 v{T}, 15, v0")
    a(f"v_lshlrev_b32 v{T}, 5, v{T}")
    a(f"v_add_u32 v{T}, {SCR + 4096}, v{T}")
    a("s_lshl_b32 s45, s24, 2")
    a(f"v_add_u32 v{T+1}, s45, v{T}")
    def xchg(off):
        for m in range(3):
            a(f"ds_write_b32 v{T+1}, v{STA+m} offset:{off + m*512}")
        a("s_waitcnt lgkmcnt(0)")
        a("s_barrier")
        for m in range(3):
            a(f"ds_read_b128 v[{CF+8*m}:{CF+8*m+3}], v{T} offset:{off + m*512}")
            a(f"ds_read_b128 v[{CF+8*m+4}:{CF+8*m+7}], v{T} offset:{off + m*512 + 16}")
        a("s_waitcnt lgkmcnt(0)")
        for m in range(3):
            b = CF + 8 * m
            for e in range(4): a(f"v_add_f32 v{b+e}, v{b+e}, v{b+4+e}")
            a(f"v_add_f32 v{b}, v{b}, v{b+1}")
            a(f"v_add_f32 v{b+2}, v{b+2}, v{b+3}")
            a(f"v_add_f32 v{STA+m}, v{b}, v{b+2}")
    xchg(0)
    for m in range(3):
        a(f"v_mul_f32 v{STA+3+m}, 0x{np_f32(1.0/576):08x}, v{STA+m}")
        a(f"v_mov_b32 v{STA+m}, 0")
    def dpass(q):
        for m in range(3):
            for d in range(4):
                r = XF + (q * 3 + m) * 4 + d; o = DD + ((q * 3 + m) * 4 + d) * 2
                a(f"v_lshlrev_b32 v{o}, 16, v{r}")
                a(f"v_and_b32 v{o+1}, 0xffff0000, v{r}")
                a(f"v_sub_f32 v{o}, v{o}, v{STA+3+m}")
                a(f"v_sub_f32 v{o+1}, v{o+1}, v{STA+3+m}")
                a(f"v_fmac_f32 v{STA+m}, v{o}, v{o}")
                a(f"v_fmac_f32 v{STA+m}, v{o+1}, v{o+1}")
    dpass(0); dpass(1)
    lab = a.newlabel("P12_Q2")
    a("s_cmp_ge_u32 s24, 2")
    a(f"s_cbranch_scc1 {lab}")
    dpass(2)
    a.label(lab)
    red_g(a, [STA, STA + 1, STA + 2], T + 2)
    xchg(2048)
    for m in range(3):
        ln_scalars(a, mean=STA + 3 + m, ssq=STA + m, rinv=STA + m, corr=STA + 3 + m, tmp=T + 2)
    for i in range(36):
        m = (i // 4) % 3
        for h in range(2):
            a(f"v_fma_f32 v{DD+2*i+h}, v{DD+2*i+h}, v{STA+m}, v{STA+3+m}")
    st.stamp(1)
    if c.sync:
        wo_pack2(c)
        wait0(c, T + 2, 0, 72)
    st.stamp()
    a(f"v_lshrrev_b32 v{T}, 4, v0")
    a(f"v_lshlrev_b32 v{T}, 4, v{T}")
    for q in range(3):
        a(f"s_add_u32 s45, s{46+q}, {wso('MODB')}")
        a(f"buffer_load_dwordx4 v[{CF+8*q}:{CF+8*q+3}], v{T}, {WS_}, s45 offen offset:1152{SC}")
        a(f"buffer_load_dwordx4 v[{CF+8*q+4}:{CF+8*q+7}], v{T}, {WS_}, s45 offen{SC}")
        vm.issue(("C", q), 2)
    for q in range(3):
        vm.wait(("C", q))
        for d in range(4):
            a(f"v_lshlrev_b32 v{T}, 16, v{CF+8*q+d}")
            a(f"v_and_b32 v{T+1}, 0xffff0000, v{CF+8*q+d}")
            a(f"v_lshlrev_b32 v{T+2}, 16, v{CF+8*q+4+d}")
            a(f"v_and_b32 v{T+3}, 0xffff0000, v{CF+8*q+4+d}")
            for m in range(3):
                o = DD + ((q * 3 + m) * 4 + d) * 2
                a(f"v_fma_f32 v{o}, v{o}, v{T}, v{T+2}")
                a(f"v_fma_f32 v{o+1}, v{o+1}, v{T+1}, v{T+3}")
                a(f"v_cvt_pk_bf16_f32 v{XF+(q*3+m)*4+d}, v{o}, v{o+1}")
    R.release(m0)
    XF = R.alloc(36, 4)
    ACC = R.alloc(40, 4); WB = R.alloc(32, 4); AB = R.alloc(24, 4); TB = R.alloc(2); VH = R.alloc(1); VHB = R.alloc(1); VHW = R.alloc(1)
    a("s_mul_i32 s45, s24, 3072")
    a(f"v_add_u32 v{VHB}, {H1OFF}, v{VL16}")
    a(f"v_add_u32 v{VHW}, s45, v{VHB}")
    def h1_write(half):
        for m in range(3):
            r = XF + (half * 3 + m) * 4
            a(f"ds_write_b128 v{VHW}, v[{r}:{r+3}] offset:{m*1024}")
        lab = a.newlabel("P12_H1")
        a(f"s_cmp_lg_u32 s24, {half}")
        a(f"s_cbranch_scc1 {lab}")
        for m in range(3):
            r = XF + (6 + m) * 4
            a(f"ds_write_b128 v{VHB}, v[{r}:{r+3}] offset:{8*3072 + m*1024}")
        a.label(lab)
        a("s_waitcnt lgkmcnt(0)")
    h1_write(0)
    st.stamp(1)
    a(f"v_lshrrev_b32 v{T}, 2, v0")
    a(f"v_mul_u32_u24 v{T}, 288, v{T}")
    a(f"v_and_b32 v{T+1}, 3, v0")
    a(f"v_lshl_add_u32 v{T}, v{T+1}, 3, v{T}")
    a("s_cmp_ge_u32 s24, 3")
    a("s_cselect_b32 s49, 2, 1")
    a("s_cselect_b32 s50, 3, 0")
    a("s_sub_u32 s50, s24, s50")
    a("s_mul_i32 s50, s50, 3")
    a("s_sub_u32 s45, s24, 6")
    a("s_mul_i32 s45, s45, 5")
    a("s_cmp_ge_u32 s24, 6")
    a("s_cselect_b32 s49, 0, s49")
    a("s_cselect_b32 s50, s45, s50")
    a("s_mul_i32 s45, s49, 9216")
    a("s_lshl_b32 s46, s50, 5")
    a("s_add_u32 s45, s45, s46")
    a(f"v_add_u32 v{TB}, s45, v{T}")
    a(f"v_add_u32 v{TB+1}, {2*27648}, v{TB}")
    vm_save = list(vm.ops)
    labB = a.newlabel("P12_GB"); labE = a.newlabel("P12_GE")
    a("s_cmp_ge_u32 s24, 6")
    a(f"s_cbranch_scc1 {labB}")
    def gemm(NT, ms):
        lt = LTracker(a)
        vm.ops = list(vm_save)
        D = NT
        cnt = [0]; wreg = {}; pend = []
        def run(ks):
            items = [(k, n) for k in ks for n in range(NT)]
            def issue(idx):
                k, n = items[idx]
                if n == 0:
                    if "nodma" not in DBG or k < 4: vm.wait(("D", k))
                    if "nobar" not in DBG or k in (0, 9): a("s_barrier")
                    a("s_mul_i32 s45, s43, 3072")
                    adv(a, 43, 9)
                    a(f"v_add_u32 v{VH}, s45, v{VHB}")
                    for m in ms:
                        r = AB + ((k % 2) * 3 + m) * 4
                        lt.issue(("A", k), f"ds_read_b128 v[{r}:{r+3}], v{VH} offset:{m*1024}")
                    if 2 <= k and k + 2 < 18 and "nodma" not in DBG:
                        pend.extend(dma_pieces(k + 2))
                w = WB + 4 * (cnt[0] % 8); cnt[0] += 1
                wreg[(k, n)] = w
                sl = k % 4
                o = (sl % 2) * 27648 + n * 32
                lt.issue((k, n), f"ds_read_b64_tr_b16 v[{w}:{w+1}], v{TB+sl//2} offset:{o}")
                lt.issue((k, n), f"ds_read_b64_tr_b16 v[{w+2}:{w+3}], v{TB+sl//2} offset:{o + 16*288}")
            for idx in range(D): issue(idx)
            for idx, (k, n) in enumerate(items):
                if idx + D < len(items): issue(idx + D)
                lt.wait((k, n), ("A", k))
                w = wreg[(k, n)]
                for mi, m in enumerate(ms):
                    d = ACC + (n * len(ms) + mi) * 4; b = AB + ((k % 2) * 3 + m) * 4
                    cc = "0" if k == 0 else f"v[{d}:{d+3}]"
                    a(f"v_mfma_f32_16x16x32_bf16 v[{d}:{d+3}], v[{w}:{w+3}], v[{b}:{b+3}], {cc}")
                for _ in range(2 if NT == 3 else 1):
                    if pend: pend.pop(0)()
        run(range(0, 9))
        a("s_barrier")
        if c.sync and NT == 3:
            labZ = a.newlabel("P12_ARR2")
            a("s_cmp_lg_u32 s24, 0")
            a(f"s_cbranch_scc1 {labZ}")
            a(f"v_mov_b32 v{T}, 1")
            a("s_and_b32 s76, s2, 1")
            a("s_lshl_b32 s76, s76, 6")
            a("s_add_u32 s76, s76, 128")
            a("s_mov_b64 exec, 1")
            a(f"buffer_atomic_add v{T}, off, s[72:75], s76 sc1")
            a("s_mov_b64 exec, -1")
            a.label(labZ)
        h1_write(1)
        run(range(9, 18))
        assert not pend
        a("s_barrier")
        a.nop(4)
        a(f"v_and_b32 v{T}, 15, v0")
        a(f"v_mul_u32_u24 v{T}, {QSTR}, v{T}")
        a(f"v_lshrrev_b32 v{T+1}, 4, v0")
        a(f"v_lshl_add_u32 v{T}, v{T+1}, 4, v{T}")
        a("s_mul_i32 s45, s49, 576")
        a("s_lshl_b32 s46, s50, 6")
        a("s_add_u32 s45, s45, s46")
        a(f"v_add_u32 v{T}, s45, v{T}")
        for n in range(NT):
            if NT == 5 and n == 4:
                labS = a.newlabel("P12_S")
                a("s_cmp_eq_u32 s24, 7")
                a(f"s_cbranch_scc1 {labS}")
            for mi, m in enumerate(ms):
                d = ACC + (n * len(ms) + mi) * 4
                a(f"ds_write_b128 v{T}, v[{d}:{d+3}] offset:{m*16*QSTR + n*64}")
        if NT == 5: a.label(labS)
    gemm(3, [0, 1, 2])
    a(f"s_branch {labE}")
    a.label(labB)
    gemm(5, [1, 2])
    a.label(labE)
    if c.sync:
        wait0(c, T + 2, 128, 256)
        if OPT("warm") == "late": warm_w13(c, VD3)
    st.stamp()
    a = Sprinkle(c.a, wof_pieces(c, VL16), int(OPT('spr')))
    R.release(m0)
    Q = R.alloc(18, 2); KB = R.alloc(72, 2); LG = R.alloc(8, 2); O = R.alloc(18, 2); P = R.alloc(8, 2)
    VR = R.alloc(1); VQ = R.alloc(1); VK = R.alloc(1)
    a(f"v_lshrrev_b32 v{VR}, 4, v0")
    a("s_lshl_b32 s45, s24, 2")
    a(f"v_add_u32 v{VR}, s45, v{VR}")
    a(f"v_bfe_u32 v{T}, v0, 1, 3")
    a(f"v_mul_u32_u24 v{T}, 72, v{T}")
    a(f"v_mul_u32_u24 v{VQ}, {QSTR}, v{VR}")
    a(f"v_add_u32 v{VQ}, v{VQ}, v{T}")
    a(f"v_and_b32 v{T+1}, 1, v0")
    a(f"v_mul_u32_u24 v{T+2}, {8*QSTR}, v{T+1}")
    a(f"v_sub_u32 v{VK}, v{VQ}, v{T+2}")
    a(f"v_add_u32 v{VK}, {10*QSTR}, v{VK}")
    a("s_waitcnt lgkmcnt(0)")
    a("s_barrier")
    st.stamp(1)
    lt = LTracker(a)
    for i in range(9):
        lt.issue("q", f"ds_read_b64 v[{Q+2*i}:{Q+2*i+1}], v{VQ} offset:{16*QSTR + 8*i}")
    def rdrow(jj, part, i):
        dst = KB + 18 * jj + 2 * i
        lt.issue((part, jj, i), f"ds_read_b64 v[{dst}:{dst+1}], v{VK} offset:{(6-2*jj)*QSTR + part*576 + 8*i}")
    for i in range(9):
        for jj in range(4): rdrow(jj, 1, i)
    for i in range(9):
        lt.wait("q", (1, 3, i))
        for jj in range(4):
            k = KB + 18 * jj + 2 * i
            if i == 0:
                a(f"v_pk_mul_f32 v[{LG+2*jj}:{LG+2*jj+1}], v[{k}:{k+1}], v[{Q}:{Q+1}]")
            else:
                a(f"v_pk_fma_f32 v[{LG+2*jj}:{LG+2*jj+1}], v[{k}:{k+1}], v[{Q+2*i}:{Q+2*i+1}], v[{LG+2*jj}:{LG+2*jj+1}]")
        for jj in range(4): rdrow(jj, 2, i)
    for jj in range(4):
        a(f"v_add_f32 v{LG+2*jj}, v{LG+2*jj}, v{LG+2*jj+1}")
    labM = a.newlabel("P12_NOMASK")
    a.busy = True
    a("s_cmp_lg_u32 s37, 0")
    a(f"s_cbranch_scc1 {labM}")
    a(f"v_mov_b32 v{T}, 0x{np_f32(-1e9):08x}")
    a(f"v_lshlrev_b32 v{T+2}, 3, v{T+1}")
    for jj in range(4):
        a(f"v_add_u32 v{T+3}, {2*jj}, v{T+2}")
        a(f"v_cmp_le_u32 vcc, v{T+3}, v{VR}")
        a("s_nop 1")
        a(f"v_cndmask_b32 v{LG+2*jj}, v{T}, v{LG+2*jj}, vcc")
    a.label(labM)
    a.busy = False
    cs = np_f32(18 ** -0.5 * 1.4426950408889634)
    a(f"s_mov_b32 s45, 0x{cs:08x}")
    a(f"v_max3_f32 v{T}, v{LG}, v{LG+2}, v{LG+4}")
    a(f"v_max_f32 v{T}, v{T}, v{LG+6}")
    a("s_nop 1")
    a(f"v_max_f32_dpp v{T}, v{T}, v{T} quad_perm:[1,0,3,2] row_mask:0xf bank_mask:0xf")
    a(f"v_mul_f32 v{T}, s45, v{T}")
    for jj in range(4):
        a(f"v_fma_f32 v{LG+2*jj}, v{LG+2*jj}, s45, -v{T}")
    for jj in range(4):
        a(f"v_exp_f32 v{LG+2*jj}, v{LG+2*jj}")
    a("s_nop 0")
    a(f"v_add_f32 v{T}, v{LG}, v{LG+2}")
    a(f"v_add_f32 v{T+2}, v{LG+4}, v{LG+6}")
    a(f"v_add_f32 v{T}, v{T}, v{T+2}")
    a("s_nop 1")
    a(f"v_add_f32_dpp v{T}, v{T}, v{T} quad_perm:[1,0,3,2] row_mask:0xf bank_mask:0xf")
    a(f"v_rcp_f32 v{T}, v{T}")
    a("s_nop 0")
    for jj in range(4):
        a(f"v_mul_f32 v{P+2*jj}, v{LG+2*jj}, v{T}")
    a("s_waitcnt lgkmcnt(0)")
    st.stamp(1)
    for jj in range(4):
        for i in range(9):
            k = KB + 18 * jj + 2 * i
            if jj == 0:
                a(f"v_pk_mul_f32 v[{O+2*i}:{O+2*i+1}], v[{k}:{k+1}], v[{P}:{P+1}] op_sel_hi:[1,0]")
            else:
                a(f"v_pk_fma_f32 v[{O+2*i}:{O+2*i+1}], v[{k}:{k+1}], v[{P+2*jj}:{P+2*jj+1}], v[{O+2*i}:{O+2*i+1}] op_sel_hi:[1,0,1]")
    a("s_nop 1")
    for i in range(18):
        a(f"v_add_f32_dpp v{O+i}, v{O+i}, v{O+i} quad_perm:[1,0,3,2] row_mask:0xf bank_mask:0xf")
    OOFF = 48 * QSTR
    a(f"v_mul_u32_u24 v{T+2}, {OSTR}, v{VR}")
    a(f"v_bfe_u32 v{T}, v0, 1, 3")
    a(f"v_mul_u32_u24 v{T}, 36, v{T}")
    a(f"v_add3_u32 v{T}, v{T}, v{T+2}, v{VOO}")
    for i in range(9):
        a(f"v_cvt_pk_bf16_f32 v{O+2*i}, v{O+2*i}, v{O+2*i+1}")
        a(f"ds_write_b32 v{T}, v{O+2*i} offset:{4*i}")
    spr = a
    a = c.a
    a("s_lshl_b32 s45, s24, 6")
    a(f"v_add_u32 v{T}, s45, v0")
    a("s_mul_i32 s46, s36, 18")
    a("s_mul_i32 s47, s37, 36864")
    a(f"s_add_u32 s47, s47, {wso('OF')}")
    a("s_waitcnt lgkmcnt(0)")
    a("s_barrier")
    st.stamp()
    for ps in range(2):
        if ps == 1:
            labP = a.newlabel("P12_PUB")
            a("s_cmp_lg_u32 s24, 0")
            a(f"s_cbranch_scc1 {labP}")
            a(f"v_add_u32 v{T}, 512, v0")
        a(f"v_and_b32 v{T+1}, 31, v{T}")
        a(f"v_lshrrev_b32 v{T+2}, 5, v{T}")
        a(f"v_mul_u32_u24 v{T+3}, {OSTR}, v{T+1}")
        a(f"v_lshl_add_u32 v{T+3}, v{T+2}, 4, v{T+3}")
        a(f"v_add_u32 v{T+3}, v{T+3}, v{VOO}")
        a(f"ds_read_b128 v[{Q}:{Q+3}], v{T+3}")
        a(f"v_add_u32 v{T+2}, s46, v{T+2}")
        a(f"v_lshrrev_b32 v{T+3}, 4, v{T+1}")
        a(f"v_mul_u32_u24 v{T+3}, 1152, v{T+3}")
        a(f"v_lshl_add_u32 v{T+3}, v{T+2}, 4, v{T+3}")
        a(f"v_and_b32 v{T+1}, 15, v{T+1}")
        a(f"v_add_u32 v{T+3}, v{T+3}, v{T+1}")
        a(f"v_lshlrev_b32 v{T+3}, 4, v{T+3}")
        a("s_waitcnt lgkmcnt(0)")
        a(f"v_min_u32 v{Q}, -2, v{Q}")
        a(f"buffer_store_dwordx4 v[{Q}:{Q+3}], v{T+3}, {WS_}, s47 offen{SC}")
    a.label(labP)
    spr.flush()
    a("s_barrier")
    st.stamp()

def phase0_loads(c, B):
    a = c.a
    a("s_lshr_b32 s76, s2, 5")
    a("s_lshl_b32 s76, s76, 3")
    a("s_and_b32 s77, s2, 7")
    a("s_add_u32 s76, s76, s77")
    a("s_lshl_b32 s76, s76, 2")
    a("s_bfe_u32 s77, s2, 0x20003")
    a("s_add_u32 s80, s76, s77")
    a("s_lshl_b32 s76, s24, 6")
    a(f"v_add_u32 v{B}, s76, v0")
    a(f"v_and_b32 v{B+1}, 1, v{B}")
    a(f"v_lshrrev_b32 v{B+2}, 1, v{B}")
    a(f"v_mul_u32_u24 v{B+3}, 6912, v{B+2}")
    a(f"v_lshl_add_u32 v{B+3}, v{B+1}, 4, v{B+3}")
    a("s_lshl_b32 s76, s80, 5")
    a("s_cmp_ge_u32 s80, 216")
    a("s_cselect_b32 s76, 0x7f000000, s76")
    a(f"v_add_u32 v{B+3}, s76, v{B+3}")
    a(f"v_lshlrev_b32 v{B+4}, 1, v{B+2}")
    W = B + 8; C = B + 20
    a(f"s_mov_b32 s77, {256*6912}")
    a(f"s_mov_b32 s78, {512*6912}")
    for q, so in enumerate(("0", "s77", "s78")):
        a(f"buffer_load_dwordx4 v[{W+4*q}:{W+4*q+3}], v{B+3}, s[60:63], {so} offen")
        a(f"buffer_load_ushort v{C+q}, v{B+4}, s[64:67], 0 offen offset:{512*q}")

def phase0(c, B, T, vm, bulk0):
    a = c.a
    W = B + 8; C = B + 20
    a("s_waitcnt vmcnt(0)")
    c.st.stamp(1)
    A8 = B + 44
    for q in range(3):
        cc = C + q
        a(f"v_lshlrev_b32 v{cc}, 16, v{cc}")
        a(f"v_mul_f32 v{T}, {NLOG2E}, v{cc}")
        a(f"v_exp_f32 v{T}, v{T}")
        a("s_nop 0")
        a(f"v_add_f32 v{T}, 1.0, v{T}")
        a(f"v_rcp_f32 v{T}, v{T}")
        a("s_nop 0")
        a(f"v_mul_f32 v{cc}, v{cc}, v{T}")
        bf16_round(a, cc, cc)
        for d in range(4):
            w = W + 4 * q + d
            a(f"v_lshlrev_b32 v{T}, 16, v{w}")
            a(f"v_and_b32 v{T+1}, 0xffff0000, v{w}")
            if q == 0:
                a(f"v_mul_f32 v{A8+2*d}, v{cc}, v{T}")
                a(f"v_mul_f32 v{A8+2*d+1}, v{cc}, v{T+1}")
            else:
                a(f"v_fmac_f32 v{A8+2*d}, v{cc}, v{T}")
                a(f"v_fmac_f32 v{A8+2*d+1}, v{cc}, v{T+1}")
    for rr in (2, 4, 8):
        for e in range(8):
            a(f"v_add_f32_dpp v{A8+e}, v{A8+e}, v{A8+e} row_ror:{rr} row_mask:0xf bank_mask:0xf")
    a(f"v_lshrrev_b32 v{T}, 4, v{B}")
    a(f"v_lshlrev_b32 v{T}, 6, v{T}")
    a(f"v_lshl_add_u32 v{T}, v{B+1}, 5, v{T}")
    a(f"v_add_u32 v{T}, {SCR}, v{T}")
    a(f"ds_write_b128 v{T}, v[{A8}:{A8+3}]")
    a(f"ds_write_b128 v{T}, v[{A8+4}:{A8+7}] offset:16")
    a("s_waitcnt lgkmcnt(0)")
    a("s_barrier")
    labF = a.newlabel("P0_FIN"); labW = a.newlabel("P0_WO")
    a("s_cmp_lg_u32 s24, 0")
    a(f"s_cbranch_scc1 {labW}")
    a(f"v_and_b32 v{T}, 15, v0")
    a(f"v_lshrrev_b32 v{T+1}, 4, v0")
    a(f"v_lshlrev_b32 v{T+1}, 9, v{T+1}")
    a(f"v_lshl_add_u32 v{T+1}, v{T}, 2, v{T+1}")
    a(f"v_add_u32 v{T+1}, {SCR}, v{T+1}")
    for e in range(8):
        a(f"ds_read_b32 v{A8+e}, v{T+1} offset:{64*e}")
    a("s_waitcnt lgkmcnt(0)")
    for e in range(1, 8):
        a(f"v_add_f32 v{A8}, v{A8}, v{A8+e}")
    red_g(a, [A8], T + 1)
    bf16_round(a, A8, A8)
    a("s_mul_i32 s76, s80, 1821")
    a("s_lshr_b32 s76, s76, 16")
    a("s_mov_b32 s77, 0")
    a("s_cmp_eq_u32 s76, 1")
    a("s_cselect_b32 s77, 1.0, s77")
    a("s_cmp_eq_u32 s76, 4")
    a("s_cselect_b32 s77, 1.0, s77")
    a(f"v_add_f32 v{A8}, s77, v{A8}")
    bf16_round(a, A8, A8)
    a(f"v_lshlrev_b32 v{T+1}, 2, v{T}")
    a(f"v_lshlrev_b32 v{T}, 1, v{T}")
    a(f"v_lshrrev_b32 v{A8+1}, 16, v{A8}")
    a("s_lshl_b32 s76, s80, 6")
    a(f"s_add_u32 s76, s76, {wso('MOD')}")
    a("s_lshl_b32 s77, s80, 5")
    a(f"s_add_u32 s77, s77, {wso('MODB')}")
    a("s_cmp_ge_u32 s80, 216")
    a("s_cselect_b32 s76, 0x7f000000, s76")
    a("s_cselect_b32 s77, 0x7f000000, s77")
    a(f"v_mov_b32 v{A8+2}, 0")
    a("s_lshl_b32 s78, s2, 6")
    a("s_mov_b64 exec, 0xffff")
    a(f"buffer_store_short v{A8+1}, v{T}, {WS_}, s77 offen{SC}")
    a(f"buffer_store_dword v{A8}, v{T+1}, {WS_}, s76 offen{SC}")
    a(f"buffer_store_dword v{A8+2}, v{T+1}, {WS_}, s78 offen{SC}")
    a(f"v_mov_b32 v{T}, 1")
    a("s_and_b32 s76, s2, 1")
    a("s_lshl_b32 s76, s76, 6")
    a("s_add_u32 s77, s76, 128")
    a("s_cmp_ge_u32 s80, 72")
    a("s_cselect_b32 s76, 0x7f000000, s76")
    a("s_mov_b64 exec, 1")
    a("s_waitcnt vmcnt(0)")
    a(f"buffer_atomic_add v{T}, off, s[72:75], s76 sc1")
    a("s_mov_b64 exec, -1")
    bulk0()
    a(f"s_branch {labF}")
    a.label(labW)
    bulk0()
    a("s_cmp_lt_u32 s24, 5")
    a(f"s_cbranch_scc1 {labF}")
    P = WOF
    a("s_mul_i32 s76, s2, 162")
    a("s_sub_u32 s76, s76, 320")
    a(f"v_add_u32 v{P}, s76, v{B}")
    a(f"v_lshrrev_b32 v{P+1}, 6, v{P}")
    a(f"v_mul_u32_u24 v{P+2}, 3641, v{P+1}")
    a(f"v_lshrrev_b32 v{P+2}, 16, v{P+2}")
    a(f"v_mul_u32_u24 v{P+3}, 18, v{P+2}")
    a(f"v_sub_u32 v{P+3}, v{P+1}, v{P+3}")
    a(f"v_and_b32 v{P+4}, 15, v{P}")
    a(f"v_lshl_add_u32 v{P+4}, v{P+2}, 4, v{P+4}")
    a(f"v_bfe_u32 v{P+5}, v{P}, 4, 2")
    a(f"v_lshlrev_b32 v{P+5}, 3, v{P+5}")
    a(f"v_lshl_add_u32 v{P+5}, v{P+3}, 5, v{P+5}")
    a(f"v_mul_u32_u24 v{P+5}, 1152, v{P+5}")
    a(f"v_lshl_add_u32 v{P+5}, v{P+4}, 1, v{P+5}")
    a(f"v_lshlrev_b32 v{P}, 4, v{P}")
    a(f"v_cmp_gt_u32 vcc, 482, v{B}")
    a(f"v_mov_b32 v{P+1}, 0x7f000000")
    a("s_nop 0")
    a(f"v_cndmask_b32 v{P}, v{P+1}, v{P}, vcc")
    a(f"v_cndmask_b32 v{P+5}, v{P+1}, v{P+5}, vcc")
    a("s_mov_b32 s77, 4608")
    for j in range(8):
        so = "0" if j < 4 else "s77"
        a(f"buffer_load_ushort v{P+8+j}, v{P+5}, s[68:71], {so} offen offset:{(j%4)*1152}")
    a.label(labF)
    prefill(c, B + 24)
    if OPT("warm") == "early": warm_w13(c, WOF + 24)
    c.st.stamp(1)

def wo_pack2(c):
    a = c.a; P = WOF
    lab = a.newlabel("P0_W2")
    a("s_cmp_lt_u32 s24, 5")
    a(f"s_cbranch_scc1 {lab}")
    a("s_waitcnt vmcnt(0)")
    for d in range(4):
        a(f"v_lshl_or_b32 v{P+16+d}, v{P+9+2*d}, 16, v{P+8+2*d}")
    a(f"s_mov_b32 s77, {wso('WOP')}")
    a(f"buffer_store_dwordx4 v[{P+16}:{P+19}], v{P}, {WS_}, s77 offen{SC}")
    a.label(lab)

def wo_pack3(c):
    a = c.a; P = WOF
    lab = a.newlabel("P0_W3")
    a("s_cmp_lt_u32 s24, 5")
    a(f"s_cbranch_scc1 {lab}")
    a(f"v_mov_b32 v{P+1}, 1")
    a("s_and_b32 s76, s2, 1")
    a("s_lshl_b32 s76, s76, 6")
    a("s_add_u32 s76, s76, 128")
    a("s_mov_b64 exec, 1")
    a("s_waitcnt vmcnt(0)")
    a(f"buffer_atomic_add v{P+1}, off, s[72:75], s76 sc1")
    a("s_mov_b64 exec, -1")
    a.label(lab)

def wait0(c, vt, base, target):
    a = c.a
    done = a.newlabel("W0DONE"); loop = a.newlabel("W0LOOP")
    a("s_cmp_lg_u32 s24, 0")
    a(f"s_cbranch_scc1 {done}")
    a("s_mov_b32 s56, 0")
    a(f"v_and_b32 v{vt+1}, 1, v0")
    a(f"v_lshlrev_b32 v{vt+1}, 6, v{vt+1}")
    a.label(loop)
    a(f"buffer_load_dword v{vt}, v{vt+1}, s[72:75], 0 offen offset:{base} sc1")
    a("s_waitcnt vmcnt(0)")
    a(f"v_readlane_b32 s76, v{vt}, 0")
    a(f"v_readlane_b32 s77, v{vt}, 1")
    a("s_add_u32 s56, s56, 1")
    a("s_add_u32 s76, s76, s77")
    a(f"s_cmp_ge_u32 s76, {target}")
    a(f"s_cbranch_scc1 {done}")
    a("s_cmp_gt_u32 s56, 0x400000")
    a(f"s_cbranch_scc1 {done}")
    a("s_sleep 4")
    a(f"s_branch {loop}")
    a.label(done)
    a("s_barrier")

def wof_pieces(c, VL16):
    a = c.a
    def setup():
        a("s_and_b32 s52, s2, 3")
        a("s_mul_i32 s53, s52, 9")
        a("s_and_b32 s54, s24, 1")
        a("s_mul_i32 s54, s54, 5")
        a("s_add_u32 s53, s53, s54")
        a("s_mul_i32 s53, s53, 18")
        a("s_lshr_b32 s54, s24, 1")
        a("s_mul_i32 s54, s54, 5")
        a("s_add_u32 s53, s53, s54")
        a("s_lshl_b32 s53, s53, 10")
        a(f"s_add_u32 s53, s53, {wso('WOP')}")
    def piece(i, u):
        if u == 0:
            a(f"s_add_u32 s55, s54, {i}")
            a("s_cmp_ge_u32 s55, 18")
            a("s_cselect_b32 s55, 0x7f000000, s53")
        r = WOF + (i * 5 + u) * 4
        a(f"s_add_u32 s52, s55, {u*18432 + i*1024}")
        a(f"buffer_load_dwordx4 v[{r}:{r+3}], v{VL16}, {WS_}, s52 offen")
    return [setup] + [(lambda i=i, u=u: piece(i, u)) for i in range(5) for u in range(5)]

def wof_loads(c, VL16):
    for f in wof_pieces(c, VL16): f()

SLOT3 = 36992
UPOFF = 18560
VD3 = 150
REDOFF = 2 * SLOT3
class WStream:
    def __init__(self, c, sg, srd, ldw, slot_of):
        self.c = c; self.sg = sg; self.srd = srd; self.ldw = ldw; self.slot_of = slot_of; self.VD = None
    def pieces(self, i, vm=None):
        a = self.c.a; g = self.sg
        slot = self.slot_of(i) * SLOT3
        def piece(j):
            if j == 0:
                a(f"s_mul_i32 s{g+3}, s{g+2}, {64*self.ldw}")
                a(f"s_add_u32 s{g+3}, s{g+3}, s{g+1}")
                adv(a, g + 2, 9)
            a(f"s_add_u32 m0, s{g}, {slot + j*1024}")
            a("s_mov_b64 exec, 0xffffffff" if j == 4 else "s_nop 0")
            a(f"buffer_load_dwordx4 v{self.VD+j}, {self.srd}, s{g+3} offen lds")
            if j == 4: a("s_mov_b64 exec, -1")
            if vm is not None: vm.issue(("D", i))
        return [(lambda j=j: piece(j)) for j in range(5)]

def w3_setup(c, VD, T):
    a = c.a
    w = WStream(c, 76, W13_, 9216, lambda i: i % 4); w.VD = VD
    dma_voffsets(a, VD, 5, 0, 9216, T)
    a("s_and_b32 s79, s24, 3")
    a("s_lshr_b32 s76, s24, 2")
    a(f"s_mul_i32 s76, s76, {UPOFF}")
    a("s_mul_i32 s77, s79, 4608")
    a("s_add_u32 s76, s76, s77")
    a(f"s_mul_i32 s77, s79, {16*9216}")
    a("s_and_b32 s79, s2, 31")
    a("s_mul_i32 s78, s79, 288")
    a("s_add_u32 s77, s77, s78")
    a("s_lshr_b32 s78, s79, 3")
    a("s_lshl_b32 s78, s78, 1")
    a("s_lshr_b32 s79, s2, 5")
    a("s_add_u32 s78, s78, s79")
    a("s_cmp_ge_u32 s78, 9")
    a("s_cselect_b32 s79, 9, 0")
    a("s_sub_u32 s78, s78, s79")
    a("s_mov_b32 s3, s78")
    return w

def w4_setup(c, VD, T):
    a = c.a
    w = WStream(c, 80, W2_, 1152, lambda i: (i + 1) % 4); w.VD = VD
    dma_voffsets(a, VD, 5, 0, 1152, T)
    a("s_lshr_b32 s83, s24, 2")
    a("s_mul_i32 s80, s83, 18432")
    a("s_and_b32 s82, s24, 3")
    a("s_mul_i32 s81, s82, 4608")
    a("s_add_u32 s80, s80, s81")
    a("s_bfe_u32 s81, s2, 0x20001")
    a("s_mul_i32 s81, s81, 1152")
    a("s_mul_i32 s83, s83, 576")
    a("s_add_u32 s81, s81, s83")
    a("s_lshl_b32 s82, s82, 4")
    a("s_add_u32 s81, s81, s82")
    a("s_mul_i32 s81, s81, 1152")
    a("s_lshr_b32 s82, s2, 6")
    a("s_mul_i32 s83, s82, 288")
    a("s_add_u32 s81, s81, s83")
    a("s_lshl_b32 s82, s82, 1")
    a("s_bfe_u32 s83, s2, 0x30003")
    a("s_add_u32 s82, s82, s83")
    a("s_cmp_ge_u32 s82, 9")
    a("s_cselect_b32 s83, 9, 0")
    a("s_sub_u32 s82, s82, s83")
    a("s_mov_b32 s25, s82")
    return w

RSTR = 656
def ph2w(c, standalone=False):
    a = c.a; st = c.st
    a("s_and_b32 s36, s2, 3")
    a("s_bfe_u32 s37, s2, 0x10002")
    a("s_lshl_b32 s37, s37, 5")
    a("s_lshr_b32 s38, s2, 3")
    a("s_add_u32 s37, s37, s38")
    a("s_lshr_b32 s39, s24, 1")
    a("s_and_b32 s40, s24, 1")
    R = Regs(1, VD3)
    T = R.alloc(8)
    VL16 = R.alloc(1)
    AF = R.alloc(40, 4); ACC = R.alloc(40, 4)
    XR = R.alloc(8, 4); GA = R.alloc(8, 4); C2 = R.alloc(8, 4); X1V = R.alloc(16, 2)
    VC = R.alloc(1); VX = R.alloc(1); VROW = R.alloc(1); VRD = R.alloc(2)
    a(f"v_lshlrev_b32 v{VL16}, 4, v0")
    if standalone:
        wof_loads(c, VL16)
    a(f"v_and_b32 v{VC}, 31, v0")
    a(f"v_lshrrev_b32 v{VROW}, 5, v0")
    a("s_lshl_b32 s41, s24, 1")
    a(f"v_add_u32 v{VROW}, s41, v{VROW}")
    a("s_lshl_b32 s41, s37, 5")
    a(f"v_add_u32 v{T}, s41, v{VROW}")
    a(f"v_mul_u32_u24 v{VX}, 1152, v{T}")
    a("s_mul_i32 s42, s36, 288")
    a(f"v_lshl_add_u32 v{VX}, v{VC}, 4, v{VX}")
    a(f"v_add_u32 v{VX}, s42, v{VX}")
    a(f"v_cmp_gt_u32 vcc, 18, v{VC}")
    a(f"v_mov_b32 v{T+1}, 0x7f000000")
    a("s_nop 0")
    a(f"v_cndmask_b32 v{VX}, v{T+1}, v{VX}, vcc")
    a("s_mov_b64 s[50:51], vcc")
    a(f"s_mov_b32 s43, {16*1152}")
    a(f"buffer_load_dwordx4 v[{XR}:{XR+3}], v{VX}, {X_}, 0 offen")
    a(f"buffer_load_dwordx4 v[{XR+4}:{XR+7}], v{VX}, {X_}, s43 offen")
    a(f"v_lshlrev_b32 v{T+1}, 5, v{VC}")
    a("s_mul_i32 s44, s36, 576")
    a(f"s_add_u32 s44, s44, {wso('MOD') + 2*576*4}")
    a(f"buffer_load_dwordx4 v[{GA}:{GA+3}], v{T+1}, {WS_}, s44 offen{SC}")
    a(f"buffer_load_dwordx4 v[{GA+4}:{GA+7}], v{T+1}, {WS_}, s44 offen offset:16{SC}")
    a(f"v_lshlrev_b32 v{T+1}, 4, v{VC}")
    a(f"s_add_u32 s44, s42, {wso('MODB') + 4*1152}")
    a(f"buffer_load_dwordx4 v[{C2}:{C2+3}], v{T+1}, {WS_}, s44 offen{SC}")
    a(f"s_add_u32 s44, s42, {wso('MODB') + 3*1152}")
    a(f"buffer_load_dwordx4 v[{C2+4}:{C2+7}], v{T+1}, {WS_}, s44 offen{SC}")
    st.stamp()
    if c.sync:
        c.w3 = w3_setup(c, VD3, T)
    a("s_mul_i32 s46, s37, 36864")
    a(f"s_add_u32 s46, s46, {wso('OF')}")
    a("s_mul_i32 s47, s39, 5")
    def act_loads():
        for i in range(5):
            a(f"s_add_u32 s48, s47, {i}")
            a("s_min_u32 s48, s48, 17")
            a("s_lshl_b32 s48, s48, 10")
            a("s_add_u32 s48, s48, s46")
            a("s_add_u32 s49, s48, 18432")
            for mt in range(2):
                r = AF + (i * 2 + mt) * 4
                a(f"buffer_load_dwordx4 v[{r}:{r+3}], v{VL16}, {WS_}, s{48+mt} offen{SC}")
    poll_loads(c, act_loads, [AF + 4 * q for q in range(10)], T)
    st.stamp(1)
    a(f"v_and_b32 v{T}, 15, v0")
    a(f"v_mul_u32_u24 v{T}, {RSTR}, v{T}")
    a(f"v_lshrrev_b32 v{T+1}, 4, v0")
    a(f"v_lshl_add_u32 v{T}, v{T+1}, 4, v{T}")
    a(f"s_mul_i32 s48, s39, {32*RSTR}")
    a("s_mul_i32 s49, s40, 320")
    a("s_add_u32 s48, s48, s49")
    a(f"s_add_u32 s48, s48, {REDOFF}")
    a(f"v_add_u32 v{T}, s48, v{T}")
    a(f"v_mul_u32_u24 v{VRD}, {RSTR}, v{VROW}")
    a(f"v_min_u32 v{T+1}, 17, v{VC}")
    a(f"v_lshl_add_u32 v{VRD}, v{T+1}, 5, v{VRD}")
    a(f"v_add_u32 v{VRD}, {REDOFF}, v{VRD}")
    a(f"v_add_u32 v{VRD+1}, {16*RSTR}, v{VRD}")
    early = (c.w3.pieces(0) + c.w3.pieces(1)) if (c.sync and OPT("early") == "1") else []
    for i in range(5):
        for u in range(5):
            w = WOF + (i * 5 + u) * 4
            for mt in range(2):
                d = ACC + (mt * 5 + u) * 4; b = AF + (i * 2 + mt) * 4
                cc = "0" if i == 0 else f"v[{d}:{d+3}]"
                a(f"v_mfma_f32_16x16x32_bf16 v[{d}:{d+3}], v[{w}:{w+3}], v[{b}:{b+3}], {cc}")
            if early and u % 2 == 1: early.pop(0)()
    assert not early
    a.nop(8)
    for mt in range(2):
        for u in range(5):
            d = ACC + (mt * 5 + u) * 4
            a(f"ds_write_b128 v{T}, v[{d}:{d+3}] offset:{mt*16*RSTR + u*64}")
    a("s_waitcnt lgkmcnt(0)")
    a("s_barrier")
    st.stamp(1)
    RD = AF
    S0 = ACC
    RD2 = ACC + 8
    a(f"s_mov_b32 s52, {wso('X1')}")
    a(f"s_add_u32 s53, s52, {16*1152}")
    def red32(vals, tmp):
        for ctl in ("quad_perm:[1,0,3,2]", "quad_perm:[2,3,0,1]", "row_half_mirror", "row_mirror"):
            a("s_nop 0")
            for v in vals:
                a(f"v_add_f32_dpp v{v}, v{v}, v{v} {ctl} row_mask:0xf bank_mask:0xf")
        for i, v in enumerate(vals):
            a(f"v_mov_b32 v{tmp+i}, v{v}")
        a("s_nop 1")
        for i, v in enumerate(vals):
            a(f"v_permlane16_swap_b32 v{v}, v{tmp+i}")
        for i, v in enumerate(vals):
            a(f"v_add_f32 v{v}, v{v}, v{tmp+i}")
    for ps in range(2):
        B = RD if ps == 0 else RD2
        for kq in range(4):
            for hf in range(2):
                r = B + (kq * 2 + hf) * 4
                a(f"ds_read_b128 v[{r}:{r+3}], v{VRD+ps} offset:{kq*32*RSTR + hf*16}")
    for ps in range(2):
        B = RD if ps == 0 else RD2
        a(f"s_waitcnt lgkmcnt({8 if ps == 0 else 0})")
        for e in range(8):
            a(f"v_add_f32 v{B+e}, v{B+e}, v{B+8+e}")
            a(f"v_add_f32 v{B+16+e}, v{B+16+e}, v{B+24+e}")
            a(f"v_add_f32 v{B+e}, v{B+e}, v{B+16+e}")
        XV = X1V + 8 * ps
        for d in range(4):
            x = XR + 4 * ps + d
            a(f"v_lshlrev_b32 v{T+1}, 16, v{x}")
            a(f"v_and_b32 v{T+2}, 0xffff0000, v{x}")
            a(f"v_fmac_f32 v{T+1}, v{GA+2*d}, v{B+2*d}")
            a(f"v_fmac_f32 v{T+2}, v{GA+2*d+1}, v{B+2*d+1}")
            a(f"v_cvt_pk_bf16_f32 v{x}, v{T+1}, v{T+2}")
            a(f"v_lshlrev_b32 v{XV+2*d}, 16, v{x}")
            a(f"v_and_b32 v{XV+2*d+1}, 0xffff0000, v{x}")
        a(f"buffer_store_dwordx4 v[{XR+4*ps}:{XR+4*ps+3}], v{VX}, {WS_}, s{52+ps} offen{SC}")
        sm = S0 + 2 * ps
        a(f"v_add_f32 v{sm}, v{XV}, v{XV+1}")
        for e in range(2, 8):
            a(f"v_add_f32 v{sm}, v{sm}, v{XV+e}")
        a(f"v_cndmask_b32 v{sm}, 0, v{sm}, s[50:51]")
    red32([S0, S0 + 2], T + 1)
    for ps in range(2):
        XV = X1V + 8 * ps; sm = S0 + 2 * ps; m2 = sm + 1
        a(f"v_mul_f32 v{T+2}, 0x{np_f32(1.0/144):08x}, v{sm}")
        a(f"v_sub_f32 v{T+1}, v{XV}, v{T+2}")
        a(f"v_mul_f32 v{m2}, v{T+1}, v{T+1}")
        for e in range(1, 8):
            a(f"v_sub_f32 v{T+1}, v{XV+e}, v{T+2}")
            a(f"v_fmac_f32 v{m2}, v{T+1}, v{T+1}")
        a(f"v_cndmask_b32 v{m2}, 0, v{m2}, s[50:51]")
    red32([S0 + 1, S0 + 3], T + 1)
    a("s_lshl_b32 s46, s37, 10")
    a(f"s_add_u32 s46, s46, {wso('ST')}")
    a("s_lshl_b32 s47, s36, 8")
    a("s_add_u32 s47, s47, s46")
    a(f"v_lshlrev_b32 v{T}, 3, v{VROW}")
    a(f"v_cmp_eq_u32 vcc, 0, v{VC}")
    a(f"v_mov_b32 v{T+1}, 0x7f000000")
    a("s_nop 0")
    a(f"v_cndmask_b32 v{T+1}, v{T+1}, v{T}, vcc")
    a(f"v_min_u32 v{S0}, -2, v{S0}")
    a(f"v_min_u32 v{S0+2}, -2, v{S0+2}")
    a(f"buffer_store_dwordx2 v[{S0}:{S0+1}], v{T+1}, {WS_}, s47 offen{SC}")
    a(f"buffer_store_dwordx2 v[{S0+2}:{S0+3}], v{T+1}, {WS_}, s47 offen offset:128{SC}")
    if not c.sync: a("s_waitcnt vmcnt(0)")
    st.stamp(1)
    return dict(T=T, VROW=VROW, VC=VC, X1V=X1V, C2=C2, RD=RD, XR=XR)

def ph2c(c, r):
    a = c.a; st = c.st
    T, VROW, VC, X1V, C2, RD, XR = r["T"], r["VROW"], r["VC"], r["X1V"], r["C2"], r["RD"], r["XR"]
    a("s_mul_i32 s47, s36, 18")
    a(f"v_add_u32 v{T+1}, s47, v{VC}")
    a(f"v_lshrrev_b32 v{T+2}, 1, v{T+1}")
    a(f"v_lshlrev_b32 v{T+2}, 6, v{T+2}")
    a(f"v_and_b32 v{T+1}, 1, v{T+1}")
    a(f"v_add_u32 v{T+2}, v{T+2}, v{T+1}")
    a(f"v_lshl_add_u32 v{T+2}, v{VROW}, 1, v{T+2}")
    a(f"v_lshlrev_b32 v{T+2}, 4, v{T+2}")
    a(f"v_mov_b32 v{T+1}, 0x7f000000")
    a(f"v_cndmask_b32 v{T+2}, v{T+1}, v{T+2}, s[50:51]")
    a("s_mul_i32 s47, s37, 36864")
    a(f"s_add_u32 s47, s47, {wso('H2')}")
    UA = RD + 16
    for d in range(4):
        a(f"v_lshlrev_b32 v{UA+2*d}, 16, v{C2+d}")
        a(f"v_and_b32 v{UA+2*d+1}, 0xffff0000, v{C2+d}")
        a(f"v_lshlrev_b32 v{UA+8+2*d}, 16, v{C2+4+d}")
        a(f"v_and_b32 v{UA+8+2*d+1}, 0xffff0000, v{C2+4+d}")
    def st_loads():
        for ps in range(2):
            for q in range(4):
                d = RD + (ps * 4 + q) * 2
                a(f"buffer_load_dwordx2 v[{d}:{d+1}], v{T}, {WS_}, s46 offen offset:{q*256 + ps*128}{SC}")
    poll_loads(c, st_loads, [RD + 2 * q for q in range(8)], T + 3)
    st.stamp()
    for ps in range(2):
        b = RD + ps * 8
        mean = T + 3; m2 = T + 4
        a(f"v_add_f32 v{mean}, v{b}, v{b+2}")
        a(f"v_add_f32 v{T+5}, v{b+4}, v{b+6}")
        a(f"v_add_f32 v{mean}, v{mean}, v{T+5}")
        a(f"v_mul_f32 v{mean}, 0x{np_f32(1.0/576):08x}, v{mean}")
        a(f"v_add_f32 v{m2}, v{b+1}, v{b+3}")
        a(f"v_add_f32 v{T+5}, v{b+5}, v{b+7}")
        a(f"v_add_f32 v{m2}, v{m2}, v{T+5}")
        a(f"v_mov_b32 v{T+6}, 0x{np_f32(144.0):08x}")
        for q in range(4):
            a(f"v_mul_f32 v{T+5}, 0x{np_f32(1.0/144):08x}, v{b+2*q}")
            a(f"v_sub_f32 v{T+5}, v{T+5}, v{mean}")
            a(f"v_mul_f32 v{T+5}, v{T+5}, v{T+5}")
            a(f"v_fmac_f32 v{m2}, v{T+5}, v{T+6}")
        ln_scalars(a, mean=mean, ssq=m2, rinv=m2, corr=T + 5, tmp=T + 6)
        XV = X1V + 8 * ps
        for e in range(8):
            a(f"v_sub_f32 v{XV+e}, v{XV+e}, v{mean}")
            a(f"v_fma_f32 v{XV+e}, v{XV+e}, v{m2}, v{T+5}")
            a(f"v_fma_f32 v{XV+e}, v{XV+e}, v{UA+e}, v{UA+8+e}")
        for d in range(4):
            a(f"v_cvt_pk_bf16_f32 v{XR+4*ps+d}, v{XV+2*d}, v{XV+2*d+1}")
        a(f"v_min_u32 v{XR+4*ps}, -2, v{XR+4*ps}")
        a(f"buffer_store_dwordx4 v[{XR+4*ps}:{XR+4*ps+3}], v{T+2}, {WS_}, s47 offen offset:{ps*512}{SC}")
    a("s_lshr_b32 s59, s37, 3")
    a("s_lshl_b32 s59, s59, 6")
    a(f"s_add_u32 s59, s59, {CB()}")
    signal(c, 59, T + 1)
    st.stamp()

SLOT3 = 36992
UPOFF = 18560
def ph3(c):
    a = c.a; st = c.st
    a("s_and_b32 s36, s2, 31")
    a("s_lshr_b32 s37, s2, 5")
    a("s_and_b32 s38, s24, 3")
    a("s_lshr_b32 s39, s24, 2")
    R = Regs(1)
    T = R.alloc(6); VD = R.alloc(5); VA = R.alloc(1); TRB = R.alloc(4); VST = R.alloc(1)
    ACT = R.alloc(64, 4); WB = R.alloc(24, 4); ACC = R.alloc(144, 4)
    vm = VmTracker(a)
    if c.sync:
        w3 = c.w3
        for j in range(5): a(f"v_mov_b32 v{VD+j}, v{VD3+j}")
        w3.VD = VD
        if OPT("early") == "1":
            vm.issue(("D", 0), 5); vm.issue(("D", 1), 5)
        else:
            for i in range(2):
                for f in w3.pieces(i, vm): f()
    else:
        w3 = w3_setup(c, VD, T)
        for i in range(2):
            for f in w3.pieces(i, vm): f()
    a(f"v_and_b32 v{T}, 31, v0")
    a(f"v_lshrrev_b32 v{T+1}, 5, v0")
    a(f"v_lshl_add_u32 v{VA}, v{T}, 1, v{T+1}")
    a(f"v_lshlrev_b32 v{VA}, 4, v{VA}")
    a("s_lshl_b32 s43, s37, 3")
    a("s_add_u32 s43, s43, s24")
    a(f"s_mul_i32 s44, s43, {36*1024}")
    a(f"s_add_u32 s44, s44, {wso('H2')}")
    a("s_mov_b32 s47, s3")
    def dma_pieces(i): return w3.pieces(i, vm)
    def a_pieces(i):
        def piece(s):
            if s == 0:
                a(f"s_lshl_b32 s{52+i%4}, s47, 12")
                a(f"s_add_u32 s{52+i%4}, s{52+i%4}, s44")
                adv(a, 47, 9)
            r = ACT + ((i % 4) * 4 + s) * 4
            a(f"buffer_load_dwordx4 v[{r}:{r+3}], v{VA}, {WS_}, s{52+i%4} offen offset:{s*1024}")
            vm.issue(("A", i))
        return [(lambda s=s: piece(s)) for s in range(4)]
    for f in dma_pieces(2): f()
    if c.sync:
        warm_w2(c, 252)
        vm.issue("W")
    a(f"v_and_b32 v{T}, 3, v0")
    a(f"v_bfe_u32 v{T+1}, v0, 2, 2")
    a(f"v_bfe_u32 v{T+2}, v0, 4, 1")
    a(f"v_lshrrev_b32 v{T+3}, 5, v0")
    a(f"v_lshl_add_u32 v{T+1}, v{T+3}, 3, v{T+1}")
    a(f"v_mul_u32_u24 v{T+1}, 288, v{T+1}")
    a(f"v_lshrrev_b32 v{T+3}, 1, v{T}")
    a(f"v_mul_u32_u24 v{T+3}, {UPOFF}, v{T+3}")
    a(f"v_add_u32 v{T+1}, v{T+1}, v{T+3}")
    a(f"v_lshl_add_u32 v{T+1}, v{T+2}, 4, v{T+1}")
    a(f"v_and_b32 v{T}, 1, v{T}")
    a(f"v_lshl_add_u32 v{TRB}, v{T}, 3, v{T+1}")
    for k in range(1, 4):
        a(f"v_add_u32 v{TRB+k}, {k*SLOT3}, v{TRB}")
    a(f"v_bfe_u32 v{T}, v0, 4, 1")
    a(f"v_lshrrev_b32 v{T+1}, 5, v0")
    a(f"v_and_b32 v{T+2}, 15, v0")
    a(f"v_lshl_add_u32 v{T+2}, v{T}, 6, v{T+2}")
    a(f"v_lshl_add_u32 v{T+2}, v{T+1}, 4, v{T+2}")
    a(f"v_lshlrev_b32 v{VST}, 4, v{T+2}")
    a("s_lshl_b32 s45, s37, 6")
    a(f"s_add_u32 s45, s45, {CB()}")
    wait_ctr(c, 45, 32, T)
    st.stamp()
    for i in range(2):
        for f in a_pieces(i): f()
    pipe = TrPipe(a, WB, 6, 5)
    slows = []
    a("s_mul_i32 s50, s36, 9")
    a("s_lshl_b32 s51, s43, 11")
    a(f"s_add_u32 s51, s51, {wso('HH')}")
    def boundary(i):
        tags = [("A", i), ("D", i)]
        if 1 <= i < 6: tags.append(("D", i + 1))
        if i == 6: tags += [("A", 7), ("A", 8), ("D", 7), ("D", 8)]
        vm.wait(*tags)
        if False:
            sts = [i] if i < 6 else [6, 7, 8]
            regs = [ACT + ((q % 4) * 4 + s) * 4 for q in sts for s in range(4)]
            back = a.newlabel("P3B"); slow = a.newlabel("P3S")
            umax_chain(a, regs, T + 2)
            a(f"v_cmp_eq_u32 vcc, -1, v{T+2}")
            a("s_nop 1")
            a(f"s_cbranch_vccnz {slow}")
            a.label(back)
            slows.append((slow, back, sts, regs))
        a("s_barrier")
        if i in (0, 1): st.stamp(1)
    def spread(i):
        p = []
        if i + 3 < 9: p += dma_pieces(i + 3)
        if i < 4: p += a_pieces(i + 2)
        elif i == 4: p += a_pieces(6) + a_pieces(7)
        elif i == 5: p += a_pieces(8)
        return p
    def item(i, s, j):
        def fn(w):
            d = ACC + j * 16
            b = ACT + ((i % 4) * 4 + s) * 4
            cc = "0" if (i == 0 and s == 0) else f"v[{d}:{d+15}]"
            a(f"v_mfma_f32_32x32x16_bf16 v[{d}:{d+15}], v[{w}:{w+3}], v[{b}:{b+3}], {cc}")
        o = 16 * s * 288 + 32 * j
        return (TRB + i % 4, o, o + 4 * 288, fn)
    def epi_pieces(j):
        d = ACC + j * 16
        def quarter(half, e):
            g0 = d + 8 * half + e; u0 = g0 + 4
            for q in range(2): a(f"v_mul_f32 v{T+q}, {NLOG2E}, v{g0+q}")
            for q in range(2): a(f"v_exp_f32 v{T+q}, v{T+q}")
            for q in range(2): a(f"v_mul_f32 v{g0+q}, v{g0+q}, v{u0+q}")
            for q in range(2): a(f"v_add_f32 v{T+q}, 1.0, v{T+q}")
            for q in range(2): a(f"v_rcp_f32 v{T+q}, v{T+q}")
            a("s_nop 0")
            for q in range(2): a(f"v_mul_f32 v{g0+q}, v{g0+q}, v{T+q}")
            a(f"v_cvt_pk_bf16_f32 v{d+4+2*half+e//2}, v{g0}, v{g0+1}")
        def store():
            a(f"s_add_u32 s48, s50, {j}")
            a("s_lshr_b32 s49, s48, 1")
            a("s_lshl_b32 s49, s49, 17")
            a("s_and_b32 s48, s48, 1")
            a("s_lshl_b32 s48, s48, 9")
            a("s_add_u32 s49, s49, s48")
            a("s_add_u32 s49, s49, s51")
            a(f"buffer_store_dwordx4 v[{d+4}:{d+7}], v{VST}, {WS_}, s49 offen{SC}")
        return [(lambda h=h, e=e: quarter(h, e)) for h in range(2) for e in (0, 2)] + [store]
    stages = [[item(i, s, j) for s in range(4) for j in range(9)] for i in range(6)]
    stages.append([item(i, s, j) for j in range(9) for i in range(6, 9) for s in range(4)])
    def hooks(i):
        h = {}
        if i == 6 and c.sync:
            def setup4(): c.w4 = w4_setup(c, VD, T)
            h.setdefault(1, []).append(setup4)
            for q in range(5):
                h.setdefault(3 + 2 * q, []).append(lambda q=q: c.w4.pieces(0)[q]())
        if i == 6:
            for j in range(8):
                for q, f in enumerate(epi_pieces(j)):
                    h.setdefault((j + 1) * 12 + 3 + 2 * q, []).append(f)
        return h
    run_stages(a, pipe, stages, boundary, spread, hooks)
    st.stamp()
    a.nop(12)
    for f in epi_pieces(8): f()
    a("s_lshl_b32 s45, s37, 2")
    a("s_lshr_b32 s46, s36, 3")
    a("s_add_u32 s45, s45, s46")
    a("s_lshl_b32 s45, s45, 6")
    a(f"s_add_u32 s45, s45, {CC()}")
    signal(c, 45, T)
    st.stamp()
    if slows:
        over = a.newlabel("P3OVER")
        a(f"s_branch {over}")
        for slow, back, sts, regs in slows:
            a.label(slow)
            def reload(sts=sts):
                for q in sts:
                    for s in range(4):
                        r = ACT + ((q % 4) * 4 + s) * 4
                        a(f"buffer_load_dwordx4 v[{r}:{r+3}], v{VA}, {WS_}, s{52+q%4} offen offset:{s*1024}{SC}")
            poll_loads(c, reload, regs, T + 2)
            a(f"s_branch {back}")
        a.label(over)

SLOT4 = 36864
def ph4(c):
    a = c.a; st = c.st
    a("s_bfe_u32 s36, s2, 0x20001")
    a("s_and_b32 s37, s2, 1")
    a("s_lshl_b32 s37, s37, 3")
    a("s_bfe_u32 s38, s2, 0x30003")
    a("s_add_u32 s37, s37, s38")
    a("s_lshr_b32 s39, s2, 6")
    a("s_and_b32 s40, s24, 3")
    a("s_lshr_b32 s41, s24, 2")
    R = Regs(1)
    T = R.alloc(6); VD = R.alloc(5); VL16 = R.alloc(1); TRB = R.alloc(4)
    ACT = R.alloc(48, 4); WB = R.alloc(32, 4); ACC = R.alloc(72, 4)
    vm = VmTracker(a)
    if c.sync:
        w4 = c.w4
        assert w4.VD == VD
        vm.issue(("D", 0), 5)
    else:
        w4 = w4_setup(c, VD, T)
        for f in w4.pieces(0, vm): f()
    a(f"v_lshlrev_b32 v{VL16}, 4, v0")
    a("s_mul_i32 s46, s36, 36")
    a("s_mul_i32 s47, s41, 18")
    a("s_add_u32 s46, s46, s47")
    a("s_lshl_b32 s46, s46, 7")
    a("s_lshl_b32 s47, s37, 3")
    a("s_add_u32 s46, s46, s47")
    a("s_lshl_b32 s47, s40, 1")
    a("s_add_u32 s46, s46, s47")
    a("s_add_u32 s47, s46, s41")
    a("s_xor_b32 s48, s41, 1")
    a("s_add_u32 s48, s46, s48")
    a("s_lshl_b32 s47, s47, 10")
    a("s_lshl_b32 s48, s48, 10")
    a(f"s_add_u32 s47, s47, {wso('HH')}")
    a(f"s_add_u32 s48, s48, {wso('HH')}")
    a("s_mov_b32 s50, s25")
    def dma_pieces(i): return w4.pieces(i, vm)
    def a_pieces(i):
        def piece(s, t):
            if s == 0 and t == 0:
                a("s_lshl_b32 s51, s50, 18")
                adv(a, 50, 9)
            r = ACT + (((i % 3) * 2 + s) * 2 + t) * 4
            a(f"s_add_u32 s52, s{47+t}, s51")
            if s: a("s_add_u32 s52, s52, 131072")
            a(f"buffer_load_dwordx4 v[{r}:{r+3}], v{VL16}, {WS_}, s52 offen")
            vm.issue(("A", i))
        return [(lambda s=s, t=t: piece(s, t)) for s in range(2) for t in range(2)]
    for i in range(1, 3):
        for f in dma_pieces(i): f()
    a(f"v_lshrrev_b32 v{T}, 5, v0")
    a(f"v_lshlrev_b32 v{T}, 4, v{T}")
    a(f"v_bfe_u32 v{T+1}, v0, 2, 3")
    a(f"v_add_u32 v{T}, v{T}, v{T+1}")
    a(f"v_mul_u32_u24 v{T}, 288, v{T}")
    a(f"v_and_b32 v{T+1}, 3, v0")
    a(f"v_lshl_add_u32 v{T}, v{T+1}, 3, v{T}")
    a("s_mul_i32 s52, s41, 18432")
    a(f"v_add_u32 v{TRB}, s52, v{T}")
    for k in range(1, 4):
        a(f"v_add_u32 v{TRB+k}, {k*SLOT3}, v{TRB}")
    a("s_lshr_b32 s45, s37, 1")
    a("s_lshl_b32 s45, s45, 2")
    a("s_add_u32 s45, s45, s36")
    a("s_lshl_b32 s45, s45, 6")
    a(f"s_add_u32 s45, s45, {CC()}")
    a("s_lshr_b32 s53, s37, 1")
    a("s_lshl_b32 s53, s53, 6")
    a(f"s_add_u32 s53, s53, {CB()}")
    wait_ctr2(c, 45, 8, 53, 32, T)
    st.stamp()
    for i in range(2):
        for f in a_pieces(i): f()
    pipe = TrPipe(a, WB, 8, 6)
    def boundary(i):
        tags = [("A", i), ("D", i)]
        if 1 <= i < 8: tags.append(("D", i + 1))
        vm.wait(*tags)
        a("s_barrier")
        if i in (0, 1): st.stamp(1)
    def spread(i):
        p = []
        if i + 2 < 9: p += a_pieces(i + 2)
        if i + 3 < 9: p += dma_pieces(i + 3)
        return p
    stages = []
    for i in range(9):
        its = []
        for s in range(2):
            for t9 in range(9):
                def fn(w, i=i, s=s, t9=t9):
                    for t in range(2):
                        d = ACC + (t * 9 + t9) * 4
                        b = ACT + (((i % 3) * 2 + s) * 2 + t) * 4
                        cc = "0" if (i == 0 and s == 0) else f"v[{d}:{d+3}]"
                        a(f"v_mfma_f32_16x16x32_bf16 v[{d}:{d+3}], v[{w}:{w+3}], v[{b}:{b+3}], {cc}")
                o = 32 * s * 288 + 32 * t9
                its.append((TRB + (i + 1) % 4, o, o + 8 * 288, fn))
        stages.append(its)
    run_stages(a, pipe, stages, boundary, spread)
    st.stamp()
    a("s_lshl_b32 s46, s40, 1")
    a("s_add_u32 s47, s46, s41")
    a("s_xor_b32 s48, s47, 1")
    a("s_mul_i32 s49, s47, 9216")
    a("s_mul_i32 s48, s48, 9216")
    a(f"s_add_u32 s50, s49, {2*SLOT3}")
    a(f"s_add_u32 s48, s48, {2*SLOT3}")
    a(f"v_add_u32 v{T}, s50, v{VL16}")
    a(f"v_add_u32 v{T+1}, s48, v{VL16}")
    a.nop(4)
    for t9 in range(9):
        d = ACC + (9 + t9) * 4
        a(f"ds_write_b128 v{T}, v[{d}:{d+3}] offset:{t9*1024}")
    a("s_lshl_b32 s46, s37, 2")
    a("s_add_u32 s46, s46, s39")
    a("s_lshl_b32 s50, s46, 2")
    a("s_add_u32 s50, s50, s36")
    a("s_mul_i32 s50, s50, 73728")
    a("s_add_u32 s50, s50, s49")
    a(f"s_add_u32 s50, s50, {wso('PART')}")
    a("s_add_u32 s51, s50, 4096")
    a("s_add_u32 s52, s50, 8192")
    a("s_waitcnt lgkmcnt(0)")
    a("s_barrier")
    for t9 in range(9):
        d = ACC + (9 + t9) * 4
        a(f"ds_read_b128 v[{d}:{d+3}], v{T+1} offset:{t9*1024}")
    own = c.sync
    if own:
        labO = a.newlabel("P4OWN"); labD = a.newlabel("P4DONE")
        a("s_cmp_eq_u32 s40, s36")
        a(f"s_cbranch_scc1 {labO}")
    for t9 in range(9):
        d = ACC + t9 * 4; e = ACC + (9 + t9) * 4
        a(f"s_waitcnt lgkmcnt({8-t9})")
        for k in range(4):
            a(f"v_add_f32 v{d+k}, v{d+k}, v{e+k}")
        a(f"buffer_store_dwordx4 v[{d}:{d+3}], v{VL16}, {WS_}, s{50+t9//4} offen offset:{(t9%4)*1024}{SC}")
    if own:
        a(f"s_branch {labD}")
        a.label(labO)
        a("s_mul_i32 s50, s41, 9216")
        a(f"v_add_u32 v{T}, s50, v{VL16}")
        a("s_waitcnt lgkmcnt(0)")
        for t9 in range(9):
            d = ACC + t9 * 4; e = ACC + (9 + t9) * 4
            for k in range(4):
                a(f"v_add_f32 v{d+k}, v{d+k}, v{e+k}")
            a(f"ds_write_b128 v{T}, v[{d}:{d+3}] offset:{t9*1024}")
        a("s_waitcnt lgkmcnt(0)")
        a.label(labD)
    a("s_lshl_b32 s45, s46, 6")
    a(f"s_add_u32 s45, s45, {CD()}")
    signal(c, 45, T)
    st.stamp()

def ph5(c):
    a = c.a; st = c.st
    a("s_bfe_u32 s36, s2, 0x20001")
    a("s_and_b32 s37, s2, 1")
    a("s_lshl_b32 s37, s37, 3")
    a("s_bfe_u32 s38, s2, 0x30003")
    a("s_add_u32 s37, s37, s38")
    a("s_lshr_b32 s39, s2, 6")
    a("s_lshl_b32 s46, s37, 2")
    a("s_add_u32 s46, s46, s39")
    R = Regs(1)
    T = R.alloc(6); VL16 = R.alloc(1); VO = R.alloc(3); VG = R.alloc(1)
    PB = R.alloc(48, 4); XR = R.alloc(6, 2); GB = R.alloc(12, 4)
    a(f"v_lshlrev_b32 v{VL16}, 4, v0")
    a("s_lshl_b32 s40, s37, 7")
    a("s_lshl_b32 s41, s36, 5")
    a("s_add_u32 s40, s40, s41")
    a(f"v_and_b32 v{T}, 15, v0")
    a(f"v_add_u32 v{T}, s40, v{T}")
    a(f"v_mul_u32_u24 v{T}, 1152, v{T}")
    a(f"v_lshrrev_b32 v{VG}, 4, v0")
    a(f"v_lshl_add_u32 v{T}, v{VG}, 3, v{T}")
    a(f"v_lshlrev_b32 v{VG}, 4, v{VG}")
    a("s_mul_i32 s41, s39, 288")
    a(f"s_mov_b32 s53, {wso('X1')}")
    for q in range(3):
        a(f"s_add_u32 s42, s24, {8*q}")
        a("s_cmp_ge_u32 s42, 9")
        a("s_cselect_b32 s43, 1, 0")
        a("s_mul_i32 s44, s43, 9")
        a("s_sub_u32 s44, s42, s44")
        a(f"s_mul_i32 s47, s43, {16*1152}")
        a("s_lshl_b32 s48, s44, 5")
        a("s_add_u32 s47, s47, s48")
        a("s_add_u32 s47, s47, s41")
        a("s_cmp_ge_u32 s42, 18")
        a("s_cselect_b32 s47, 0x7f000000, s47")
        a(f"v_add_u32 v{VO+q}, s47, v{T}")
        a(f"buffer_load_dwordx2 v[{XR+2*q}:{XR+2*q+1}], v{VO+q}, {WS_}, s53 offen{SC}")
        a("s_lshl_b32 s48, s44, 6")
        a("s_mul_i32 s49, s39, 576")
        a("s_add_u32 s48, s48, s49")
        a(f"s_add_u32 s48, s48, {wso('MOD') + 5*576*4}")
        a(f"buffer_load_dwordx4 v[{GB+4*q}:{GB+4*q+3}], v{VG}, {WS_}, s48 offen{SC}")
    a("s_lshl_b32 s45, s46, 6")
    a(f"s_add_u32 s45, s45, {CD()}")
    wait_ctr(c, 45, 4, T + 1)
    st.stamp()
    a("s_mul_i32 s50, s46, 294912")
    a("s_mul_i32 s51, s36, 18432")
    a("s_add_u32 s50, s50, s51")
    a("s_lshl_b32 s51, s24, 10")
    a("s_add_u32 s50, s50, s51")
    a(f"s_add_u32 s50, s50, {wso('PART')}")
    nsrc = 3 if c.sync else 4
    if c.sync:
        a("s_lshl_b32 s51, s24, 10")
        a(f"v_add_u32 v{T+3}, s51, v{VL16}")
        for q in range(3):
            r = PB + (q * 4 + 3) * 4
            a(f"ds_read_b128 v[{r}:{r+3}], v{T+3} offset:{q*8192}")
        for src in range(3):
            a(f"s_add_u32 s{54+src}, s36, {src+1}")
            a(f"s_and_b32 s{54+src}, s{54+src}, 3")
            a(f"s_mul_i32 s{54+src}, s{54+src}, 73728")
            a(f"s_add_u32 s{54+src}, s{54+src}, s50")
    for q in range(3):
        for src in range(nsrc):
            r = PB + (q * 4 + src) * 4
            if c.sync:
                a(f"s_add_u32 s51, s{54+src}, {q*8192}")
            else:
                a(f"s_add_u32 s51, s50, {src*73728 + q*8192}")
            a(f"buffer_load_dwordx4 v[{r}:{r+3}], v{VL16}, {WS_}, s51 offen{SC}")
    a("s_waitcnt lgkmcnt(0)")
    for q in range(3):
        a(f"s_waitcnt vmcnt({nsrc*(2-q)+q})")
        p = PB + q * 16
        for e in range(4):
            a(f"v_add_f32 v{p+e}, v{p+e}, v{p+4+e}")
            a(f"v_add_f32 v{p+8+e}, v{p+8+e}, v{p+12+e}")
            a(f"v_add_f32 v{p+e}, v{p+e}, v{p+8+e}")
        for d in range(2):
            x = XR + 2 * q + d
            a(f"v_lshlrev_b32 v{T+1}, 16, v{x}")
            a(f"v_and_b32 v{T+2}, 0xffff0000, v{x}")
            a(f"v_fmac_f32 v{T+1}, v{GB+4*q+2*d}, v{p+2*d}")
            a(f"v_fmac_f32 v{T+2}, v{GB+4*q+2*d+1}, v{p+2*d+1}")
            a(f"v_cvt_pk_bf16_f32 v{x}, v{T+1}, v{T+2}")
        a(f"buffer_store_dwordx2 v[{XR+2*q}:{XR+2*q+1}], v{VO+q}, {OUT_}, 0 offen")

LDS_MEGA = 163840
def gen_split(a):
    def wrap(name, fn):
        a.begin_kernel(name)
        end = name.upper() + "_END"
        st = Stamper(a, name[:-7])
        c = Ctx(a, False, st)
        prologue(a, end)
        st.stamp()
        fn(c)
        st.finish(24, 1)
        a.label(end)
        a.end_kernel(name, vgpr=256, sgpr=102, grid=256, block=512, lds=LDS_MEGA)
    wrap("p12_kernel", ph12)
    wrap("p2w_kernel", lambda c: ph2w(c, True))
    wrap("p2c_kernel", lambda c: ph2c(c, ph2w(c, True)))
    wrap("p3_kernel", ph3)
    wrap("p4_kernel", ph4)
    wrap("p5_kernel", ph5)

def gen_mega(a):
    name = "pmega_kernel"
    a.begin_kernel(name)
    st = Stamper(a, "mega", wg=int(os.environ.get("STAMP_WG", "0")))
    st.level = int(os.environ.get('STAMP_LEVEL', '0'))
    c = Ctx(a, True, st)
    prologue(a, "MEGA_END")
    st.stamp()
    ph12(c)
    r = ph2w(c)
    ph2c(c, r)
    ph3(c)
    ph4(c)
    ph5(c)
    st.finish(24, 1)
    a.label("MEGA_END")
    a.end_kernel(name, vgpr=256, sgpr=102, grid=256, block=512, lds=LDS_MEGA)
```

```python
from fw import *
from gemm_common import *
from k_p0 import ln_scalars, np_f32
import os
NLOG2E = 0xbfb8aa3b
X_, WQKV_, W13_, W2_, OUT_, WS_, XH_ = "s[4:7]", "s[8:11]", "s[12:15]", "s[16:19]", "s[20:23]", "s[28:31]", "s[32:35]"
def wso(n): return WS[n][0]
WOF = 156
SC = " sc1"
DBG = os.environ.get("DBG", "").split(",")
_OPT = dict(warm="late", spr="20", early="1", nrs="0")
_OPT.update(dict(kv.split("=") for kv in os.environ.get("OPT", "").split(",") if kv))
def OPT(k): return _OPT[k]

class Ctx:
    def __init__(self, a, sync, st):
        self.a = a; self.sync = sync; self.st = st

def prologue(a, end):
    a("s_cmp_ge_u32 s2, 256")
    a(f"s_cbranch_scc1 {end}")
    a("s_load_dwordx4 s[36:39], s[0:1], 0")
    a("s_load_dwordx4 s[40:43], s[0:1], 32")
    a("s_load_dwordx2 s[44:45], s[0:1], 48")
    a("s_load_dwordx2 s[46:47], s[0:1], 72")
    a("s_load_dwordx2 s[48:49], s[0:1], 88")
    a("s_load_dwordx2 s[50:51], s[0:1], 16")
    a("s_load_dwordx4 s[52:55], s[0:1], 56")
    a("s_load_dwordx2 s[56:57], s[0:1], 80")
    a("v_lshrrev_b32 v1, 6, v0")
    a("v_and_b32 v0, 63, v0")
    a("v_readfirstlane_b32 s24, v1")
    a("s_waitcnt lgkmcnt(0)")
    srd_from_ptr(a, 4, 36, 2048 * 1152)
    srd_from_ptr(a, 8, 38, 576 * 3456)
    a("s_cmp_lt_u32 s24, 4")
    a("s_cselect_b32 s12, s40, s42")
    a("s_cselect_b32 s13, s41, s43")
    a("s_and_b32 s13, s13, 0xffff")
    a(f"s_mov_b32 s14, {576*9216}")
    a("s_mov_b32 s15, 0x00020000")
    srd_from_ptr(a, 16, 44, 4608 * 1152)
    srd_from_ptr(a, 20, 46, 2048 * 1152)
    srd_from_ptr(a, 28, 48, WS_END)
    srd_from_ptr(a, 60, 54, 576 * 6912)
    srd_from_ptr(a, 64, 52, 1152)
    srd_from_ptr(a, 68, 50, 576 * 1152)
    srd_from_ptr(a, 72, 56, 256)

def signal(c, soff, vt, pending=0):
    a = c.a
    a(f"s_waitcnt vmcnt({pending})")
    if not c.sync:
        return
    a("s_barrier")
    lab = a.newlabel("SIG")
    a("s_cmp_lg_u32 s24, 0")
    a(f"s_cbranch_scc1 {lab}")
    a(f"v_mov_b32 v{vt}, 1")
    a("s_mov_b64 exec, 1")
    a(f"buffer_atomic_add v{vt}, off, {WS_}, s{soff} sc1")
    a("s_mov_b64 exec, -1")
    a.label(lab)

def wait_ctr(c, soff, target, vt):
    a = c.a
    if not c.sync:
        return
    done = a.newlabel("WDONE"); loop = a.newlabel("WLOOP")
    a("s_cmp_lg_u32 s24, 0")
    a(f"s_cbranch_scc1 {done}")
    a("s_mov_b32 s56, 0")
    a.label(loop)
    a(f"buffer_load_dword v{vt}, off, {WS_}, s{soff} sc1")
    a("s_waitcnt vmcnt(0)")
    a(f"v_readfirstlane_b32 s57, v{vt}")
    a("s_add_u32 s56, s56, 1")
    a(f"s_cmp_ge_u32 s57, {target}")
    a(f"s_cbranch_scc1 {done}")
    a("s_cmp_gt_u32 s56, 0x400000")
    a(f"s_cbranch_scc1 {done}")
    a("s_sleep 1")
    a(f"s_branch {loop}")
    a.label(done)
    a("s_barrier")

def umax_chain(a, regs, tmp):
    regs = list(regs)
    if len(regs) == 1:
        a(f"v_mov_b32 v{tmp}, v{regs[0]}"); return
    if len(regs) == 2:
        a(f"v_max_u32 v{tmp}, v{regs[0]}, v{regs[1]}"); return
    a(f"v_max3_u32 v{tmp}, v{regs[0]}, v{regs[1]}, v{regs[2]}")
    regs = regs[3:]
    while regs:
        if len(regs) == 1:
            a(f"v_max_u32 v{tmp}, v{tmp}, v{regs[0]}"); regs = []
        else:
            a(f"v_max3_u32 v{tmp}, v{tmp}, v{regs[0]}, v{regs[1]}"); regs = regs[2:]

def poll_loads(c, issue, regs, tmp):
    a = c.a
    if not c.sync:
        issue(); a("s_waitcnt vmcnt(0)"); return
    loop = a.newlabel("PL"); done = a.newlabel("PLD")
    a("s_mov_b32 s56, 0")
    a.label(loop)
    issue()
    a("s_waitcnt vmcnt(0)")
    umax_chain(a, regs, tmp)
    a(f"v_cmp_eq_u32 vcc, -1, v{tmp}")
    a("s_add_u32 s56, s56, 1")
    a("s_nop 0")
    a(f"s_cbranch_vccz {done}")
    a("s_cmp_gt_u32 s56, 0x400000")
    a(f"s_cbranch_scc1 {done}")
    a("s_sleep 1")
    a(f"s_branch {loop}")
    a.label(done)

def arrive(c, soff, vt):
    a = c.a
    if not c.sync: return
    lab = a.newlabel("ARR")
    a("s_cmp_lg_u32 s24, 0")
    a(f"s_cbranch_scc1 {lab}")
    a(f"v_mov_b32 v{vt}, 1")
    a("s_mov_b64 exec, 1")
    a(f"buffer_atomic_add v{vt}, off, {WS_}, s{soff} sc1")
    a("s_mov_b64 exec, -1")
    a.label(lab)

def wait_ctr2(c, s1, t1, s2, t2, vt):
    a = c.a
    if not c.sync: return
    done = a.newlabel("WDONE"); loop = a.newlabel("WLOOP"); more = a.newlabel("WMORE")
    a("s_cmp_lg_u32 s24, 0")
    a(f"s_cbranch_scc1 {done}")
    a("s_mov_b32 s56, 0")
    a.label(loop)
    a(f"buffer_load_dword v{vt}, off, {WS_}, s{s1} sc1")
    a(f"buffer_load_dword v{vt+1}, off, {WS_}, s{s2} sc1")
    a("s_waitcnt vmcnt(0)")
    a(f"v_readfirstlane_b32 s57, v{vt}")
    a(f"v_readfirstlane_b32 s58, v{vt+1}")
    a("s_add_u32 s56, s56, 1")
    a(f"s_cmp_lt_u32 s57, {t1}")
    a(f"s_cbranch_scc1 {more}")
    a(f"s_cmp_ge_u32 s58, {t2}")
    a(f"s_cbranch_scc1 {done}")
    a.label(more)
    a("s_cmp_gt_u32 s56, 0x400000")
    a(f"s_cbranch_scc1 {done}")
    a("s_sleep 1")
    a(f"s_branch {loop}")
    a.label(done)
    a("s_barrier")

def prefill(c, B):
    a = c.a
    for i in range(4): a(f"v_mov_b32 v{B+8+i}, -1")
    a("s_mul_i32 s76, s37, 36864")
    a(f"s_add_u32 s77, s76, {wso('OF')}")
    a(f"s_add_u32 s78, s76, {wso('H2')}")
    a("s_mul_i32 s79, s36, 18")
    a("s_lshl_b32 s76, s24, 6")
    a(f"v_add_u32 v{B}, s76, v0")
    lab = a.newlabel("PF")
    for ps in range(2):
        if ps == 1:
            a("s_cmp_lg_u32 s24, 1")
            a(f"s_cbranch_scc1 {lab}")
            a(f"v_add_u32 v{B}, 512, v0")
        a(f"v_and_b32 v{B+1}, 31, v{B}")
        a(f"v_lshrrev_b32 v{B+2}, 5, v{B}")
        a(f"v_add_u32 v{B+2}, s79, v{B+2}")
        a(f"v_lshrrev_b32 v{B+3}, 4, v{B+1}")
        a(f"v_mul_u32_u24 v{B+3}, 1152, v{B+3}")
        a(f"v_lshl_add_u32 v{B+3}, v{B+2}, 4, v{B+3}")
        a(f"v_and_b32 v{B+4}, 15, v{B+1}")
        a(f"v_add_u32 v{B+3}, v{B+3}, v{B+4}")
        a(f"v_lshlrev_b32 v{B+3}, 4, v{B+3}")
        a(f"buffer_store_dwordx4 v[{B+8}:{B+11}], v{B+3}, {WS_}, s77 offen{SC}")
    a("s_lshl_b32 s76, s37, 10")
    a("s_lshl_b32 s77, s36, 8")
    a("s_add_u32 s76, s76, s77")
    a(f"s_add_u32 s76, s76, {wso('ST')}")
    a(f"v_lshlrev_b32 v{B+1}, 4, v0")
    a("s_mov_b64 exec, 0xffff")
    a(f"buffer_store_dwordx4 v[{B+8}:{B+11}], v{B+1}, {WS_}, s76 offen{SC}")
    a("s_mov_b64 exec, -1")
    a.label(lab)

def warm_w13(c, T):
    a = c.a
    a("s_lshr_b32 s76, s2, 5")
    a("s_lshl_b32 s76, s76, 2")
    a("s_and_b32 s77, s24, 3")
    a("s_add_u32 s76, s76, s77")
    a("s_mul_i32 s76, s76, 54")
    a(f"v_add_u32 v{T}, s76, v0")
    a(f"v_mul_u32_u24 v{T+1}, 21846, v{T}")
    a(f"v_lshrrev_b32 v{T+1}, 16, v{T+1}")
    a(f"v_mul_u32_u24 v{T+2}, 3, v{T+1}")
    a(f"v_sub_u32 v{T}, v{T}, v{T+2}")
    a(f"v_mul_u32_u24 v{T}, 142, v{T}")
    a(f"v_and_b32 v{T}, 0x1fc, v{T}")
    a(f"v_mul_u32_u24 v{T+1}, 9216, v{T+1}")
    a(f"v_add_u32 v{T}, v{T}, v{T+1}")
    a("s_and_b32 s76, s2, 31")
    a("s_mul_i32 s76, s76, 288")
    a("s_mov_b32 exec_hi, 0x3fffff")
    a(f"buffer_load_dword v155, v{T}, {W13_}, s76 offen")
    a("s_mov_b64 exec, -1")

def warm_w2(c, T):
    a = c.a
    a("s_bfe_u32 s56, s2, 0x30003")
    a("s_lshl_b32 s56, s56, 3")
    a("s_add_u32 s56, s56, s24")
    a("s_mul_i32 s56, s56, 54")
    a(f"v_add_u32 v{T}, s56, v0")
    a(f"v_mul_u32_u24 v{T+1}, 21846, v{T}")
    a(f"v_lshrrev_b32 v{T+1}, 16, v{T+1}")
    a(f"v_mul_u32_u24 v{T+2}, 3, v{T+1}")
    a(f"v_sub_u32 v{T}, v{T}, v{T+2}")
    a(f"v_mul_u32_u24 v{T}, 142, v{T}")
    a(f"v_and_b32 v{T}, 0x1fc, v{T}")
    a(f"v_mul_u32_u24 v{T+1}, 1152, v{T+1}")
    a(f"v_add_u32 v{T}, v{T}, v{T+1}")
    a("s_bfe_u32 s56, s2, 0x20001")
    a(f"s_mul_i32 s56, s56, {1152*1152}")
    a("s_lshr_b32 s57, s2, 6")
    a("s_mul_i32 s57, s57, 288")
    a("s_add_u32 s56, s56, s57")
    a("s_mov_b32 exec_hi, 0x3fffff")
    a(f"buffer_load_dword v{T+3}, v{T}, {W2_}, s56 offen")
    a("s_mov_b64 exec, -1")

def warm_code(c, T):
    a = c.a
    a("s_getpc_b64 s[76:77]")
    a.label("MEGA_PC")
    a("s_sub_u32 s76, s76, MEGA_PC-pmega_kernel")
    a("s_subb_u32 s77, s77, 0")
    a("s_lshl_b32 s78, s24, 13")
    a(f"v_lshlrev_b32 v{T}, 7, v0")
    a(f"v_add_u32 v{T}, s78, v{T}")
    a(f"v_min_u32 v{T}, MEGA_END-pmega_kernel, v{T}")
    a(f"global_load_dword v{T+1}, v{T}, s[76:77]")

def adv(a, r, n):
    a(f"s_add_u32 s{r}, s{r}, 1")
    a(f"s_cmp_ge_u32 s{r}, {n}")
    a(f"s_cselect_b32 s{r}, 0, s{r}")

QSLOT = 30720
NQS = 5
COEFOFF = NQS * QSLOT
QSTR = 1744
OSTR = 304
class Sprinkle:
    def __init__(self, a, q, period):
        self.a = a; self.q = list(q); self.period = period; self.n = 0; self.busy = False
    def __call__(self, s):
        self.a(s)
        if self.busy: return
        self.n += 1
        if self.q and self.n % self.period == 0 and "exec" not in s and "vcc" not in s and "s_cmp" not in s and "s_nop" not in s:
            self.busy = True; self.q.pop(0)(); self.busy = False
    def flush(self):
        while self.q: self.q.pop(0)()
    def __getattr__(self, k): return getattr(self.a, k)

H1OFF = 4 * 27648
SCR = H1OFF + 27648
def red_g(a, vals, tmp):
    for op in ("v_permlane16_swap_b32", "v_permlane32_swap_b32"):
        for i, v in enumerate(vals): a(f"v_mov_b32 v{tmp+i}, v{v}")
        a("s_nop 1")
        for i, v in enumerate(vals): a(f"{op} v{v}, v{tmp+i}")
        for i, v in enumerate(vals): a(f"v_add_f32 v{v}, v{v}, v{tmp+i}")

def ph12(c):
    a = c.a; st = c.st
    a("s_and_b32 s36, s2, 3")
    a("s_bfe_u32 s37, s2, 0x10002")
    a("s_lshl_b32 s37, s37, 5")
    a("s_lshr_b32 s38, s2, 3")
    a("s_add_u32 s37, s37, s38")
    R = Regs(1, 155)
    T = R.alloc(8)
    VD = R.alloc(4)
    VL16 = R.alloc(1)
    VOO = R.alloc(1)
    m0 = R.mark()
    XF = R.alloc(36, 4)
    DD = R.alloc(72, 2)
    CF = R.alloc(24, 4)
    VXA = R.alloc(1); STA = R.alloc(6)
    vm = VmTracker(a)
    if c.sync:
        phase0_loads(c, DD)
        warm_code(c, DD + 60)
        vm.issue("M", 7)
    a("s_lshl_b32 s45, s37, 5")
    a("s_sub_u32 s45, s45, 16")
    a(f"v_and_b32 v{T}, 15, v0")
    a(f"v_add_u32 v{T}, s45, v{T}")
    a("s_mov_b32 s46, 1152")
    a(f"v_mul_lo_u32 v{T}, v{T}, s46")
    a(f"v_lshrrev_b32 v{T+1}, 4, v0")
    a(f"v_lshl_add_u32 v{VXA}, v{T+1}, 4, v{T}")
    a("s_lshl_b32 s46, s24, 6")
    a(f"s_add_u32 s47, s46, {9*64}")
    a("s_mul_i32 s48, s24, 576")
    a(f"s_add_u32 s48, s48, {8*64}")
    a("s_cmp_ge_u32 s24, 2")
    a("s_cselect_b32 s48, 0x7f000000, s48")
    for q in range(3):
        for m in range(3):
            r = XF + (q * 3 + m) * 4
            a(f"v_add_u32 v{T+7}, s{46+q}, v{VXA}")
            if m: a(f"v_add_u32 v{T+7}, {m*16*1152}, v{T+7}")
            a(f"buffer_load_dwordx4 v[{r}:{r+3}], v{T+7}, {X_}, 0 offen")
            vm.issue("X")
    a(f"v_mov_b32 v{VOO}, {48*QSTR}")
    a(f"v_mov_b32 v{WOF}, 0x7f000000")
    a(f"v_lshlrev_b32 v{VL16}, 4, v0")
    a("s_mul_i32 s39, s24, 12")
    for jj in range(4):
        a(f"v_add_u32 v{T}, {64*jj}, v0")
        a(f"v_mul_u32_u24 v{T+1}, 3641, v{T}")
        a(f"v_lshrrev_b32 v{T+1}, 16, v{T+1}")
        a(f"v_mul_u32_u24 v{T+2}, 18, v{T+1}")
        a(f"v_sub_u32 v{T}, v{T}, v{T+2}")
        a(f"v_add_u32 v{T+1}, s39, v{T+1}")
        a(f"v_lshrrev_b32 v{T+2}, 5, v{T+1}")
        a(f"v_bfe_u32 v{T+3}, v{T+1}, 2, 2")
        a(f"v_bfe_u32 v{T+4}, v{T+1}, 4, 1")
        a(f"v_and_b32 v{T+1}, 3, v{T+1}")
        a(f"v_lshl_add_u32 v{T+1}, v{T+3}, 3, v{T+1}")
        a(f"v_lshl_add_u32 v{T+1}, v{T+4}, 2, v{T+1}")
        a(f"v_mul_u32_u24 v{T+1}, 3456, v{T+1}")
        a(f"v_mul_u32_u24 v{T+2}, 1152, v{T+2}")
        a(f"v_add_u32 v{T+1}, v{T+1}, v{T+2}")
        a(f"v_lshl_add_u32 v{VD+jj}, v{T}, 4, v{T+1}")
    a("s_mul_i32 s40, s24, 3456")
    a("s_mul_i32 s41, s36, 288")
    a("s_mul_i32 s42, s38, 57")
    a("s_lshr_b32 s42, s42, 9")
    a("s_mul_i32 s42, s42, 9")
    a("s_sub_u32 s42, s38, s42")
    a("s_mov_b32 s43, s42")
    def dma_pieces(k):
        slot = (k % 4) * 27648
        def piece(jj):
            if jj == 0:
                a(f"s_mul_i32 s44, s42, {32*3456}")
                a(f"s_add_u32 s44, s44, s41")
                if k >= 9: a(f"s_add_u32 s44, s44, {9*32*3456}")
                adv(a, 42, 9)
            a(f"s_add_u32 m0, s40, {slot + jj*1024}")
            a("s_mov_b64 exec, 0xffffff" if jj == 3 else "s_nop 0")
            a(f"buffer_load_dwordx4 v{VD+jj}, {WQKV_}, s44 offen lds")
            if jj == 3: a("s_mov_b64 exec, -1")
            vm.issue(("D", k))
        return [(lambda jj=jj: piece(jj)) for jj in range(4)]
    RST = WOF + 20
    NRS = int(OPT("nrs"))
    def reg_pieces(k):
        def piece(jj):
            if jj == 0:
                a(f"s_mul_i32 s44, s42, {32*3456}")
                a(f"s_add_u32 s44, s44, s41")
                adv(a, 42, 9)
            r = RST + (k - 4) * 16 + jj * 4
            if jj == 3: a("s_mov_b64 exec, 0xffffff")
            a(f"buffer_load_dwordx4 v[{r}:{r+3}], v{VD+jj}, {WQKV_}, s44 offen")
            if jj == 3: a("s_mov_b64 exec, -1")
            vm.issue(("R", k))
        return [(lambda jj=jj: piece(jj)) for jj in range(4)]
    if c.sync:
        phase0(c, DD, T, vm, None)
    a0 = a
    a = Sprinkle(c.a, [f for k in range(4) for f in dma_pieces(k)] + [f for k in range(4, 4 + NRS) for f in reg_pieces(k)], 12)
    a(f"v_mov_b32 v{T}, 0x3f803f80")
    n_before = len(vm.ops)
    if c.sync:
        labX = a.newlabel("P12_XW")
        a.busy = True
        a("s_waitcnt vmcnt(3)")
        a("s_cmp_eq_u32 s24, 0")
        a(f"s_cbranch_scc1 {labX}")
        a("s_waitcnt vmcnt(0)")
        a.label(labX)
        a.busy = False
    else:
        a("s_waitcnt vmcnt(0)")
    for m in range(3):
        first = True
        for q in range(3):
            for d in range(4):
                r = XF + (q * 3 + m) * 4 + d
                a(f"v_dot2_f32_bf16 v{STA+m}, v{r}, v{T}, " + ("0" if first else f"v{STA+m}"))
                first = False
    a.nop(3)
    red_g(a, [STA, STA + 1, STA + 2], T + 1)
    a(f"v_and_b32 v{T}, 15, v0")
    a(f"v_lshlrev_b32 v{T}, 5, v{T}")
    a(f"v_add_u32 v{T}, {SCR + 4096}, v{T}")
    a("s_lshl_b32 s45, s24, 2")
    a(f"v_add_u32 v{T+1}, s45, v{T}")
    def xchg(off):
        for m in range(3):
            a(f"ds_write_b32 v{T+1}, v{STA+m} offset:{off + m*512}")
        a("s_waitcnt lgkmcnt(0)")
        a("s_barrier")
        for m in range(3):
            a(f"ds_read_b128 v[{CF+8*m}:{CF+8*m+3}], v{T} offset:{off + m*512}")
            a(f"ds_read_b128 v[{CF+8*m+4}:{CF+8*m+7}], v{T} offset:{off + m*512 + 16}")
        a("s_waitcnt lgkmcnt(0)")
        for m in range(3):
            b = CF + 8 * m
            for e in range(4): a(f"v_add_f32 v{b+e}, v{b+e}, v{b+4+e}")
            a(f"v_add_f32 v{b}, v{b}, v{b+1}")
            a(f"v_add_f32 v{b+2}, v{b+2}, v{b+3}")
            a(f"v_add_f32 v{STA+m}, v{b}, v{b+2}")
    if c.sync: arrive0(c, a, T + 3, len(vm.ops) - n_before)
    xchg(0)
    for m in range(3):
        a(f"v_mul_f32 v{STA+3+m}, 0x{np_f32(1.0/576):08x}, v{STA+m}")
        a(f"v_mov_b32 v{STA+m}, 0")
    def dpass(q):
        for m in range(3):
            for d in range(4):
                r = XF + (q * 3 + m) * 4 + d; o = DD + ((q * 3 + m) * 4 + d) * 2
                a(f"v_lshlrev_b32 v{o}, 16, v{r}")
                a(f"v_and_b32 v{o+1}, 0xffff0000, v{r}")
                a(f"v_sub_f32 v{o}, v{o}, v{STA+3+m}")
                a(f"v_sub_f32 v{o+1}, v{o+1}, v{STA+3+m}")
                a(f"v_fmac_f32 v{STA+m}, v{o}, v{o}")
                a(f"v_fmac_f32 v{STA+m}, v{o+1}, v{o+1}")
    dpass(0); dpass(1)
    lab = a.newlabel("P12_Q2")
    a.busy = True
    a("s_cmp_ge_u32 s24, 2")
    a(f"s_cbranch_scc1 {lab}")
    dpass(2)
    a.label(lab)
    a.busy = False
    red_g(a, [STA, STA + 1, STA + 2], T + 2)
    xchg(2048)
    for m in range(3):
        ln_scalars(a, mean=STA + 3 + m, ssq=STA + m, rinv=STA + m, corr=STA + 3 + m, tmp=T + 2)
    for i in range(36):
        m = (i // 4) % 3
        for h in range(2):
            a(f"v_fma_f32 v{DD+2*i+h}, v{DD+2*i+h}, v{STA+m}, v{STA+3+m}")
    a.flush()
    a = a0
    st.stamp(1)
    if c.sync:
        wo_pack1(c)
        prefill(c, CF)
        wait0(c, T + 2, 0, 72)
    st.stamp()
    a(f"v_lshrrev_b32 v{T}, 4, v0")
    a(f"v_lshlrev_b32 v{T}, 4, v{T}")
    for q in range(3):
        a(f"s_add_u32 s45, s{46+q}, {wso('MODB')}")
        a(f"buffer_load_dwordx4 v[{CF+8*q}:{CF+8*q+3}], v{T}, {WS_}, s45 offen offset:1152{SC}")
        a(f"buffer_load_dwordx4 v[{CF+8*q+4}:{CF+8*q+7}], v{T}, {WS_}, s45 offen{SC}")
        vm.issue(("C", q), 2)
    for q in range(3):
        vm.wait(("C", q))
        for d in range(4):
            a(f"v_lshlrev_b32 v{T}, 16, v{CF+8*q+d}")
            a(f"v_and_b32 v{T+1}, 0xffff0000, v{CF+8*q+d}")
            a(f"v_lshlrev_b32 v{T+2}, 16, v{CF+8*q+4+d}")
            a(f"v_and_b32 v{T+3}, 0xffff0000, v{CF+8*q+4+d}")
            for m in range(3):
                o = DD + ((q * 3 + m) * 4 + d) * 2
                a(f"v_fma_f32 v{o}, v{o}, v{T}, v{T+2}")
                a(f"v_fma_f32 v{o+1}, v{o+1}, v{T+1}, v{T+3}")
                a(f"v_cvt_pk_bf16_f32 v{XF+(q*3+m)*4+d}, v{o}, v{o+1}")
    R.release(m0)
    XF = R.alloc(36, 4)
    ACC = R.alloc(40, 4); WB = R.alloc(32, 4); AB = R.alloc(24, 4); TB = R.alloc(2); VH = R.alloc(1); VHB = R.alloc(1); VHW = R.alloc(1)
    VW = R.alloc(2)
    a(f"v_add_u32 v{VW}, s40, v{VL16}")
    a(f"v_add_u32 v{VW+1}, {2*27648}, v{VW}")
    a("s_mul_i32 s45, s24, 3072")
    a(f"v_add_u32 v{VHB}, {H1OFF}, v{VL16}")
    a(f"v_add_u32 v{VHW}, s45, v{VHB}")
    def h1_write(half):
        for m in range(3):
            r = XF + (half * 3 + m) * 4
            a(f"ds_write_b128 v{VHW}, v[{r}:{r+3}] offset:{m*1024}")
        lab = a.newlabel("P12_H1")
        a(f"s_cmp_lg_u32 s24, {half}")
        a(f"s_cbranch_scc1 {lab}")
        for m in range(3):
            r = XF + (6 + m) * 4
            a(f"ds_write_b128 v{VHB}, v[{r}:{r+3}] offset:{8*3072 + m*1024}")
        a.label(lab)
        a("s_waitcnt lgkmcnt(0)")
    h1_write(0)
    if c.sync: wo_pack2(c)
    st.stamp(1)
    a(f"v_lshrrev_b32 v{T}, 2, v0")
    a(f"v_mul_u32_u24 v{T}, 288, v{T}")
    a(f"v_and_b32 v{T+1}, 3, v0")
    a(f"v_lshl_add_u32 v{T}, v{T+1}, 3, v{T}")
    a("s_cmp_ge_u32 s24, 3")
    a("s_cselect_b32 s49, 2, 1")
    a("s_cselect_b32 s50, 3, 0")
    a("s_sub_u32 s50, s24, s50")
    a("s_mul_i32 s50, s50, 3")
    a("s_sub_u32 s45, s24, 6")
    a("s_mul_i32 s45, s45, 5")
    a("s_cmp_ge_u32 s24, 6")
    a("s_cselect_b32 s49, 0, s49")
    a("s_cselect_b32 s50, s45, s50")
    a("s_mul_i32 s45, s49, 9216")
    a("s_lshl_b32 s46, s50, 5")
    a("s_add_u32 s45, s45, s46")
    a(f"v_add_u32 v{TB}, s45, v{T}")
    a(f"v_add_u32 v{TB+1}, {2*27648}, v{TB}")
    vm_save = list(vm.ops)
    labB = a.newlabel("P12_GB"); labE = a.newlabel("P12_GE")
    a("s_cmp_ge_u32 s24, 6")
    a(f"s_cbranch_scc1 {labB}")
    def gemm(NT, ms):
        lt = LTracker(a)
        vm.ops = list(vm_save)
        D = NT
        cnt = [0]; wreg = {}; pend = []
        def run(ks):
            items = [(k, n) for k in ks for n in range(NT)]
            def issue(idx):
                k, n = items[idx]
                if n == 0:
                    if 4 <= k < 4 + NRS: lt.wait(("S", k))
                    else: vm.wait(("D", k))
                    if "nobar" not in DBG or k in (0, 9): a("s_barrier")
                    if c.sync and NT == 3 and k == (5 if NRS == 0 else 10):
                        labZ = a.newlabel("P12_ARR2")
                        a("s_cmp_lg_u32 s24, 0")
                        a(f"s_cbranch_scc1 {labZ}")
                        a(f"v_mov_b32 v{T}, 1")
                        a("s_and_b32 s76, s2, 1")
                        a("s_lshl_b32 s76, s76, 6")
                        a("s_add_u32 s76, s76, 128")
                        a("s_mov_b64 exec, 1")
                        a(f"buffer_atomic_add v{T}, off, s[72:75], s76 sc1")
                        a("s_mov_b64 exec, -1")
                        a.label(labZ)
                    a("s_mul_i32 s45, s43, 3072")
                    adv(a, 43, 9)
                    a(f"v_add_u32 v{VH}, s45, v{VHB}")
                    for m in ms:
                        r = AB + ((k % 2) * 3 + m) * 4
                        lt.issue(("A", k), f"ds_read_b128 v[{r}:{r+3}], v{VH} offset:{m*1024}")
                    if 2 <= k and k + 2 < 4 + NRS:
                        def wpiece(jj, kk=k + 2):
                            if jj == 0: vm.wait(("R", kk))
                            r = RST + (kk - 4) * 16 + jj * 4
                            sl = kk % 4
                            if jj == 3: a("s_mov_b64 exec, 0xffffff")
                            lt.issue(("S", kk), f"ds_write_b128 v{VW+sl//2}, v[{r}:{r+3}] offset:{(sl%2)*27648 + jj*1024}")
                            if jj == 3: a("s_mov_b64 exec, -1")
                        pend.extend([(lambda jj=jj, f=wpiece: f(jj)) for jj in range(4)])
                    elif 2 <= k and k + 2 < 18:
                        pend.extend(dma_pieces(k + 2))
                w = WB + 4 * (cnt[0] % 8); cnt[0] += 1
                wreg[(k, n)] = w
                sl = k % 4
                o = (sl % 2) * 27648 + n * 32
                lt.issue((k, n), f"ds_read_b64_tr_b16 v[{w}:{w+1}], v{TB+sl//2} offset:{o}")
                lt.issue((k, n), f"ds_read_b64_tr_b16 v[{w+2}:{w+3}], v{TB+sl//2} offset:{o + 16*288}")
            for idx in range(D): issue(idx)
            for idx, (k, n) in enumerate(items):
                if idx + D < len(items): issue(idx + D)
                lt.wait((k, n), ("A", k))
                w = wreg[(k, n)]
                for mi, m in enumerate(ms):
                    d = ACC + (n * len(ms) + mi) * 4; b = AB + ((k % 2) * 3 + m) * 4
                    cc = "0" if k == 0 else f"v[{d}:{d+3}]"
                    a(f"v_mfma_f32_16x16x32_bf16 v[{d}:{d+3}], v[{w}:{w+3}], v[{b}:{b+3}], {cc}")
                for _ in range(2 if NT == 3 else 1):
                    if pend: pend.pop(0)()
        run(range(0, 9))
        a("s_barrier")
        h1_write(1)
        run(range(9, 18))
        assert not pend
        a("s_barrier")
        a.nop(4)
        a(f"v_and_b32 v{T}, 15, v0")
        a(f"v_mul_u32_u24 v{T}, {QSTR}, v{T}")
        a(f"v_lshrrev_b32 v{T+1}, 4, v0")
        a(f"v_lshl_add_u32 v{T}, v{T+1}, 4, v{T}")
        a("s_mul_i32 s45, s49, 576")
        a("s_lshl_b32 s46, s50, 6")
        a("s_add_u32 s45, s45, s46")
        a(f"v_add_u32 v{T}, s45, v{T}")
        for n in range(NT):
            if NT == 5 and n == 4:
                labS = a.newlabel("P12_S")
                a("s_cmp_eq_u32 s24, 7")
                a(f"s_cbranch_scc1 {labS}")
            for mi, m in enumerate(ms):
                d = ACC + (n * len(ms) + mi) * 4
                a(f"ds_write_b128 v{T}, v[{d}:{d+3}] offset:{m*16*QSTR + n*64}")
        if NT == 5: a.label(labS)
    gemm(3, [0, 1, 2])
    a(f"s_branch {labE}")
    a.label(labB)
    gemm(5, [1, 2])
    a.label(labE)
    if c.sync:
        wait0(c, T + 2, 128, 256)
        if OPT("warm") == "late": warm_w13(c, VD3)
    st.stamp()
    a = Sprinkle(c.a, wof_pieces(c, VL16), int(OPT('spr')))
    R.release(m0)
    Q = R.alloc(18, 2); KB = R.alloc(72, 2); LG = R.alloc(8, 2); O = R.alloc(18, 2); P = R.alloc(8, 2)
    VR = R.alloc(1); VQ = R.alloc(1); VK = R.alloc(1)
    a(f"v_lshrrev_b32 v{VR}, 4, v0")
    a("s_lshl_b32 s45, s24, 2")
    a(f"v_add_u32 v{VR}, s45, v{VR}")
    a(f"v_bfe_u32 v{T}, v0, 1, 3")
    a(f"v_mul_u32_u24 v{T}, 72, v{T}")
    a(f"v_mul_u32_u24 v{VQ}, {QSTR}, v{VR}")
    a(f"v_add_u32 v{VQ}, v{VQ}, v{T}")
    a(f"v_and_b32 v{T+1}, 1, v0")
    a(f"v_mul_u32_u24 v{T+2}, {8*QSTR}, v{T+1}")
    a(f"v_sub_u32 v{VK}, v{VQ}, v{T+2}")
    a(f"v_add_u32 v{VK}, {10*QSTR}, v{VK}")
    a("s_waitcnt lgkmcnt(0)")
    a("s_barrier")
    st.stamp(1)
    lt = LTracker(a)
    for i in range(9):
        lt.issue("q", f"ds_read_b64 v[{Q+2*i}:{Q+2*i+1}], v{VQ} offset:{16*QSTR + 8*i}")
    def rdrow(jj, part, i):
        dst = KB + 18 * jj + 2 * i
        lt.issue((part, jj, i), f"ds_read_b64 v[{dst}:{dst+1}], v{VK} offset:{(6-2*jj)*QSTR + part*576 + 8*i}")
    for i in range(9):
        for jj in range(4): rdrow(jj, 1, i)
    for i in range(9):
        lt.wait("q", (1, 3, i))
        for jj in range(4):
            k = KB + 18 * jj + 2 * i
            if i == 0:
                a(f"v_pk_mul_f32 v[{LG+2*jj}:{LG+2*jj+1}], v[{k}:{k+1}], v[{Q}:{Q+1}]")
            else:
                a(f"v_pk_fma_f32 v[{LG+2*jj}:{LG+2*jj+1}], v[{k}:{k+1}], v[{Q+2*i}:{Q+2*i+1}], v[{LG+2*jj}:{LG+2*jj+1}]")
        for jj in range(4): rdrow(jj, 2, i)
    for jj in range(4):
        a(f"v_add_f32 v{LG+2*jj}, v{LG+2*jj}, v{LG+2*jj+1}")
    labM = a.newlabel("P12_NOMASK")
    a.busy = True
    a("s_cmp_lg_u32 s37, 0")
    a(f"s_cbranch_scc1 {labM}")
    a(f"v_mov_b32 v{T}, 0x{np_f32(-1e9):08x}")
    a(f"v_lshlrev_b32 v{T+2}, 3, v{T+1}")
    for jj in range(4):
        a(f"v_add_u32 v{T+3}, {2*jj}, v{T+2}")
        a(f"v_cmp_le_u32 vcc, v{T+3}, v{VR}")
        a("s_nop 1")
        a(f"v_cndmask_b32 v{LG+2*jj}, v{T}, v{LG+2*jj}, vcc")
    a.label(labM)
    a.busy = False
    cs = np_f32(18 ** -0.5 * 1.4426950408889634)
    a(f"s_mov_b32 s45, 0x{cs:08x}")
    a(f"v_max3_f32 v{T}, v{LG}, v{LG+2}, v{LG+4}")
    a(f"v_max_f32 v{T}, v{T}, v{LG+6}")
    a("s_nop 1")
    a(f"v_max_f32_dpp v{T}, v{T}, v{T} quad_perm:[1,0,3,2] row_mask:0xf bank_mask:0xf")
    a(f"v_mul_f32 v{T}, s45, v{T}")
    for jj in range(4):
        a(f"v_fma_f32 v{LG+2*jj}, v{LG+2*jj}, s45, -v{T}")
    for jj in range(4):
        a(f"v_exp_f32 v{LG+2*jj}, v{LG+2*jj}")
    a("s_nop 0")
    a(f"v_add_f32 v{T}, v{LG}, v{LG+2}")
    a(f"v_add_f32 v{T+2}, v{LG+4}, v{LG+6}")
    a(f"v_add_f32 v{T}, v{T}, v{T+2}")
    a("s_nop 1")
    a(f"v_add_f32_dpp v{T}, v{T}, v{T} quad_perm:[1,0,3,2] row_mask:0xf bank_mask:0xf")
    a(f"v_rcp_f32 v{T}, v{T}")
    a("s_nop 0")
    for jj in range(4):
        a(f"v_mul_f32 v{P+2*jj}, v{LG+2*jj}, v{T}")
    a("s_waitcnt lgkmcnt(0)")
    st.stamp(1)
    for jj in range(4):
        for i in range(9):
            k = KB + 18 * jj + 2 * i
            if jj == 0:
                a(f"v_pk_mul_f32 v[{O+2*i}:{O+2*i+1}], v[{k}:{k+1}], v[{P}:{P+1}] op_sel_hi:[1,0]")
            else:
                a(f"v_pk_fma_f32 v[{O+2*i}:{O+2*i+1}], v[{k}:{k+1}], v[{P+2*jj}:{P+2*jj+1}], v[{O+2*i}:{O+2*i+1}] op_sel_hi:[1,0,1]")
    a("s_nop 1")
    for i in range(18):
        a(f"v_add_f32_dpp v{O+i}, v{O+i}, v{O+i} quad_perm:[1,0,3,2] row_mask:0xf bank_mask:0xf")
    OOFF = 48 * QSTR
    a(f"v_mul_u32_u24 v{T+2}, {OSTR}, v{VR}")
    a(f"v_bfe_u32 v{T}, v0, 1, 3")
    a(f"v_mul_u32_u24 v{T}, 36, v{T}")
    a(f"v_add3_u32 v{T}, v{T}, v{T+2}, v{VOO}")
    for i in range(9):
        a(f"v_cvt_pk_bf16_f32 v{O+2*i}, v{O+2*i}, v{O+2*i+1}")
        a(f"ds_write_b32 v{T}, v{O+2*i} offset:{4*i}")
    spr = a
    a = c.a
    a("s_lshl_b32 s45, s24, 6")
    a(f"v_add_u32 v{T}, s45, v0")
    a("s_mul_i32 s46, s36, 18")
    a("s_mul_i32 s47, s37, 36864")
    a(f"s_add_u32 s47, s47, {wso('OF')}")
    a("s_waitcnt lgkmcnt(0)")
    a("s_barrier")
    st.stamp()
    for ps in range(2):
        if ps == 1:
            labP = a.newlabel("P12_PUB")
            a("s_cmp_lg_u32 s24, 0")
            a(f"s_cbranch_scc1 {labP}")
            a(f"v_add_u32 v{T}, 512, v0")
        a(f"v_and_b32 v{T+1}, 31, v{T}")
        a(f"v_lshrrev_b32 v{T+2}, 5, v{T}")
        a(f"v_mul_u32_u24 v{T+3}, {OSTR}, v{T+1}")
        a(f"v_lshl_add_u32 v{T+3}, v{T+2}, 4, v{T+3}")
        a(f"v_add_u32 v{T+3}, v{T+3}, v{VOO}")
        a(f"ds_read_b128 v[{Q}:{Q+3}], v{T+3}")
        a(f"v_add_u32 v{T+2}, s46, v{T+2}")
        a(f"v_lshrrev_b32 v{T+3}, 4, v{T+1}")
        a(f"v_mul_u32_u24 v{T+3}, 1152, v{T+3}")
        a(f"v_lshl_add_u32 v{T+3}, v{T+2}, 4, v{T+3}")
        a(f"v_and_b32 v{T+1}, 15, v{T+1}")
        a(f"v_add_u32 v{T+3}, v{T+3}, v{T+1}")
        a(f"v_lshlrev_b32 v{T+3}, 4, v{T+3}")
        a("s_waitcnt lgkmcnt(0)")
        a(f"v_min_u32 v{Q}, -2, v{Q}")
        a(f"buffer_store_dwordx4 v[{Q}:{Q+3}], v{T+3}, {WS_}, s47 offen{SC}")
    a.label(labP)
    spr.flush()
    a("s_barrier")
    st.stamp()

def phase0_loads(c, B):
    a = c.a
    a("s_lshr_b32 s76, s2, 5")
    a("s_lshl_b32 s76, s76, 3")
    a("s_and_b32 s77, s2, 7")
    a("s_add_u32 s76, s76, s77")
    a("s_lshl_b32 s76, s76, 2")
    a("s_bfe_u32 s77, s2, 0x20003")
    a("s_add_u32 s80, s76, s77")
    a("s_lshl_b32 s76, s24, 6")
    a(f"v_add_u32 v{B}, s76, v0")
    a(f"v_and_b32 v{B+1}, 1, v{B}")
    a(f"v_lshrrev_b32 v{B+2}, 1, v{B}")
    a(f"v_mul_u32_u24 v{B+3}, 6912, v{B+2}")
    a(f"v_lshl_add_u32 v{B+3}, v{B+1}, 4, v{B+3}")
    a("s_lshl_b32 s76, s80, 5")
    a("s_cmp_ge_u32 s80, 216")
    a("s_cselect_b32 s76, 0x7f000000, s76")
    a(f"v_add_u32 v{B+3}, s76, v{B+3}")
    a(f"v_lshlrev_b32 v{B+4}, 1, v{B+2}")
    W = B + 8; C = B + 20
    a(f"s_mov_b32 s77, {256*6912}")
    a(f"s_mov_b32 s78, {512*6912}")
    for q, so in enumerate(("0", "s77", "s78")):
        a(f"buffer_load_dwordx4 v[{W+4*q}:{W+4*q+3}], v{B+3}, s[60:63], {so} offen")
        a(f"buffer_load_ushort v{C+q}, v{B+4}, s[64:67], 0 offen offset:{512*q}")

def phase0(c, B, T, vm, bulk0):
    a = c.a
    W = B + 8; C = B + 20
    a("s_waitcnt vmcnt(9)")
    c.st.stamp(1)
    A8 = B + 44
    for q in range(3):
        cc = C + q
        a(f"v_lshlrev_b32 v{cc}, 16, v{cc}")
        a(f"v_mul_f32 v{T}, {NLOG2E}, v{cc}")
        a(f"v_exp_f32 v{T}, v{T}")
        a("s_nop 0")
        a(f"v_add_f32 v{T}, 1.0, v{T}")
        a(f"v_rcp_f32 v{T}, v{T}")
        a("s_nop 0")
        a(f"v_mul_f32 v{cc}, v{cc}, v{T}")
        bf16_round(a, cc, cc)
        for d in range(4):
            w = W + 4 * q + d
            a(f"v_lshlrev_b32 v{T}, 16, v{w}")
            a(f"v_and_b32 v{T+1}, 0xffff0000, v{w}")
            if q == 0:
                a(f"v_mul_f32 v{A8+2*d}, v{cc}, v{T}")
                a(f"v_mul_f32 v{A8+2*d+1}, v{cc}, v{T+1}")
            else:
                a(f"v_fmac_f32 v{A8+2*d}, v{cc}, v{T}")
                a(f"v_fmac_f32 v{A8+2*d+1}, v{cc}, v{T+1}")
    for rr in (2, 4, 8):
        for e in range(8):
            a(f"v_add_f32_dpp v{A8+e}, v{A8+e}, v{A8+e} row_ror:{rr} row_mask:0xf bank_mask:0xf")
    a(f"v_lshrrev_b32 v{T}, 4, v{B}")
    a(f"v_lshlrev_b32 v{T}, 6, v{T}")
    a(f"v_lshl_add_u32 v{T}, v{B+1}, 5, v{T}")
    a(f"v_add_u32 v{T}, {SCR}, v{T}")
    a(f"ds_write_b128 v{T}, v[{A8}:{A8+3}]")
    a(f"ds_write_b128 v{T}, v[{A8+4}:{A8+7}] offset:16")
    a("s_waitcnt lgkmcnt(0)")
    a("s_barrier")
    labF = a.newlabel("P0_FIN"); labW = a.newlabel("P0_WO")
    a("s_cmp_lg_u32 s24, 0")
    a(f"s_cbranch_scc1 {labW}")
    a(f"v_and_b32 v{T}, 15, v0")
    a(f"v_lshrrev_b32 v{T+1}, 4, v0")
    a(f"v_lshlrev_b32 v{T+1}, 9, v{T+1}")
    a(f"v_lshl_add_u32 v{T+1}, v{T}, 2, v{T+1}")
    a(f"v_add_u32 v{T+1}, {SCR}, v{T+1}")
    for e in range(8):
        a(f"ds_read_b32 v{A8+e}, v{T+1} offset:{64*e}")
    a("s_waitcnt lgkmcnt(0)")
    for e in range(1, 8):
        a(f"v_add_f32 v{A8}, v{A8}, v{A8+e}")
    red_g(a, [A8], T + 1)
    bf16_round(a, A8, A8)
    a("s_mul_i32 s76, s80, 1821")
    a("s_lshr_b32 s76, s76, 16")
    a("s_mov_b32 s77, 0")
    a("s_cmp_eq_u32 s76, 1")
    a("s_cselect_b32 s77, 1.0, s77")
    a("s_cmp_eq_u32 s76, 4")
    a("s_cselect_b32 s77, 1.0, s77")
    a(f"v_add_f32 v{A8}, s77, v{A8}")
    bf16_round(a, A8, A8)
    a(f"v_lshlrev_b32 v{T+1}, 2, v{T}")
    a(f"v_lshlrev_b32 v{T}, 1, v{T}")
    a(f"v_lshrrev_b32 v{A8+1}, 16, v{A8}")
    a("s_lshl_b32 s76, s80, 6")
    a(f"s_add_u32 s76, s76, {wso('MOD')}")
    a("s_lshl_b32 s77, s80, 5")
    a(f"s_add_u32 s77, s77, {wso('MODB')}")
    a("s_cmp_ge_u32 s80, 216")
    a("s_cselect_b32 s76, 0x7f000000, s76")
    a("s_cselect_b32 s77, 0x7f000000, s77")
    a(f"v_mov_b32 v{A8+2}, 0")
    a("s_lshl_b32 s78, s2, 6")
    a("s_mov_b64 exec, 0xffff")
    a(f"buffer_store_short v{A8+1}, v{T}, {WS_}, s77 offen{SC}")
    a(f"buffer_store_dword v{A8}, v{T+1}, {WS_}, s76 offen{SC}")
    a(f"buffer_store_dword v{A8+2}, v{T+1}, {WS_}, s78 offen{SC}")
    a("s_mov_b64 exec, -1")
    a(f"s_branch {labF}")
    a.label(labW)
    a.label(labF)
    if OPT("warm") == "early": warm_w13(c, WOF + 24)
    c.st.stamp(1)

def arrive0(c, a, T, pending):
    lab = a.newlabel("P0_ARR")
    a.busy = True
    a("s_cmp_lg_u32 s24, 0")
    a(f"s_cbranch_scc1 {lab}")
    a(f"v_mov_b32 v{T}, 1")
    a("s_and_b32 s76, s2, 1")
    a("s_lshl_b32 s76, s76, 6")
    a("s_cmp_ge_u32 s80, 72")
    a("s_cselect_b32 s76, 0x7f000000, s76")
    a("s_mov_b64 exec, 1")
    a(f"s_waitcnt vmcnt({pending})")
    a(f"buffer_atomic_add v{T}, off, s[72:75], s76 sc1")
    a("s_mov_b64 exec, -1")
    a.label(lab)
    a.busy = False

def wo_pack1(c):
    a = c.a
    lab = a.newlabel("P0_W1")
    a("s_lshl_b32 s76, s24, 6")
    a(f"v_add_u32 v{WOF+6}, s76, v0")
    a("s_cmp_lt_u32 s24, 5")
    a(f"s_cbranch_scc1 {lab}")
    P = WOF
    a("s_mul_i32 s76, s2, 162")
    a("s_sub_u32 s76, s76, 320")
    a(f"v_add_u32 v{P}, s76, v{P+6}")
    a(f"v_lshrrev_b32 v{P+1}, 6, v{P}")
    a(f"v_mul_u32_u24 v{P+2}, 3641, v{P+1}")
    a(f"v_lshrrev_b32 v{P+2}, 16, v{P+2}")
    a(f"v_mul_u32_u24 v{P+3}, 18, v{P+2}")
    a(f"v_sub_u32 v{P+3}, v{P+1}, v{P+3}")
    a(f"v_and_b32 v{P+4}, 15, v{P}")
    a(f"v_lshl_add_u32 v{P+4}, v{P+2}, 4, v{P+4}")
    a(f"v_bfe_u32 v{P+5}, v{P}, 4, 2")
    a(f"v_lshlrev_b32 v{P+5}, 3, v{P+5}")
    a(f"v_lshl_add_u32 v{P+5}, v{P+3}, 5, v{P+5}")
    a(f"v_mul_u32_u24 v{P+5}, 1152, v{P+5}")
    a(f"v_lshl_add_u32 v{P+5}, v{P+4}, 1, v{P+5}")
    a(f"v_lshlrev_b32 v{P}, 4, v{P}")
    a(f"v_cmp_gt_u32 vcc, 482, v{P+6}")
    a(f"v_mov_b32 v{P+1}, 0x7f000000")
    a("s_nop 0")
    a(f"v_cndmask_b32 v{P}, v{P+1}, v{P}, vcc")
    a(f"v_cndmask_b32 v{P+5}, v{P+1}, v{P+5}, vcc")
    a("s_mov_b32 s77, 4608")
    for j in range(8):
        so = "0" if j < 4 else "s77"
        a(f"buffer_load_ushort v{P+8+j}, v{P+5}, s[68:71], {so} offen offset:{(j%4)*1152}")
    a.label(lab)

def wo_pack2(c):
    a = c.a; P = WOF
    lab = a.newlabel("P0_W2")
    a("s_cmp_lt_u32 s24, 5")
    a(f"s_cbranch_scc1 {lab}")
    a("s_waitcnt vmcnt(0)")
    for d in range(4):
        a(f"v_lshl_or_b32 v{P+16+d}, v{P+9+2*d}, 16, v{P+8+2*d}")
    a(f"s_mov_b32 s77, {wso('WOP')}")
    a(f"buffer_store_dwordx4 v[{P+16}:{P+19}], v{P}, {WS_}, s77 offen{SC}")
    a.label(lab)

def wo_pack3(c):
    a = c.a; P = WOF
    lab = a.newlabel("P0_W3")
    a("s_cmp_lt_u32 s24, 5")
    a(f"s_cbranch_scc1 {lab}")
    a(f"v_mov_b32 v{P+1}, 1")
    a("s_and_b32 s76, s2, 1")
    a("s_lshl_b32 s76, s76, 6")
    a("s_add_u32 s76, s76, 128")
    a("s_mov_b64 exec, 1")
    a("s_waitcnt vmcnt(0)")
    a(f"buffer_atomic_add v{P+1}, off, s[72:75], s76 sc1")
    a("s_mov_b64 exec, -1")
    a.label(lab)

def wait0(c, vt, base, target):
    a = c.a
    done = a.newlabel("W0DONE"); loop = a.newlabel("W0LOOP")
    a("s_cmp_lg_u32 s24, 0")
    a(f"s_cbranch_scc1 {done}")
    a("s_mov_b32 s56, 0")
    a(f"v_and_b32 v{vt+1}, 1, v0")
    a(f"v_lshlrev_b32 v{vt+1}, 6, v{vt+1}")
    a.label(loop)
    a(f"buffer_load_dword v{vt}, v{vt+1}, s[72:75], 0 offen offset:{base} sc1")
    a("s_waitcnt vmcnt(0)")
    a(f"v_readlane_b32 s76, v{vt}, 0")
    a(f"v_readlane_b32 s77, v{vt}, 1")
    a("s_add_u32 s56, s56, 1")
    a("s_add_u32 s76, s76, s77")
    a(f"s_cmp_ge_u32 s76, {target}")
    a(f"s_cbranch_scc1 {done}")
    a("s_cmp_gt_u32 s56, 0x400000")
    a(f"s_cbranch_scc1 {done}")
    a("s_sleep 4")
    a(f"s_branch {loop}")
    a.label(done)
    a("s_barrier")

def wof_pieces(c, VL16):
    a = c.a
    def setup():
        a("s_and_b32 s52, s2, 3")
        a("s_mul_i32 s53, s52, 9")
        a("s_and_b32 s54, s24, 1")
        a("s_mul_i32 s54, s54, 5")
        a("s_add_u32 s53, s53, s54")
        a("s_mul_i32 s53, s53, 18")
        a("s_lshr_b32 s54, s24, 1")
        a("s_mul_i32 s54, s54, 5")
        a("s_add_u32 s53, s53, s54")
        a("s_lshl_b32 s53, s53, 10")
        a(f"s_add_u32 s53, s53, {wso('WOP')}")
    def piece(i, u):
        if u == 0:
            a(f"s_add_u32 s55, s54, {i}")
            a("s_cmp_ge_u32 s55, 18")
            a("s_cselect_b32 s55, 0x7f000000, s53")
        r = WOF + (i * 5 + u) * 4
        a(f"s_add_u32 s52, s55, {u*18432 + i*1024}")
        a(f"buffer_load_dwordx4 v[{r}:{r+3}], v{VL16}, {WS_}, s52 offen")
    return [setup] + [(lambda i=i, u=u: piece(i, u)) for i in range(5) for u in range(5)]

def wof_loads(c, VL16):
    for f in wof_pieces(c, VL16): f()

SLOT3 = 36992
UPOFF = 18560
VD3 = 150
REDOFF = 2 * SLOT3
class WStream:
    def __init__(self, c, sg, srd, ldw, slot_of):
        self.c = c; self.sg = sg; self.srd = srd; self.ldw = ldw; self.slot_of = slot_of; self.VD = None
    def pieces(self, i, vm=None):
        a = self.c.a; g = self.sg
        slot = self.slot_of(i) * SLOT3
        def piece(j):
            if j == 0:
                a(f"s_mul_i32 s{g+3}, s{g+2}, {64*self.ldw}")
                a(f"s_add_u32 s{g+3}, s{g+3}, s{g+1}")
                adv(a, g + 2, 9)
            a(f"s_add_u32 m0, s{g}, {slot + j*1024}")
            a("s_mov_b64 exec, 0xffffffff" if j == 4 else "s_nop 0")
            a(f"buffer_load_dwordx4 v{self.VD+j}, {self.srd}, s{g+3} offen lds")
            if j == 4: a("s_mov_b64 exec, -1")
            if vm is not None: vm.issue(("D", i))
        return [(lambda j=j: piece(j)) for j in range(5)]

def w3_setup(c, VD, T):
    a = c.a
    w = WStream(c, 76, W13_, 9216, lambda i: i % 4); w.VD = VD
    dma_voffsets(a, VD, 5, 0, 9216, T)
    a("s_and_b32 s79, s24, 3")
    a("s_lshr_b32 s76, s24, 2")
    a(f"s_mul_i32 s76, s76, {UPOFF}")
    a("s_mul_i32 s77, s79, 4608")
    a("s_add_u32 s76, s76, s77")
    a(f"s_mul_i32 s77, s79, {16*9216}")
    a("s_and_b32 s79, s2, 31")
    a("s_mul_i32 s78, s79, 288")
    a("s_add_u32 s77, s77, s78")
    a("s_lshr_b32 s78, s79, 3")
    a("s_lshl_b32 s78, s78, 1")
    a("s_lshr_b32 s79, s2, 5")
    a("s_add_u32 s78, s78, s79")
    a("s_cmp_ge_u32 s78, 9")
    a("s_cselect_b32 s79, 9, 0")
    a("s_sub_u32 s78, s78, s79")
    a("s_mov_b32 s3, s78")
    return w

def w4_setup(c, VD, T):
    a = c.a
    w = WStream(c, 80, W2_, 1152, lambda i: (i + 1) % 4); w.VD = VD
    dma_voffsets(a, VD, 5, 0, 1152, T)
    a("s_lshr_b32 s83, s24, 2")
    a("s_mul_i32 s80, s83, 18432")
    a("s_and_b32 s82, s24, 3")
    a("s_mul_i32 s81, s82, 4608")
    a("s_add_u32 s80, s80, s81")
    a("s_bfe_u32 s81, s2, 0x20001")
    a("s_mul_i32 s81, s81, 1152")
    a("s_mul_i32 s83, s83, 576")
    a("s_add_u32 s81, s81, s83")
    a("s_lshl_b32 s82, s82, 4")
    a("s_add_u32 s81, s81, s82")
    a("s_mul_i32 s81, s81, 1152")
    a("s_lshr_b32 s82, s2, 6")
    a("s_mul_i32 s83, s82, 288")
    a("s_add_u32 s81, s81, s83")
    a("s_lshl_b32 s82, s82, 1")
    a("s_bfe_u32 s83, s2, 0x30003")
    a("s_add_u32 s82, s82, s83")
    a("s_cmp_ge_u32 s82, 9")
    a("s_cselect_b32 s83, 9, 0")
    a("s_sub_u32 s82, s82, s83")
    a("s_mov_b32 s25, s82")
    return w

RSTR = 656
def ph2w(c, standalone=False):
    a = c.a; st = c.st
    a("s_and_b32 s36, s2, 3")
    a("s_bfe_u32 s37, s2, 0x10002")
    a("s_lshl_b32 s37, s37, 5")
    a("s_lshr_b32 s38, s2, 3")
    a("s_add_u32 s37, s37, s38")
    a("s_lshr_b32 s39, s24, 1")
    a("s_and_b32 s40, s24, 1")
    R = Regs(1, VD3)
    T = R.alloc(8)
    VL16 = R.alloc(1)
    AF = R.alloc(40, 4); ACC = R.alloc(40, 4)
    XR = R.alloc(8, 4); GA = R.alloc(8, 4); C2 = R.alloc(8, 4); X1V = R.alloc(16, 2)
    VC = R.alloc(1); VX = R.alloc(1); VROW = R.alloc(1); VRD = R.alloc(2)
    a(f"v_lshlrev_b32 v{VL16}, 4, v0")
    if standalone:
        wof_loads(c, VL16)
    a(f"v_and_b32 v{VC}, 31, v0")
    a(f"v_lshrrev_b32 v{VROW}, 5, v0")
    a("s_lshl_b32 s41, s24, 1")
    a(f"v_add_u32 v{VROW}, s41, v{VROW}")
    a("s_lshl_b32 s41, s37, 5")
    a(f"v_add_u32 v{T}, s41, v{VROW}")
    a(f"v_mul_u32_u24 v{VX}, 1152, v{T}")
    a("s_mul_i32 s42, s36, 288")
    a(f"v_lshl_add_u32 v{VX}, v{VC}, 4, v{VX}")
    a(f"v_add_u32 v{VX}, s42, v{VX}")
    a(f"v_cmp_gt_u32 vcc, 18, v{VC}")
    a(f"v_mov_b32 v{T+1}, 0x7f000000")
    a("s_nop 0")
    a(f"v_cndmask_b32 v{VX}, v{T+1}, v{VX}, vcc")
    a("s_mov_b64 s[50:51], vcc")
    a(f"s_mov_b32 s43, {16*1152}")
    a(f"buffer_load_dwordx4 v[{XR}:{XR+3}], v{VX}, {X_}, 0 offen")
    a(f"buffer_load_dwordx4 v[{XR+4}:{XR+7}], v{VX}, {X_}, s43 offen")
    a(f"v_lshlrev_b32 v{T+1}, 5, v{VC}")
    a("s_mul_i32 s44, s36, 576")
    a(f"s_add_u32 s44, s44, {wso('MOD') + 2*576*4}")
    a(f"buffer_load_dwordx4 v[{GA}:{GA+3}], v{T+1}, {WS_}, s44 offen{SC}")
    a(f"buffer_load_dwordx4 v[{GA+4}:{GA+7}], v{T+1}, {WS_}, s44 offen offset:16{SC}")
    a(f"v_lshlrev_b32 v{T+1}, 4, v{VC}")
    a(f"s_add_u32 s44, s42, {wso('MODB') + 4*1152}")
    a(f"buffer_load_dwordx4 v[{C2}:{C2+3}], v{T+1}, {WS_}, s44 offen{SC}")
    a(f"s_add_u32 s44, s42, {wso('MODB') + 3*1152}")
    a(f"buffer_load_dwordx4 v[{C2+4}:{C2+7}], v{T+1}, {WS_}, s44 offen{SC}")
    st.stamp()
    if c.sync:
        c.w3 = w3_setup(c, VD3, T)
    a("s_mul_i32 s46, s37, 36864")
    a(f"s_add_u32 s46, s46, {wso('OF')}")
    a("s_mul_i32 s47, s39, 5")
    def act_loads():
        for i in range(5):
            a(f"s_add_u32 s48, s47, {i}")
            a("s_min_u32 s48, s48, 17")
            a("s_lshl_b32 s48, s48, 10")
            a("s_add_u32 s48, s48, s46")
            a("s_add_u32 s49, s48, 18432")
            for mt in range(2):
                r = AF + (i * 2 + mt) * 4
                a(f"buffer_load_dwordx4 v[{r}:{r+3}], v{VL16}, {WS_}, s{48+mt} offen{SC}")
    poll_loads(c, act_loads, [AF + 4 * q for q in range(10)], T)
    st.stamp(1)
    a(f"v_and_b32 v{T}, 15, v0")
    a(f"v_mul_u32_u24 v{T}, {RSTR}, v{T}")
    a(f"v_lshrrev_b32 v{T+1}, 4, v0")
    a(f"v_lshl_add_u32 v{T}, v{T+1}, 4, v{T}")
    a(f"s_mul_i32 s48, s39, {32*RSTR}")
    a("s_mul_i32 s49, s40, 320")
    a("s_add_u32 s48, s48, s49")
    a(f"s_add_u32 s48, s48, {REDOFF}")
    a(f"v_add_u32 v{T}, s48, v{T}")
    a(f"v_mul_u32_u24 v{VRD}, {RSTR}, v{VROW}")
    a(f"v_min_u32 v{T+1}, 17, v{VC}")
    a(f"v_lshl_add_u32 v{VRD}, v{T+1}, 5, v{VRD}")
    a(f"v_add_u32 v{VRD}, {REDOFF}, v{VRD}")
    a(f"v_add_u32 v{VRD+1}, {16*RSTR}, v{VRD}")
    early = (c.w3.pieces(0) + c.w3.pieces(1)) if (c.sync and OPT("early") == "1") else []
    for i in range(5):
        for u in range(5):
            w = WOF + (i * 5 + u) * 4
            for mt in range(2):
                d = ACC + (mt * 5 + u) * 4; b = AF + (i * 2 + mt) * 4
                cc = "0" if i == 0 else f"v[{d}:{d+3}]"
                a(f"v_mfma_f32_16x16x32_bf16 v[{d}:{d+3}], v[{w}:{w+3}], v[{b}:{b+3}], {cc}")
            if early and u % 2 == 1: early.pop(0)()
    assert not early
    a.nop(8)
    for mt in range(2):
        for u in range(5):
            d = ACC + (mt * 5 + u) * 4
            a(f"ds_write_b128 v{T}, v[{d}:{d+3}] offset:{mt*16*RSTR + u*64}")
    a("s_waitcnt lgkmcnt(0)")
    a("s_barrier")
    st.stamp(1)
    RD = AF
    S0 = ACC
    RD2 = ACC + 8
    a(f"s_mov_b32 s52, {wso('X1')}")
    a(f"s_add_u32 s53, s52, {16*1152}")
    def red32(vals, tmp):
        for ctl in ("quad_perm:[1,0,3,2]", "quad_perm:[2,3,0,1]", "row_half_mirror", "row_mirror"):
            a("s_nop 0")
            for v in vals:
                a(f"v_add_f32_dpp v{v}, v{v}, v{v} {ctl} row_mask:0xf bank_mask:0xf")
        for i, v in enumerate(vals):
            a(f"v_mov_b32 v{tmp+i}, v{v}")
        a("s_nop 1")
        for i, v in enumerate(vals):
            a(f"v_permlane16_swap_b32 v{v}, v{tmp+i}")
        for i, v in enumerate(vals):
            a(f"v_add_f32 v{v}, v{v}, v{tmp+i}")
    for ps in range(2):
        B = RD if ps == 0 else RD2
        for kq in range(4):
            for hf in range(2):
                r = B + (kq * 2 + hf) * 4
                a(f"ds_read_b128 v[{r}:{r+3}], v{VRD+ps} offset:{kq*32*RSTR + hf*16}")
    for ps in range(2):
        B = RD if ps == 0 else RD2
        a(f"s_waitcnt lgkmcnt({8 if ps == 0 else 0})")
        for e in range(8):
            a(f"v_add_f32 v{B+e}, v{B+e}, v{B+8+e}")
            a(f"v_add_f32 v{B+16+e}, v{B+16+e}, v{B+24+e}")
            a(f"v_add_f32 v{B+e}, v{B+e}, v{B+16+e}")
        XV = X1V + 8 * ps
        for d in range(4):
            x = XR + 4 * ps + d
            a(f"v_lshlrev_b32 v{T+1}, 16, v{x}")
            a(f"v_and_b32 v{T+2}, 0xffff0000, v{x}")
            a(f"v_fmac_f32 v{T+1}, v{GA+2*d}, v{B+2*d}")
            a(f"v_fmac_f32 v{T+2}, v{GA+2*d+1}, v{B+2*d+1}")
            a(f"v_cvt_pk_bf16_f32 v{x}, v{T+1}, v{T+2}")
            a(f"v_lshlrev_b32 v{XV+2*d}, 16, v{x}")
            a(f"v_and_b32 v{XV+2*d+1}, 0xffff0000, v{x}")
        a(f"buffer_store_dwordx4 v[{XR+4*ps}:{XR+4*ps+3}], v{VX}, {WS_}, s{52+ps} offen{SC}")
        sm = S0 + 2 * ps
        a(f"v_add_f32 v{sm}, v{XV}, v{XV+1}")
        for e in range(2, 8):
            a(f"v_add_f32 v{sm}, v{sm}, v{XV+e}")
        a(f"v_cndmask_b32 v{sm}, 0, v{sm}, s[50:51]")
    red32([S0, S0 + 2], T + 1)
    for ps in range(2):
        XV = X1V + 8 * ps; sm = S0 + 2 * ps; m2 = sm + 1
        a(f"v_mul_f32 v{T+2}, 0x{np_f32(1.0/144):08x}, v{sm}")
        a(f"v_sub_f32 v{T+1}, v{XV}, v{T+2}")
        a(f"v_mul_f32 v{m2}, v{T+1}, v{T+1}")
        for e in range(1, 8):
            a(f"v_sub_f32 v{T+1}, v{XV+e}, v{T+2}")
            a(f"v_fmac_f32 v{m2}, v{T+1}, v{T+1}")
        a(f"v_cndmask_b32 v{m2}, 0, v{m2}, s[50:51]")
    red32([S0 + 1, S0 + 3], T + 1)
    a("s_lshl_b32 s46, s37, 10")
    a(f"s_add_u32 s46, s46, {wso('ST')}")
    a("s_lshl_b32 s47, s36, 8")
    a("s_add_u32 s47, s47, s46")
    a(f"v_lshlrev_b32 v{T}, 3, v{VROW}")
    a(f"v_cmp_eq_u32 vcc, 0, v{VC}")
    a(f"v_mov_b32 v{T+1}, 0x7f000000")
    a("s_nop 0")
    a(f"v_cndmask_b32 v{T+1}, v{T+1}, v{T}, vcc")
    a(f"v_min_u32 v{S0}, -2, v{S0}")
    a(f"v_min_u32 v{S0+2}, -2, v{S0+2}")
    a(f"buffer_store_dwordx2 v[{S0}:{S0+1}], v{T+1}, {WS_}, s47 offen{SC}")
    a(f"buffer_store_dwordx2 v[{S0+2}:{S0+3}], v{T+1}, {WS_}, s47 offen offset:128{SC}")
    if not c.sync: a("s_waitcnt vmcnt(0)")
    st.stamp(1)
    return dict(T=T, VROW=VROW, VC=VC, X1V=X1V, C2=C2, RD=RD, XR=XR)

def ph2c(c, r):
    a = c.a; st = c.st
    T, VROW, VC, X1V, C2, RD, XR = r["T"], r["VROW"], r["VC"], r["X1V"], r["C2"], r["RD"], r["XR"]
    a("s_mul_i32 s47, s36, 18")
    a(f"v_add_u32 v{T+1}, s47, v{VC}")
    a(f"v_lshrrev_b32 v{T+2}, 1, v{T+1}")
    a(f"v_lshlrev_b32 v{T+2}, 6, v{T+2}")
    a(f"v_and_b32 v{T+1}, 1, v{T+1}")
    a(f"v_add_u32 v{T+2}, v{T+2}, v{T+1}")
    a(f"v_lshl_add_u32 v{T+2}, v{VROW}, 1, v{T+2}")
    a(f"v_lshlrev_b32 v{T+2}, 4, v{T+2}")
    a(f"v_mov_b32 v{T+1}, 0x7f000000")
    a(f"v_cndmask_b32 v{T+2}, v{T+1}, v{T+2}, s[50:51]")
    a("s_mul_i32 s47, s37, 36864")
    a(f"s_add_u32 s47, s47, {wso('H2')}")
    UA = RD + 16
    for d in range(4):
        a(f"v_lshlrev_b32 v{UA+2*d}, 16, v{C2+d}")
        a(f"v_and_b32 v{UA+2*d+1}, 0xffff0000, v{C2+d}")
        a(f"v_lshlrev_b32 v{UA+8+2*d}, 16, v{C2+4+d}")
        a(f"v_and_b32 v{UA+8+2*d+1}, 0xffff0000, v{C2+4+d}")
    def st_loads():
        for ps in range(2):
            for q in range(4):
                d = RD + (ps * 4 + q) * 2
                a(f"buffer_load_dwordx2 v[{d}:{d+1}], v{T}, {WS_}, s46 offen offset:{q*256 + ps*128}{SC}")
    poll_loads(c, st_loads, [RD + 2 * q for q in range(8)], T + 3)
    st.stamp()
    for ps in range(2):
        b = RD + ps * 8
        mean = T + 3; m2 = T + 4
        a(f"v_add_f32 v{mean}, v{b}, v{b+2}")
        a(f"v_add_f32 v{T+5}, v{b+4}, v{b+6}")
        a(f"v_add_f32 v{mean}, v{mean}, v{T+5}")
        a(f"v_mul_f32 v{mean}, 0x{np_f32(1.0/576):08x}, v{mean}")
        a(f"v_add_f32 v{m2}, v{b+1}, v{b+3}")
        a(f"v_add_f32 v{T+5}, v{b+5}, v{b+7}")
        a(f"v_add_f32 v{m2}, v{m2}, v{T+5}")
        a(f"v_mov_b32 v{T+6}, 0x{np_f32(144.0):08x}")
        for q in range(4):
            a(f"v_mul_f32 v{T+5}, 0x{np_f32(1.0/144):08x}, v{b+2*q}")
            a(f"v_sub_f32 v{T+5}, v{T+5}, v{mean}")
            a(f"v_mul_f32 v{T+5}, v{T+5}, v{T+5}")
            a(f"v_fmac_f32 v{m2}, v{T+5}, v{T+6}")
        ln_scalars(a, mean=mean, ssq=m2, rinv=m2, corr=T + 5, tmp=T + 6)
        XV = X1V + 8 * ps
        for e in range(8):
            a(f"v_sub_f32 v{XV+e}, v{XV+e}, v{mean}")
            a(f"v_fma_f32 v{XV+e}, v{XV+e}, v{m2}, v{T+5}")
            a(f"v_fma_f32 v{XV+e}, v{XV+e}, v{UA+e}, v{UA+8+e}")
        for d in range(4):
            a(f"v_cvt_pk_bf16_f32 v{XR+4*ps+d}, v{XV+2*d}, v{XV+2*d+1}")
        a(f"v_min_u32 v{XR+4*ps}, -2, v{XR+4*ps}")
        a(f"buffer_store_dwordx4 v[{XR+4*ps}:{XR+4*ps+3}], v{T+2}, {WS_}, s47 offen offset:{ps*512}{SC}")
    a("s_lshr_b32 s59, s37, 3")
    a("s_lshl_b32 s59, s59, 6")
    a(f"s_add_u32 s59, s59, {CB()}")
    signal(c, 59, T + 1)
    st.stamp()

SLOT3 = 36992
UPOFF = 18560
def ph3(c):
    a = c.a; st = c.st
    a("s_and_b32 s36, s2, 31")
    a("s_lshr_b32 s37, s2, 5")
    a("s_and_b32 s38, s24, 3")
    a("s_lshr_b32 s39, s24, 2")
    R = Regs(1)
    T = R.alloc(6); VD = R.alloc(5); VA = R.alloc(1); TRB = R.alloc(4); VST = R.alloc(1)
    ACT = R.alloc(64, 4); WB = R.alloc(24, 4); ACC = R.alloc(144, 4)
    vm = VmTracker(a)
    if c.sync:
        w3 = c.w3
        for j in range(5): a(f"v_mov_b32 v{VD+j}, v{VD3+j}")
        w3.VD = VD
        if OPT("early") == "1":
            vm.issue(("D", 0), 5); vm.issue(("D", 1), 5)
        else:
            for i in range(2):
                for f in w3.pieces(i, vm): f()
    else:
        w3 = w3_setup(c, VD, T)
        for i in range(2):
            for f in w3.pieces(i, vm): f()
    a(f"v_and_b32 v{T}, 31, v0")
    a(f"v_lshrrev_b32 v{T+1}, 5, v0")
    a(f"v_lshl_add_u32 v{VA}, v{T}, 1, v{T+1}")
    a(f"v_lshlrev_b32 v{VA}, 4, v{VA}")
    a("s_lshl_b32 s43, s37, 3")
    a("s_add_u32 s43, s43, s24")
    a(f"s_mul_i32 s44, s43, {36*1024}")
    a(f"s_add_u32 s44, s44, {wso('H2')}")
    a("s_mov_b32 s47, s3")
    def dma_pieces(i): return w3.pieces(i, vm)
    def a_pieces(i):
        def piece(s):
            if s == 0:
                a(f"s_lshl_b32 s{52+i%4}, s47, 12")
                a(f"s_add_u32 s{52+i%4}, s{52+i%4}, s44")
                adv(a, 47, 9)
            r = ACT + ((i % 4) * 4 + s) * 4
            a(f"buffer_load_dwordx4 v[{r}:{r+3}], v{VA}, {WS_}, s{52+i%4} offen offset:{s*1024}")
            vm.issue(("A", i))
        return [(lambda s=s: piece(s)) for s in range(4)]
    for f in dma_pieces(2): f()
    if c.sync:
        warm_w2(c, 252)
        vm.issue("W")
    a(f"v_and_b32 v{T}, 3, v0")
    a(f"v_bfe_u32 v{T+1}, v0, 2, 2")
    a(f"v_bfe_u32 v{T+2}, v0, 4, 1")
    a(f"v_lshrrev_b32 v{T+3}, 5, v0")
    a(f"v_lshl_add_u32 v{T+1}, v{T+3}, 3, v{T+1}")
    a(f"v_mul_u32_u24 v{T+1}, 288, v{T+1}")
    a(f"v_lshrrev_b32 v{T+3}, 1, v{T}")
    a(f"v_mul_u32_u24 v{T+3}, {UPOFF}, v{T+3}")
    a(f"v_add_u32 v{T+1}, v{T+1}, v{T+3}")
    a(f"v_lshl_add_u32 v{T+1}, v{T+2}, 4, v{T+1}")
    a(f"v_and_b32 v{T}, 1, v{T}")
    a(f"v_lshl_add_u32 v{TRB}, v{T}, 3, v{T+1}")
    for k in range(1, 4):
        a(f"v_add_u32 v{TRB+k}, {k*SLOT3}, v{TRB}")
    a(f"v_bfe_u32 v{T}, v0, 4, 1")
    a(f"v_lshrrev_b32 v{T+1}, 5, v0")
    a(f"v_and_b32 v{T+2}, 15, v0")
    a(f"v_lshl_add_u32 v{T+2}, v{T}, 6, v{T+2}")
    a(f"v_lshl_add_u32 v{T+2}, v{T+1}, 4, v{T+2}")
    a(f"v_lshlrev_b32 v{VST}, 4, v{T+2}")
    a("s_lshl_b32 s45, s37, 6")
    a(f"s_add_u32 s45, s45, {CB()}")
    wait_ctr(c, 45, 32, T)
    st.stamp()
    for i in range(2):
        for f in a_pieces(i): f()
    pipe = TrPipe(a, WB, 6, 5)
    slows = []
    a("s_mul_i32 s50, s36, 9")
    a("s_lshl_b32 s51, s43, 11")
    a(f"s_add_u32 s51, s51, {wso('HH')}")
    def boundary(i):
        tags = [("A", i), ("D", i)]
        if 1 <= i < 6: tags.append(("D", i + 1))
        if i == 6: tags += [("A", 7), ("A", 8), ("D", 7), ("D", 8)]
        vm.wait(*tags)
        if False:
            sts = [i] if i < 6 else [6, 7, 8]
            regs = [ACT + ((q % 4) * 4 + s) * 4 for q in sts for s in range(4)]
            back = a.newlabel("P3B"); slow = a.newlabel("P3S")
            umax_chain(a, regs, T + 2)
            a(f"v_cmp_eq_u32 vcc, -1, v{T+2}")
            a("s_nop 1")
            a(f"s_cbranch_vccnz {slow}")
            a.label(back)
            slows.append((slow, back, sts, regs))
        a("s_barrier")
        if i in (0, 1): st.stamp(1)
    def spread(i):
        p = []
        if i + 3 < 9: p += dma_pieces(i + 3)
        if i < 4: p += a_pieces(i + 2)
        elif i == 4: p += a_pieces(6) + a_pieces(7)
        elif i == 5: p += a_pieces(8)
        return p
    def item(i, s, j):
        def fn(w):
            d = ACC + j * 16
            b = ACT + ((i % 4) * 4 + s) * 4
            cc = "0" if (i == 0 and s == 0) else f"v[{d}:{d+15}]"
            a(f"v_mfma_f32_32x32x16_bf16 v[{d}:{d+15}], v[{w}:{w+3}], v[{b}:{b+3}], {cc}")
        o = 16 * s * 288 + 32 * j
        return (TRB + i % 4, o, o + 4 * 288, fn)
    def epi_pieces(j):
        d = ACC + j * 16
        def quarter(half, e):
            g0 = d + 8 * half + e; u0 = g0 + 4
            for q in range(2): a(f"v_mul_f32 v{T+q}, {NLOG2E}, v{g0+q}")
            for q in range(2): a(f"v_exp_f32 v{T+q}, v{T+q}")
            for q in range(2): a(f"v_mul_f32 v{g0+q}, v{g0+q}, v{u0+q}")
            for q in range(2): a(f"v_add_f32 v{T+q}, 1.0, v{T+q}")
            for q in range(2): a(f"v_rcp_f32 v{T+q}, v{T+q}")
            a("s_nop 0")
            for q in range(2): a(f"v_mul_f32 v{g0+q}, v{g0+q}, v{T+q}")
            a(f"v_cvt_pk_bf16_f32 v{d+4+2*half+e//2}, v{g0}, v{g0+1}")
        def store():
            a(f"s_add_u32 s48, s50, {j}")
            a("s_lshr_b32 s49, s48, 1")
            a("s_lshl_b32 s49, s49, 17")
            a("s_and_b32 s48, s48, 1")
            a("s_lshl_b32 s48, s48, 9")
            a("s_add_u32 s49, s49, s48")
            a("s_add_u32 s49, s49, s51")
            a(f"buffer_store_dwordx4 v[{d+4}:{d+7}], v{VST}, {WS_}, s49 offen{SC}")
        return [(lambda h=h, e=e: quarter(h, e)) for h in range(2) for e in (0, 2)] + [store]
    stages = [[item(i, s, j) for s in range(4) for j in range(9)] for i in range(6)]
    stages.append([item(i, s, j) for j in range(9) for i in range(6, 9) for s in range(4)])
    def hooks(i):
        h = {}
        if i == 6 and c.sync:
            def setup4(): c.w4 = w4_setup(c, VD, T)
            h.setdefault(1, []).append(setup4)
            for q in range(5):
                h.setdefault(3 + 2 * q, []).append(lambda q=q: c.w4.pieces(0)[q]())
        if i == 6:
            for j in range(8):
                for q, f in enumerate(epi_pieces(j)):
                    h.setdefault((j + 1) * 12 + 3 + 2 * q, []).append(f)
        return h
    run_stages(a, pipe, stages, boundary, spread, hooks)
    st.stamp()
    a.nop(12)
    for f in epi_pieces(8): f()
    a("s_lshl_b32 s45, s37, 2")
    a("s_lshr_b32 s46, s36, 3")
    a("s_add_u32 s45, s45, s46")
    a("s_lshl_b32 s45, s45, 6")
    a(f"s_add_u32 s45, s45, {CC()}")
    signal(c, 45, T)
    st.stamp()
    if slows:
        over = a.newlabel("P3OVER")
        a(f"s_branch {over}")
        for slow, back, sts, regs in slows:
            a.label(slow)
            def reload(sts=sts):
                for q in sts:
                    for s in range(4):
                        r = ACT + ((q % 4) * 4 + s) * 4
                        a(f"buffer_load_dwordx4 v[{r}:{r+3}], v{VA}, {WS_}, s{52+q%4} offen offset:{s*1024}{SC}")
            poll_loads(c, reload, regs, T + 2)
            a(f"s_branch {back}")
        a.label(over)

SLOT4 = 36864
def ph4(c):
    a = c.a; st = c.st
    a("s_bfe_u32 s36, s2, 0x20001")
    a("s_and_b32 s37, s2, 1")
    a("s_lshl_b32 s37, s37, 3")
    a("s_bfe_u32 s38, s2, 0x30003")
    a("s_add_u32 s37, s37, s38")
    a("s_lshr_b32 s39, s2, 6")
    a("s_and_b32 s40, s24, 3")
    a("s_lshr_b32 s41, s24, 2")
    R = Regs(1)
    T = R.alloc(6); VD = R.alloc(5); VL16 = R.alloc(1); TRB = R.alloc(4)
    ACT = R.alloc(48, 4); WB = R.alloc(32, 4); ACC = R.alloc(72, 4)
    vm = VmTracker(a)
    if c.sync:
        w4 = c.w4
        assert w4.VD == VD
        vm.issue(("D", 0), 5)
    else:
        w4 = w4_setup(c, VD, T)
        for f in w4.pieces(0, vm): f()
    a(f"v_lshlrev_b32 v{VL16}, 4, v0")
    a("s_mul_i32 s46, s36, 36")
    a("s_mul_i32 s47, s41, 18")
    a("s_add_u32 s46, s46, s47")
    a("s_lshl_b32 s46, s46, 7")
    a("s_lshl_b32 s47, s37, 3")
    a("s_add_u32 s46, s46, s47")
    a("s_lshl_b32 s47, s40, 1")
    a("s_add_u32 s46, s46, s47")
    a("s_add_u32 s47, s46, s41")
    a("s_xor_b32 s48, s41, 1")
    a("s_add_u32 s48, s46, s48")
    a("s_lshl_b32 s47, s47, 10")
    a("s_lshl_b32 s48, s48, 10")
    a(f"s_add_u32 s47, s47, {wso('HH')}")
    a(f"s_add_u32 s48, s48, {wso('HH')}")
    a("s_mov_b32 s50, s25")
    def dma_pieces(i): return w4.pieces(i, vm)
    def a_pieces(i):
        def piece(s, t):
            if s == 0 and t == 0:
                a("s_lshl_b32 s51, s50, 18")
                adv(a, 50, 9)
            r = ACT + (((i % 3) * 2 + s) * 2 + t) * 4
            a(f"s_add_u32 s52, s{47+t}, s51")
            if s: a("s_add_u32 s52, s52, 131072")
            a(f"buffer_load_dwordx4 v[{r}:{r+3}], v{VL16}, {WS_}, s52 offen")
            vm.issue(("A", i))
        return [(lambda s=s, t=t: piece(s, t)) for s in range(2) for t in range(2)]
    for i in range(1, 3):
        for f in dma_pieces(i): f()
    a(f"v_lshrrev_b32 v{T}, 5, v0")
    a(f"v_lshlrev_b32 v{T}, 4, v{T}")
    a(f"v_bfe_u32 v{T+1}, v0, 2, 3")
    a(f"v_add_u32 v{T}, v{T}, v{T+1}")
    a(f"v_mul_u32_u24 v{T}, 288, v{T}")
    a(f"v_and_b32 v{T+1}, 3, v0")
    a(f"v_lshl_add_u32 v{T}, v{T+1}, 3, v{T}")
    a("s_mul_i32 s52, s41, 18432")
    a(f"v_add_u32 v{TRB}, s52, v{T}")
    for k in range(1, 4):
        a(f"v_add_u32 v{TRB+k}, {k*SLOT3}, v{TRB}")
    a("s_lshr_b32 s45, s37, 1")
    a("s_lshl_b32 s45, s45, 2")
    a("s_add_u32 s45, s45, s36")
    a("s_lshl_b32 s45, s45, 6")
    a(f"s_add_u32 s45, s45, {CC()}")
    a("s_lshr_b32 s53, s37, 1")
    a("s_lshl_b32 s53, s53, 6")
    a(f"s_add_u32 s53, s53, {CB()}")
    wait_ctr2(c, 45, 8, 53, 32, T)
    st.stamp()
    for i in range(2):
        for f in a_pieces(i): f()
    pipe = TrPipe(a, WB, 8, 6)
    def boundary(i):
        tags = [("A", i), ("D", i)]
        if 1 <= i < 8: tags.append(("D", i + 1))
        vm.wait(*tags)
        a("s_barrier")
        if i in (0, 1): st.stamp(1)
    def spread(i):
        p = []
        if i + 2 < 9: p += a_pieces(i + 2)
        if i + 3 < 9: p += dma_pieces(i + 3)
        return p
    stages = []
    for i in range(9):
        its = []
        for s in range(2):
            for t9 in range(9):
                def fn(w, i=i, s=s, t9=t9):
                    for t in range(2):
                        d = ACC + (t * 9 + t9) * 4
                        b = ACT + (((i % 3) * 2 + s) * 2 + t) * 4
                        cc = "0" if (i == 0 and s == 0) else f"v[{d}:{d+3}]"
                        a(f"v_mfma_f32_16x16x32_bf16 v[{d}:{d+3}], v[{w}:{w+3}], v[{b}:{b+3}], {cc}")
                o = 32 * s * 288 + 32 * t9
                its.append((TRB + (i + 1) % 4, o, o + 8 * 288, fn))
        stages.append(its)
    run_stages(a, pipe, stages, boundary, spread)
    st.stamp()
    a("s_lshl_b32 s46, s40, 1")
    a("s_add_u32 s47, s46, s41")
    a("s_xor_b32 s48, s47, 1")
    a("s_mul_i32 s49, s47, 9216")
    a("s_mul_i32 s48, s48, 9216")
    a(f"s_add_u32 s50, s49, {2*SLOT3}")
    a(f"s_add_u32 s48, s48, {2*SLOT3}")
    a(f"v_add_u32 v{T}, s50, v{VL16}")
    a(f"v_add_u32 v{T+1}, s48, v{VL16}")
    a.nop(4)
    for t9 in range(9):
        d = ACC + (9 + t9) * 4
        a(f"ds_write_b128 v{T}, v[{d}:{d+3}] offset:{t9*1024}")
    a("s_lshl_b32 s46, s37, 2")
    a("s_add_u32 s46, s46, s39")
    a("s_lshl_b32 s50, s46, 2")
    a("s_add_u32 s50, s50, s36")
    a("s_mul_i32 s50, s50, 73728")
    a("s_add_u32 s50, s50, s49")
    a(f"s_add_u32 s50, s50, {wso('PART')}")
    a("s_add_u32 s51, s50, 4096")
    a("s_add_u32 s52, s50, 8192")
    a("s_waitcnt lgkmcnt(0)")
    a("s_barrier")
    for t9 in range(9):
        d = ACC + (9 + t9) * 4
        a(f"ds_read_b128 v[{d}:{d+3}], v{T+1} offset:{t9*1024}")
    own = c.sync
    if own:
        labO = a.newlabel("P4OWN"); labD = a.newlabel("P4DONE")
        a("s_cmp_eq_u32 s40, s36")
        a(f"s_cbranch_scc1 {labO}")
    for t9 in range(9):
        d = ACC + t9 * 4; e = ACC + (9 + t9) * 4
        a(f"s_waitcnt lgkmcnt({8-t9})")
        for k in range(4):
            a(f"v_add_f32 v{d+k}, v{d+k}, v{e+k}")
        a(f"buffer_store_dwordx4 v[{d}:{d+3}], v{VL16}, {WS_}, s{50+t9//4} offen offset:{(t9%4)*1024}{SC}")
    if own:
        a(f"s_branch {labD}")
        a.label(labO)
        a("s_mul_i32 s50, s41, 9216")
        a(f"v_add_u32 v{T}, s50, v{VL16}")
        a("s_waitcnt lgkmcnt(0)")
        for t9 in range(9):
            d = ACC + t9 * 4; e = ACC + (9 + t9) * 4
            for k in range(4):
                a(f"v_add_f32 v{d+k}, v{d+k}, v{e+k}")
            a(f"ds_write_b128 v{T}, v[{d}:{d+3}] offset:{t9*1024}")
        a("s_waitcnt lgkmcnt(0)")
        a.label(labD)
    a("s_lshl_b32 s45, s46, 6")
    a(f"s_add_u32 s45, s45, {CD()}")
    signal(c, 45, T)
    st.stamp()

def ph5(c):
    a = c.a; st = c.st
    a("s_bfe_u32 s36, s2, 0x20001")
    a("s_and_b32 s37, s2, 1")
    a("s_lshl_b32 s37, s37, 3")
    a("s_bfe_u32 s38, s2, 0x30003")
    a("s_add_u32 s37, s37, s38")
    a("s_lshr_b32 s39, s2, 6")
    a("s_lshl_b32 s46, s37, 2")
    a("s_add_u32 s46, s46, s39")
    R = Regs(1)
    T = R.alloc(6); VL16 = R.alloc(1); VO = R.alloc(3); VG = R.alloc(1)
    PB = R.alloc(48, 4); XR = R.alloc(6, 2); GB = R.alloc(12, 4)
    a(f"v_lshlrev_b32 v{VL16}, 4, v0")
    a("s_lshl_b32 s40, s37, 7")
    a("s_lshl_b32 s41, s36, 5")
    a("s_add_u32 s40, s40, s41")
    a(f"v_and_b32 v{T}, 15, v0")
    a(f"v_add_u32 v{T}, s40, v{T}")
    a(f"v_mul_u32_u24 v{T}, 1152, v{T}")
    a(f"v_lshrrev_b32 v{VG}, 4, v0")
    a(f"v_lshl_add_u32 v{T}, v{VG}, 3, v{T}")
    a(f"v_lshlrev_b32 v{VG}, 4, v{VG}")
    a("s_mul_i32 s41, s39, 288")
    a(f"s_mov_b32 s53, {wso('X1')}")
    for q in range(3):
        a(f"s_add_u32 s42, s24, {8*q}")
        a("s_cmp_ge_u32 s42, 9")
        a("s_cselect_b32 s43, 1, 0")
        a("s_mul_i32 s44, s43, 9")
        a("s_sub_u32 s44, s42, s44")
        a(f"s_mul_i32 s47, s43, {16*1152}")
        a("s_lshl_b32 s48, s44, 5")
        a("s_add_u32 s47, s47, s48")
        a("s_add_u32 s47, s47, s41")
        a("s_cmp_ge_u32 s42, 18")
        a("s_cselect_b32 s47, 0x7f000000, s47")
        a(f"v_add_u32 v{VO+q}, s47, v{T}")
        a(f"buffer_load_dwordx2 v[{XR+2*q}:{XR+2*q+1}], v{VO+q}, {WS_}, s53 offen{SC}")
        a("s_lshl_b32 s48, s44, 6")
        a("s_mul_i32 s49, s39, 576")
        a("s_add_u32 s48, s48, s49")
        a(f"s_add_u32 s48, s48, {wso('MOD') + 5*576*4}")
        a(f"buffer_load_dwordx4 v[{GB+4*q}:{GB+4*q+3}], v{VG}, {WS_}, s48 offen{SC}")
    a("s_lshl_b32 s45, s46, 6")
    a(f"s_add_u32 s45, s45, {CD()}")
    wait_ctr(c, 45, 4, T + 1)
    st.stamp()
    a("s_mul_i32 s50, s46, 294912")
    a("s_mul_i32 s51, s36, 18432")
    a("s_add_u32 s50, s50, s51")
    a("s_lshl_b32 s51, s24, 10")
    a("s_add_u32 s50, s50, s51")
    a(f"s_add_u32 s50, s50, {wso('PART')}")
    nsrc = 3 if c.sync else 4
    if c.sync:
        a("s_lshl_b32 s51, s24, 10")
        a(f"v_add_u32 v{T+3}, s51, v{VL16}")
        for q in range(3):
            r = PB + (q * 4 + 3) * 4
            a(f"ds_read_b128 v[{r}:{r+3}], v{T+3} offset:{q*8192}")
        for src in range(3):
            a(f"s_add_u32 s{54+src}, s36, {src+1}")
            a(f"s_and_b32 s{54+src}, s{54+src}, 3")
            a(f"s_mul_i32 s{54+src}, s{54+src}, 73728")
            a(f"s_add_u32 s{54+src}, s{54+src}, s50")
    for q in range(3):
        for src in range(nsrc):
            r = PB + (q * 4 + src) * 4
            if c.sync:
                a(f"s_add_u32 s51, s{54+src}, {q*8192}")
            else:
                a(f"s_add_u32 s51, s50, {src*73728 + q*8192}")
            a(f"buffer_load_dwordx4 v[{r}:{r+3}], v{VL16}, {WS_}, s51 offen{SC}")
    a("s_waitcnt lgkmcnt(0)")
    for q in range(3):
        a(f"s_waitcnt vmcnt({nsrc*(2-q)+q})")
        p = PB + q * 16
        for e in range(4):
            a(f"v_add_f32 v{p+e}, v{p+e}, v{p+4+e}")
            a(f"v_add_f32 v{p+8+e}, v{p+8+e}, v{p+12+e}")
            a(f"v_add_f32 v{p+e}, v{p+e}, v{p+8+e}")
        for d in range(2):
            x = XR + 2 * q + d
            a(f"v_lshlrev_b32 v{T+1}, 16, v{x}")
            a(f"v_and_b32 v{T+2}, 0xffff0000, v{x}")
            a(f"v_fmac_f32 v{T+1}, v{GB+4*q+2*d}, v{p+2*d}")
            a(f"v_fmac_f32 v{T+2}, v{GB+4*q+2*d+1}, v{p+2*d+1}")
            a(f"v_cvt_pk_bf16_f32 v{x}, v{T+1}, v{T+2}")
        a(f"buffer_store_dwordx2 v[{XR+2*q}:{XR+2*q+1}], v{VO+q}, {OUT_}, 0 offen")

LDS_MEGA = 163840
def gen_split(a):
    def wrap(name, fn):
        a.begin_kernel(name)
        end = name.upper() + "_END"
        st = Stamper(a, name[:-7])
        c = Ctx(a, False, st)
        prologue(a, end)
        st.stamp()
        fn(c)
        st.finish(24, 1)
        a.label(end)
        a.end_kernel(name, vgpr=256, sgpr=102, grid=256, block=512, lds=LDS_MEGA)
    wrap("p12_kernel", ph12)
    wrap("p2w_kernel", lambda c: ph2w(c, True))
    wrap("p2c_kernel", lambda c: ph2c(c, ph2w(c, True)))
    wrap("p3_kernel", ph3)
    wrap("p4_kernel", ph4)
    wrap("p5_kernel", ph5)

def gen_mega(a):
    name = "pmega_kernel"
    a.begin_kernel(name)
    st = Stamper(a, "mega", wg=int(os.environ.get("STAMP_WG", "0")))
    st.level = int(os.environ.get('STAMP_LEVEL', '0'))
    c = Ctx(a, True, st)
    prologue(a, "MEGA_END")
    st.stamp()
    ph12(c)
    r = ph2w(c)
    ph2c(c, r)
    ph3(c)
    ph4(c)
    ph5(c)
    st.finish(24, 1)
    a.label("MEGA_END")
    a.end_kernel(name, vgpr=256, sgpr=102, grid=256, block=512, lds=LDS_MEGA)
```

```python
class Asm:
    def __init__(self):
        self.lines = []
        self.kernels = []
        self.launches = []
        self._lab = 0
    def __call__(self, s=""):
        for ln in s.split("\n"):
            ln = ln.strip()
            if ln:
                self.lines.append("    " + ln)
    def label(self, name):
        self.lines.append(name + ":")
    def newlabel(self, p="L"):
        self._lab += 1
        return f"{p}_{self._lab}"
    def nop(self, n):
        while n > 0:
            k = min(n, 16)
            self(f"s_nop {k-1}")
            n -= k
    @property
    def nk(self): return len(self.kernels)
    def begin_kernel(self, name):
        self.lines.append(f".globl {name}")
        self.lines.append(".p2align 8")
        self.lines.append(f".type {name},@function")
        self.lines.append(f"{name}:")
    def end_kernel(self, name, vgpr, sgpr=102, accum=None, grid=None, block=None, lds=0):
        self("s_endpgm")
        if accum is None:
            accum = (vgpr + 3) // 4 * 4
        self.kernels.append((name, vgpr, sgpr, accum))
        self.launches.append(f"; @launch kernel={name} grid=({grid},1,1) block=({block},1,1) lds={lds}")
    def text(self, header):
        out = [header.rstrip("\n")]
        out += self.launches
        out.append('.amdgcn_target "amdgcn-amd-amdhsa--gfx950"')
        out.append(".text")
        out += self.lines
        out.append('.section .rodata,"a"')
        for name, vgpr, sgpr, accum in self.kernels:
            out.append(".p2align 6")
            out.append(f".amdhsa_kernel {name}")
            out.append(f"  .amdhsa_next_free_vgpr {vgpr}")
            out.append(f"  .amdhsa_next_free_sgpr {sgpr}")
            out.append(f"  .amdhsa_accum_offset {accum}")
            out.append("  .amdhsa_group_segment_fixed_size 0")
            out.append("  .amdhsa_kernarg_size 96")
            out.append("  .amdhsa_user_sgpr_count 2")
            out.append("  .amdhsa_user_sgpr_kernarg_segment_ptr 1")
            out.append("  .amdhsa_system_sgpr_workgroup_id_x 1")
            out.append(".end_amdhsa_kernel")
        return "\n".join(out) + "\n"

def vr(b, n=1):
    return f"v{b}" if n == 1 else f"v[{b}:{b+n-1}]"
def sr(b, n=1):
    return f"s{b}" if n == 1 else f"s[{b}:{b+n-1}]"
def ar(b, n=1):
    return f"a{b}" if n == 1 else f"a[{b}:{b+n-1}]"

class Regs:
    def __init__(self, start=0, limit=256):
        self.n = start; self.limit = limit; self.hi = start
    def alloc(self, n=1, align=1):
        b = (self.n + align - 1) // align * align
        self.n = b + n
        self.hi = max(self.hi, self.n)
        assert self.n <= self.limit, f"out of regs {self.n} > {self.limit}"
        return b
    def mark(self): return self.n
    def release(self, m): self.n = m

KA = dict(x=0, wqkv=8, wo=16, bx=24, w1=32, w3=40, w2=48, c=56, wmod=64, out=72, dbg=80, ws=88)

WS = dict(
    FLAGS=(0x0, 0x4000),
    MOD=(0x4000, 3456 * 4),
    MODF1=(0x8000, 18 * 4 * 2 * 16),
    MODB=(0xA000, 3456 * 2),
    ST=(0x10000, 64 * 4 * 32 * 8),
    WOP=(0x100000, 663552),
    XH=(0x200000, 2359296),
    OF=(0x500000, 2359296),
    X1=(0x800000, 2359296),
    H2=(0xB00000, 2359296),
    WQP=(0xE00000, 1990656),
    HH=(0x1200000, 18874368),
    PART=(0x2400000, 4 * 4718592),
)
WS_END = 0x2400000 + 4 * 4718592
def CA(): return 0
def CS(): return 64 * 64
def CB(): return 128 * 64
def CC(): return 136 * 64
def CD(): return 168 * 64

def srd_from_ptr(a, dst, ptr, size):
    a(f"s_mov_b32 s{dst}, s{ptr}")
    a(f"s_and_b32 s{dst+1}, s{ptr+1}, 0xffff")
    a(f"s_mov_b32 s{dst+2}, {size}")
    a(f"s_mov_b32 s{dst+3}, 0x00020000")

def srd_ws(a, dst, wsptr, name):
    off, size = WS[name]
    a(f"s_add_u32 s{dst}, s{wsptr}, {off}")
    a(f"s_addc_u32 s{dst+1}, s{wsptr+1}, 0")
    a(f"s_and_b32 s{dst+1}, s{dst+1}, 0xffff")
    a(f"s_mov_b32 s{dst+2}, {size}")
    a(f"s_mov_b32 s{dst+3}, 0x00020000")

def bf16_round(a, dst, src):
    a(f"v_cvt_pk_bf16_f32 v{dst}, v{src}, v{src}")
    a(f"v_lshlrev_b32 v{dst}, 16, v{dst}")

def swz(xor):
    return (xor << 10) | 0x1F

import os
STAMPS = os.environ.get("STAMPS", "")
class Stamper:
    level = 9
    def __init__(self, a, kname, wg=0):
        self.a = a; self.on = kname in STAMPS.split(",")
        self.n = 0; self.wg = wg
        self.all = bool(os.environ.get("STAMP_ALL"))
    def stamp(self, l=0):
        if not self.on or l > self.level: return
        self.seen = getattr(self, "seen", 0) + 1
        if 1 < self.seen <= 1 + int(os.environ.get("STAMP_SKIP", "0")): return
        if self.n >= 16: return
        self.a("s_memrealtime s[100:101]" if self.all else "s_memtime s[100:101]")
        self.a("s_waitcnt lgkmcnt(0)")
        self.a(f"s_mov_b32 s{84+self.n}, s100")
        self.n += 1
    def finish(self, wave_sgpr, vtmp):
        if not self.on: return
        a = self.a
        self.stamp()
        lab = a.newlabel("STAMP_SKIP")
        a(f"s_cmp_lg_u32 s{wave_sgpr}, {int(os.environ.get('STAMP_WAVE','0'))}")
        a(f"s_cbranch_scc1 {lab}")
        a("s_mov_b64 exec, -1")
        if os.environ.get("STAMP_DBG"):
            a(f"s_cmp_lg_u32 s2, {self.wg}")
            a(f"s_cbranch_scc1 {lab}")
            a(f"v_mov_b32 v{vtmp}, 0")
            for i in range(1, min(self.n, 16)):
                a(f"s_sub_u32 s68, s{84+i}, s84")
                a(f"v_mov_b32 v{vtmp+1}, s68")
                a(f"buffer_store_dword v{vtmp+1}, v{vtmp}, s[72:75], 0 offen offset:{4*i}")
        elif self.all:
            a("s_load_dwordx2 s[64:65], s[0:1], 88")
            a("s_waitcnt lgkmcnt(0)")
            a("s_add_u32 s60, s64, 0x8000000"); a("s_addc_u32 s61, s65, 0"); a("s_and_b32 s61, s61, 0xffff"); a("s_mov_b32 s62, 0x10000"); a("s_mov_b32 s63, 0x00020000")
            a("s_lshl_b32 s68, s2, 6")
            a(f"v_mov_b32 v{vtmp}, s68")
            for i in range(self.n):
                a(f"v_mov_b32 v{vtmp+1}, s{84+i}")
                a(f"buffer_store_dword v{vtmp+1}, v{vtmp}, s[60:63], 0 offen offset:{4*i}")
        else:
            a(f"s_cmp_lg_u32 s2, {self.wg}")
            a(f"s_cbranch_scc1 {lab}")
            a("s_load_dwordx2 s[64:65], s[0:1], 88")
            a("s_waitcnt lgkmcnt(0)")
            a("s_add_u32 s60, s64, 0x8000000"); a("s_addc_u32 s61, s65, 0"); a("s_and_b32 s61, s61, 0xffff"); a("s_mov_b32 s62, 0x10000"); a("s_mov_b32 s63, 0x00020000")
            a(f"v_mov_b32 v{vtmp}, {64*self.a.nk}")
            for i in range(self.n):
                a(f"s_sub_u32 s68, s{84+i}, s84")
                a(f"v_mov_b32 v{vtmp+1}, s68")
                a(f"buffer_store_dword v{vtmp+1}, v{vtmp}, s[60:63], 0 offen offset:{4*i}")
        a.label(lab)
```

```python
from fw import *
from gemm_common import *
from k_p0 import ln_scalars, np_f32
import os
NLOG2E = 0xbfb8aa3b
X_, WQKV_, W13_, W2_, OUT_, WS_, XH_ = "s[4:7]", "s[8:11]", "s[12:15]", "s[16:19]", "s[20:23]", "s[28:31]", "s[32:35]"
def wso(n): return WS[n][0]
WOF = 156
SC = " sc1"
DBG = os.environ.get("DBG", "").split(",")
_OPT = dict(warm="late", spr="20", early="1", nrs="0")
_OPT.update(dict(kv.split("=") for kv in os.environ.get("OPT", "").split(",") if kv))
def OPT(k): return _OPT[k]

class Ctx:
    def __init__(self, a, sync, st):
        self.a = a; self.sync = sync; self.st = st

def prologue(a, end, warm=False):
    if warm:
        a("s_getpc_b64 s[76:77]")
        a.label("MEGA_PC")
        a("v_lshlrev_b32 v2, 7, v0")
        a("s_sub_u32 s76, s76, MEGA_PC-pmega_kernel")
        a("s_subb_u32 s77, s77, 0")
        a("v_min_u32 v2, MEGA_END-pmega_kernel, v2")
        a("global_load_dword v255, v2, s[76:77]")
    a("s_cmp_ge_u32 s2, 256")
    a(f"s_cbranch_scc1 {end}")
    a("s_load_dwordx4 s[36:39], s[0:1], 0")
    a("s_load_dwordx4 s[40:43], s[0:1], 32")
    a("s_load_dwordx2 s[44:45], s[0:1], 48")
    a("s_load_dwordx2 s[46:47], s[0:1], 72")
    a("s_load_dwordx2 s[48:49], s[0:1], 88")
    a("s_load_dwordx2 s[50:51], s[0:1], 16")
    a("s_load_dwordx4 s[52:55], s[0:1], 56")
    a("s_load_dwordx2 s[56:57], s[0:1], 80")
    a("v_lshrrev_b32 v1, 6, v0")
    a("v_and_b32 v0, 63, v0")
    a("v_readfirstlane_b32 s24, v1")
    a("s_waitcnt lgkmcnt(0)")
    srd_from_ptr(a, 4, 36, 2048 * 1152)
    srd_from_ptr(a, 8, 38, 576 * 3456)
    a("s_cmp_lt_u32 s24, 4")
    a("s_cselect_b32 s12, s40, s42")
    a("s_cselect_b32 s13, s41, s43")
    a("s_and_b32 s13, s13, 0xffff")
    a(f"s_mov_b32 s14, {576*9216}")
    a("s_mov_b32 s15, 0x00020000")
    srd_from_ptr(a, 16, 44, 4608 * 1152)
    srd_from_ptr(a, 20, 46, 2048 * 1152)
    srd_from_ptr(a, 28, 48, WS_END)
    srd_from_ptr(a, 60, 54, 576 * 6912)
    srd_from_ptr(a, 64, 52, 1152)
    srd_from_ptr(a, 68, 50, 576 * 1152)
    srd_from_ptr(a, 72, 56, 256)

def signal(c, soff, vt, pending=0):
    a = c.a
    a(f"s_waitcnt vmcnt({pending})")
    if not c.sync:
        return
    a("s_barrier")
    lab = a.newlabel("SIG")
    a("s_cmp_lg_u32 s24, 0")
    a(f"s_cbranch_scc1 {lab}")
    a(f"v_mov_b32 v{vt}, 1")
    a("s_mov_b64 exec, 1")
    a(f"buffer_atomic_add v{vt}, off, {WS_}, s{soff} sc1")
    a("s_mov_b64 exec, -1")
    a.label(lab)

def wait_ctr(c, soff, target, vt):
    a = c.a
    if not c.sync:
        return
    done = a.newlabel("WDONE"); loop = a.newlabel("WLOOP")
    a("s_cmp_lg_u32 s24, 0")
    a(f"s_cbranch_scc1 {done}")
    a("s_mov_b32 s56, 0")
    a.label(loop)
    a(f"buffer_load_dword v{vt}, off, {WS_}, s{soff} sc1")
    a("s_waitcnt vmcnt(0)")
    a(f"v_readfirstlane_b32 s57, v{vt}")
    a("s_add_u32 s56, s56, 1")
    a(f"s_cmp_ge_u32 s57, {target}")
    a(f"s_cbranch_scc1 {done}")
    a("s_cmp_gt_u32 s56, 0x400000")
    a(f"s_cbranch_scc1 {done}")
    a("s_sleep 1")
    a(f"s_branch {loop}")
    a.label(done)
    a("s_barrier")

def umax_chain(a, regs, tmp):
    regs = list(regs)
    if len(regs) == 1:
        a(f"v_mov_b32 v{tmp}, v{regs[0]}"); return
    if len(regs) == 2:
        a(f"v_max_u32 v{tmp}, v{regs[0]}, v{regs[1]}"); return
    a(f"v_max3_u32 v{tmp}, v{regs[0]}, v{regs[1]}, v{regs[2]}")
    regs = regs[3:]
    while regs:
        if len(regs) == 1:
            a(f"v_max_u32 v{tmp}, v{tmp}, v{regs[0]}"); regs = []
        else:
            a(f"v_max3_u32 v{tmp}, v{tmp}, v{regs[0]}, v{regs[1]}"); regs = regs[2:]

def poll_loads(c, issue, regs, tmp):
    a = c.a
    if not c.sync:
        issue(); a("s_waitcnt vmcnt(0)"); return
    loop = a.newlabel("PL"); done = a.newlabel("PLD")
    a("s_mov_b32 s56, 0")
    a.label(loop)
    issue()
    a("s_waitcnt vmcnt(0)")
    umax_chain(a, regs, tmp)
    a(f"v_cmp_eq_u32 vcc, -1, v{tmp}")
    a("s_add_u32 s56, s56, 1")
    a("s_nop 0")
    a(f"s_cbranch_vccz {done}")
    a("s_cmp_gt_u32 s56, 0x400000")
    a(f"s_cbranch_scc1 {done}")
    a("s_sleep 1")
    a(f"s_branch {loop}")
    a.label(done)

def arrive(c, soff, vt):
    a = c.a
    if not c.sync: return
    lab = a.newlabel("ARR")
    a("s_cmp_lg_u32 s24, 0")
    a(f"s_cbranch_scc1 {lab}")
    a(f"v_mov_b32 v{vt}, 1")
    a("s_mov_b64 exec, 1")
    a(f"buffer_atomic_add v{vt}, off, {WS_}, s{soff} sc1")
    a("s_mov_b64 exec, -1")
    a.label(lab)

def wait_ctr2(c, s1, t1, s2, t2, vt):
    a = c.a
    if not c.sync: return
    done = a.newlabel("WDONE"); loop = a.newlabel("WLOOP"); more = a.newlabel("WMORE")
    a("s_cmp_lg_u32 s24, 0")
    a(f"s_cbranch_scc1 {done}")
    a("s_mov_b32 s56, 0")
    a.label(loop)
    a(f"buffer_load_dword v{vt}, off, {WS_}, s{s1} sc1")
    a(f"buffer_load_dword v{vt+1}, off, {WS_}, s{s2} sc1")
    a("s_waitcnt vmcnt(0)")
    a(f"v_readfirstlane_b32 s57, v{vt}")
    a(f"v_readfirstlane_b32 s58, v{vt+1}")
    a("s_add_u32 s56, s56, 1")
    a(f"s_cmp_lt_u32 s57, {t1}")
    a(f"s_cbranch_scc1 {more}")
    a(f"s_cmp_ge_u32 s58, {t2}")
    a(f"s_cbranch_scc1 {done}")
    a.label(more)
    a("s_cmp_gt_u32 s56, 0x400000")
    a(f"s_cbranch_scc1 {done}")
    a("s_sleep 1")
    a(f"s_branch {loop}")
    a.label(done)
    a("s_barrier")

def prefill(c, B):
    a = c.a
    for i in range(4): a(f"v_mov_b32 v{B+8+i}, -1")
    a("s_mul_i32 s76, s37, 36864")
    a(f"s_add_u32 s77, s76, {wso('OF')}")
    a(f"s_add_u32 s78, s76, {wso('H2')}")
    a("s_mul_i32 s79, s36, 18")
    a("s_lshl_b32 s76, s24, 6")
    a(f"v_add_u32 v{B}, s76, v0")
    lab = a.newlabel("PF")
    for ps in range(2):
        if ps == 1:
            a("s_cmp_lg_u32 s24, 1")
            a(f"s_cbranch_scc1 {lab}")
            a(f"v_add_u32 v{B}, 512, v0")
        a(f"v_and_b32 v{B+1}, 31, v{B}")
        a(f"v_lshrrev_b32 v{B+2}, 5, v{B}")
        a(f"v_add_u32 v{B+2}, s79, v{B+2}")
        a(f"v_lshrrev_b32 v{B+3}, 4, v{B+1}")
        a(f"v_mul_u32_u24 v{B+3}, 1152, v{B+3}")
        a(f"v_lshl_add_u32 v{B+3}, v{B+2}, 4, v{B+3}")
        a(f"v_and_b32 v{B+4}, 15, v{B+1}")
        a(f"v_add_u32 v{B+3}, v{B+3}, v{B+4}")
        a(f"v_lshlrev_b32 v{B+3}, 4, v{B+3}")
        a(f"buffer_store_dwordx4 v[{B+8}:{B+11}], v{B+3}, {WS_}, s77 offen{SC}")
    a("s_lshl_b32 s76, s37, 10")
    a("s_lshl_b32 s77, s36, 8")
    a("s_add_u32 s76, s76, s77")
    a(f"s_add_u32 s76, s76, {wso('ST')}")
    a(f"v_lshlrev_b32 v{B+1}, 4, v0")
    a("s_mov_b64 exec, 0xffff")
    a(f"buffer_store_dwordx4 v[{B+8}:{B+11}], v{B+1}, {WS_}, s76 offen{SC}")
    a("s_mov_b64 exec, -1")
    a.label(lab)

def warm_w13(c, T):
    a = c.a
    a("s_lshr_b32 s76, s2, 5")
    a("s_lshl_b32 s76, s76, 2")
    a("s_and_b32 s77, s24, 3")
    a("s_add_u32 s76, s76, s77")
    a("s_mul_i32 s76, s76, 54")
    a(f"v_add_u32 v{T}, s76, v0")
    a(f"v_mul_u32_u24 v{T+1}, 21846, v{T}")
    a(f"v_lshrrev_b32 v{T+1}, 16, v{T+1}")
    a(f"v_mul_u32_u24 v{T+2}, 3, v{T+1}")
    a(f"v_sub_u32 v{T}, v{T}, v{T+2}")
    a(f"v_mul_u32_u24 v{T}, 142, v{T}")
    a(f"v_and_b32 v{T}, 0x1fc, v{T}")
    a(f"v_mul_u32_u24 v{T+1}, 9216, v{T+1}")
    a(f"v_add_u32 v{T}, v{T}, v{T+1}")
    a("s_and_b32 s76, s2, 31")
    a("s_mul_i32 s76, s76, 288")
    a("s_mov_b32 exec_hi, 0x3fffff")
    a(f"buffer_load_dword v155, v{T}, {W13_}, s76 offen")
    a("s_mov_b64 exec, -1")

def warm_w2(c, T):
    a = c.a
    a("s_bfe_u32 s56, s2, 0x30003")
    a("s_lshl_b32 s56, s56, 3")
    a("s_add_u32 s56, s56, s24")
    a("s_mul_i32 s56, s56, 54")
    a(f"v_add_u32 v{T}, s56, v0")
    a(f"v_mul_u32_u24 v{T+1}, 21846, v{T}")
    a(f"v_lshrrev_b32 v{T+1}, 16, v{T+1}")
    a(f"v_mul_u32_u24 v{T+2}, 3, v{T+1}")
    a(f"v_sub_u32 v{T}, v{T}, v{T+2}")
    a(f"v_mul_u32_u24 v{T}, 142, v{T}")
    a(f"v_and_b32 v{T}, 0x1fc, v{T}")
    a(f"v_mul_u32_u24 v{T+1}, 1152, v{T+1}")
    a(f"v_add_u32 v{T}, v{T}, v{T+1}")
    a("s_bfe_u32 s56, s2, 0x20001")
    a(f"s_mul_i32 s56, s56, {1152*1152}")
    a("s_lshr_b32 s57, s2, 6")
    a("s_mul_i32 s57, s57, 288")
    a("s_add_u32 s56, s56, s57")
    a("s_mov_b32 exec_hi, 0x3fffff")
    a(f"buffer_load_dword v{T+3}, v{T}, {W2_}, s56 offen")
    a("s_mov_b64 exec, -1")

def adv(a, r, n):
    a(f"s_add_u32 s{r}, s{r}, 1")
    a(f"s_cmp_ge_u32 s{r}, {n}")
    a(f"s_cselect_b32 s{r}, 0, s{r}")

QSLOT = 30720
NQS = 5
COEFOFF = NQS * QSLOT
QSTR = 1744
OSTR = 304
class Sprinkle:
    def __init__(self, a, q, period):
        self.a = a; self.q = list(q); self.period = period; self.n = 0; self.busy = False
    def __call__(self, s):
        self.a(s)
        if self.busy: return
        self.n += 1
        if self.q and self.n % self.period == 0 and "exec" not in s and "vcc" not in s and "s_cmp" not in s and "s_nop" not in s:
            self.busy = True; self.q.pop(0)(); self.busy = False
    def flush(self):
        while self.q: self.q.pop(0)()
    def __getattr__(self, k): return getattr(self.a, k)

H1OFF = 4 * 27648
SCR = H1OFF + 27648
def red_g(a, vals, tmp):
    for op in ("v_permlane16_swap_b32", "v_permlane32_swap_b32"):
        for i, v in enumerate(vals): a(f"v_mov_b32 v{tmp+i}, v{v}")
        a("s_nop 1")
        for i, v in enumerate(vals): a(f"{op} v{v}, v{tmp+i}")
        for i, v in enumerate(vals): a(f"v_add_f32 v{v}, v{v}, v{tmp+i}")

def ph12(c):
    a = c.a; st = c.st
    a("s_and_b32 s36, s2, 3")
    a("s_bfe_u32 s37, s2, 0x10002")
    a("s_lshl_b32 s37, s37, 5")
    a("s_lshr_b32 s38, s2, 3")
    a("s_add_u32 s37, s37, s38")
    R = Regs(1, 155)
    T = R.alloc(8)
    VD = R.alloc(4)
    VL16 = R.alloc(1)
    VOO = R.alloc(1)
    m0 = R.mark()
    XF = R.alloc(36, 4)
    DD = R.alloc(72, 2)
    CF = R.alloc(24, 4)
    VXA = R.alloc(1); STA = R.alloc(6)
    vm = VmTracker(a)
    if c.sync:
        phase0_loads(c, DD)
        vm.issue("M", 6)
    a("s_lshl_b32 s45, s37, 5")
    a("s_sub_u32 s45, s45, 16")
    a(f"v_and_b32 v{T}, 15, v0")
    a(f"v_add_u32 v{T}, s45, v{T}")
    a("s_mov_b32 s46, 1152")
    a(f"v_mul_lo_u32 v{T}, v{T}, s46")
    a(f"v_lshrrev_b32 v{T+1}, 4, v0")
    a(f"v_lshl_add_u32 v{VXA}, v{T+1}, 4, v{T}")
    a("s_lshl_b32 s46, s24, 6")
    a(f"s_add_u32 s47, s46, {9*64}")
    a("s_mul_i32 s48, s24, 576")
    a(f"s_add_u32 s48, s48, {8*64}")
    a("s_cmp_ge_u32 s24, 2")
    a("s_cselect_b32 s48, 0x7f000000, s48")
    for q in range(3):
        for m in range(3):
            r = XF + (q * 3 + m) * 4
            a(f"v_add_u32 v{T+7}, s{46+q}, v{VXA}")
            if m: a(f"v_add_u32 v{T+7}, {m*16*1152}, v{T+7}")
            a(f"buffer_load_dwordx4 v[{r}:{r+3}], v{T+7}, {X_}, 0 offen")
            vm.issue("X")
    a(f"v_mov_b32 v{VOO}, {48*QSTR}")
    a(f"v_mov_b32 v{WOF}, 0x7f000000")
    a(f"v_lshlrev_b32 v{VL16}, 4, v0")
    a("s_mul_i32 s39, s24, 12")
    for jj in range(4):
        a(f"v_add_u32 v{T}, {64*jj}, v0")
        a(f"v_mul_u32_u24 v{T+1}, 3641, v{T}")
        a(f"v_lshrrev_b32 v{T+1}, 16, v{T+1}")
        a(f"v_mul_u32_u24 v{T+2}, 18, v{T+1}")
        a(f"v_sub_u32 v{T}, v{T}, v{T+2}")
        a(f"v_add_u32 v{T+1}, s39, v{T+1}")
        a(f"v_lshrrev_b32 v{T+2}, 5, v{T+1}")
        a(f"v_bfe_u32 v{T+3}, v{T+1}, 2, 2")
        a(f"v_bfe_u32 v{T+4}, v{T+1}, 4, 1")
        a(f"v_and_b32 v{T+1}, 3, v{T+1}")
        a(f"v_lshl_add_u32 v{T+1}, v{T+3}, 3, v{T+1}")
        a(f"v_lshl_add_u32 v{T+1}, v{T+4}, 2, v{T+1}")
        a(f"v_mul_u32_u24 v{T+1}, 3456, v{T+1}")
        a(f"v_mul_u32_u24 v{T+2}, 1152, v{T+2}")
        a(f"v_add_u32 v{T+1}, v{T+1}, v{T+2}")
        a(f"v_lshl_add_u32 v{VD+jj}, v{T}, 4, v{T+1}")
    a("s_mul_i32 s40, s24, 3456")
    a("s_mul_i32 s41, s36, 288")
    a("s_mul_i32 s42, s38, 57")
    a("s_lshr_b32 s42, s42, 9")
    a("s_mul_i32 s42, s42, 9")
    a("s_sub_u32 s42, s38, s42")
    a("s_mov_b32 s43, s42")
    def dma_pieces(k):
        slot = (k % 4) * 27648
        def piece(jj):
            if jj == 0:
                a(f"s_mul_i32 s44, s42, {32*3456}")
                a(f"s_add_u32 s44, s44, s41")
                if k >= 9: a(f"s_add_u32 s44, s44, {9*32*3456}")
                adv(a, 42, 9)
            a(f"s_add_u32 m0, s40, {slot + jj*1024}")
            a("s_mov_b64 exec, 0xffffff" if jj == 3 else "s_nop 0")
            a(f"buffer_load_dwordx4 v{VD+jj}, {WQKV_}, s44 offen lds")
            if jj == 3: a("s_mov_b64 exec, -1")
            vm.issue(("D", k))
        return [(lambda jj=jj: piece(jj)) for jj in range(4)]
    RST = WOF + 20
    NRS = int(OPT("nrs"))
    def reg_pieces(k):
        def piece(jj):
            if jj == 0:
                a(f"s_mul_i32 s44, s42, {32*3456}")
                a(f"s_add_u32 s44, s44, s41")
                adv(a, 42, 9)
            r = RST + (k - 4) * 16 + jj * 4
            if jj == 3: a("s_mov_b64 exec, 0xffffff")
            a(f"buffer_load_dwordx4 v[{r}:{r+3}], v{VD+jj}, {WQKV_}, s44 offen")
            if jj == 3: a("s_mov_b64 exec, -1")
            vm.issue(("R", k))
        return [(lambda jj=jj: piece(jj)) for jj in range(4)]
    if c.sync:
        phase0(c, DD, T, vm, None)
    a0 = a
    a = Sprinkle(c.a, [f for k in range(4) for f in dma_pieces(k)] + [f for k in range(4, 4 + NRS) for f in reg_pieces(k)], 12)
    a(f"v_mov_b32 v{T}, 0x3f803f80")
    n_before = len(vm.ops)
    if c.sync:
        labX = a.newlabel("P12_XW")
        a.busy = True
        a("s_waitcnt vmcnt(3)")
        a("s_cmp_eq_u32 s24, 0")
        a(f"s_cbranch_scc1 {labX}")
        a("s_waitcnt vmcnt(0)")
        a.label(labX)
        a.busy = False
    else:
        a("s_waitcnt vmcnt(0)")
    for m in range(3):
        first = True
        for q in range(3):
            for d in range(4):
                r = XF + (q * 3 + m) * 4 + d
                a(f"v_dot2_f32_bf16 v{STA+m}, v{r}, v{T}, " + ("0" if first else f"v{STA+m}"))
                first = False
    a.nop(3)
    red_g(a, [STA, STA + 1, STA + 2], T + 1)
    a(f"v_and_b32 v{T}, 15, v0")
    a(f"v_lshlrev_b32 v{T}, 5, v{T}")
    a(f"v_add_u32 v{T}, {SCR + 4096}, v{T}")
    a("s_lshl_b32 s45, s24, 2")
    a(f"v_add_u32 v{T+1}, s45, v{T}")
    def xchg(off):
        for m in range(3):
            a(f"ds_write_b32 v{T+1}, v{STA+m} offset:{off + m*512}")
        a("s_waitcnt lgkmcnt(0)")
        a("s_barrier")
        for m in range(3):
            a(f"ds_read_b128 v[{CF+8*m}:{CF+8*m+3}], v{T} offset:{off + m*512}")
            a(f"ds_read_b128 v[{CF+8*m+4}:{CF+8*m+7}], v{T} offset:{off + m*512 + 16}")
        a("s_waitcnt lgkmcnt(0)")
        for m in range(3):
            b = CF + 8 * m
            for e in range(4): a(f"v_add_f32 v{b+e}, v{b+e}, v{b+4+e}")
            a(f"v_add_f32 v{b}, v{b}, v{b+1}")
            a(f"v_add_f32 v{b+2}, v{b+2}, v{b+3}")
            a(f"v_add_f32 v{STA+m}, v{b}, v{b+2}")
    if c.sync: arrive0(c, a, T + 3, len(vm.ops) - n_before)
    xchg(0)
    for m in range(3):
        a(f"v_mul_f32 v{STA+3+m}, 0x{np_f32(1.0/576):08x}, v{STA+m}")
        a(f"v_mov_b32 v{STA+m}, 0")
    def dpass(q):
        for m in range(3):
            for d in range(4):
                r = XF + (q * 3 + m) * 4 + d; o = DD + ((q * 3 + m) * 4 + d) * 2
                a(f"v_lshlrev_b32 v{o}, 16, v{r}")
                a(f"v_and_b32 v{o+1}, 0xffff0000, v{r}")
                a(f"v_sub_f32 v{o}, v{o}, v{STA+3+m}")
                a(f"v_sub_f32 v{o+1}, v{o+1}, v{STA+3+m}")
                a(f"v_fmac_f32 v{STA+m}, v{o}, v{o}")
                a(f"v_fmac_f32 v{STA+m}, v{o+1}, v{o+1}")
    dpass(0); dpass(1)
    lab = a.newlabel("P12_Q2")
    a.busy = True
    a("s_cmp_ge_u32 s24, 2")
    a(f"s_cbranch_scc1 {lab}")
    dpass(2)
    a.label(lab)
    a.busy = False
    red_g(a, [STA, STA + 1, STA + 2], T + 2)
    xchg(2048)
    for m in range(3):
        ln_scalars(a, mean=STA + 3 + m, ssq=STA + m, rinv=STA + m, corr=STA + 3 + m, tmp=T + 2)
    for i in range(36):
        m = (i // 4) % 3
        for h in range(2):
            a(f"v_fma_f32 v{DD+2*i+h}, v{DD+2*i+h}, v{STA+m}, v{STA+3+m}")
    a.flush()
    a = a0
    st.stamp(1)
    if c.sync:
        wo_pack1(c)
        prefill(c, CF)
        wait0(c, T + 2, 0, 72)
    st.stamp()
    a(f"v_lshrrev_b32 v{T}, 4, v0")
    a(f"v_lshlrev_b32 v{T}, 4, v{T}")
    for q in range(3):
        a(f"s_add_u32 s45, s{46+q}, {wso('MODB')}")
        a(f"buffer_load_dwordx4 v[{CF+8*q}:{CF+8*q+3}], v{T}, {WS_}, s45 offen offset:1152{SC}")
        a(f"buffer_load_dwordx4 v[{CF+8*q+4}:{CF+8*q+7}], v{T}, {WS_}, s45 offen{SC}")
        vm.issue(("C", q), 2)
    for q in range(3):
        vm.wait(("C", q))
        for d in range(4):
            a(f"v_lshlrev_b32 v{T}, 16, v{CF+8*q+d}")
            a(f"v_and_b32 v{T+1}, 0xffff0000, v{CF+8*q+d}")
            a(f"v_lshlrev_b32 v{T+2}, 16, v{CF+8*q+4+d}")
            a(f"v_and_b32 v{T+3}, 0xffff0000, v{CF+8*q+4+d}")
            for m in range(3):
                o = DD + ((q * 3 + m) * 4 + d) * 2
                a(f"v_fma_f32 v{o}, v{o}, v{T}, v{T+2}")
                a(f"v_fma_f32 v{o+1}, v{o+1}, v{T+1}, v{T+3}")
                a(f"v_cvt_pk_bf16_f32 v{XF+(q*3+m)*4+d}, v{o}, v{o+1}")
    R.release(m0)
    XF = R.alloc(36, 4)
    ACC = R.alloc(40, 4); WB = R.alloc(32, 4); AB = R.alloc(24, 4); TB = R.alloc(2); VH = R.alloc(1); VHB = R.alloc(1); VHW = R.alloc(1)
    VW = R.alloc(2)
    a(f"v_add_u32 v{VW}, s40, v{VL16}")
    a(f"v_add_u32 v{VW+1}, {2*27648}, v{VW}")
    a("s_mul_i32 s45, s24, 3072")
    a(f"v_add_u32 v{VHB}, {H1OFF}, v{VL16}")
    a(f"v_add_u32 v{VHW}, s45, v{VHB}")
    def h1_write(half):
        for m in range(3):
            r = XF + (half * 3 + m) * 4
            a(f"ds_write_b128 v{VHW}, v[{r}:{r+3}] offset:{m*1024}")
        lab = a.newlabel("P12_H1")
        a(f"s_cmp_lg_u32 s24, {half}")
        a(f"s_cbranch_scc1 {lab}")
        for m in range(3):
            r = XF + (6 + m) * 4
            a(f"ds_write_b128 v{VHB}, v[{r}:{r+3}] offset:{8*3072 + m*1024}")
        a.label(lab)
        a("s_waitcnt lgkmcnt(0)")
    h1_write(0)
    if c.sync: wo_pack2(c)
    st.stamp(1)
    a(f"v_lshrrev_b32 v{T}, 2, v0")
    a(f"v_mul_u32_u24 v{T}, 288, v{T}")
    a(f"v_and_b32 v{T+1}, 3, v0")
    a(f"v_lshl_add_u32 v{T}, v{T+1}, 3, v{T}")
    a("s_cmp_ge_u32 s24, 3")
    a("s_cselect_b32 s49, 2, 1")
    a("s_cselect_b32 s50, 3, 0")
    a("s_sub_u32 s50, s24, s50")
    a("s_mul_i32 s50, s50, 3")
    a("s_sub_u32 s45, s24, 6")
    a("s_mul_i32 s45, s45, 5")
    a("s_cmp_ge_u32 s24, 6")
    a("s_cselect_b32 s49, 0, s49")
    a("s_cselect_b32 s50, s45, s50")
    a("s_mul_i32 s45, s49, 9216")
    a("s_lshl_b32 s46, s50, 5")
    a("s_add_u32 s45, s45, s46")
    a(f"v_add_u32 v{TB}, s45, v{T}")
    a(f"v_add_u32 v{TB+1}, {2*27648}, v{TB}")
    vm_save = list(vm.ops)
    labB = a.newlabel("P12_GB"); labE = a.newlabel("P12_GE")
    a("s_cmp_ge_u32 s24, 6")
    a(f"s_cbranch_scc1 {labB}")
    def gemm(NT, ms):
        lt = LTracker(a)
        vm.ops = list(vm_save)
        D = NT
        cnt = [0]; wreg = {}; pend = []
        def run(ks):
            items = [(k, n) for k in ks for n in range(NT)]
            def issue(idx):
                k, n = items[idx]
                if n == 0:
                    if 4 <= k < 4 + NRS: lt.wait(("S", k))
                    else: vm.wait(("D", k))
                    if "nobar" not in DBG or k in (0, 9): a("s_barrier")
                    if c.sync and NT == 3 and k == (5 if NRS == 0 else 10):
                        labZ = a.newlabel("P12_ARR2")
                        a("s_cmp_lg_u32 s24, 0")
                        a(f"s_cbranch_scc1 {labZ}")
                        a(f"v_mov_b32 v{T}, 1")
                        a("s_and_b32 s76, s2, 1")
                        a("s_lshl_b32 s76, s76, 6")
                        a("s_add_u32 s76, s76, 128")
                        a("s_mov_b64 exec, 1")
                        a(f"buffer_atomic_add v{T}, off, s[72:75], s76 sc1")
                        a("s_mov_b64 exec, -1")
                        a.label(labZ)
                    a("s_mul_i32 s45, s43, 3072")
                    adv(a, 43, 9)
                    a(f"v_add_u32 v{VH}, s45, v{VHB}")
                    for m in ms:
                        r = AB + ((k % 2) * 3 + m) * 4
                        lt.issue(("A", k), f"ds_read_b128 v[{r}:{r+3}], v{VH} offset:{m*1024}")
                    if 2 <= k and k + 2 < 4 + NRS:
                        def wpiece(jj, kk=k + 2):
                            if jj == 0: vm.wait(("R", kk))
                            r = RST + (kk - 4) * 16 + jj * 4
                            sl = kk % 4
                            if jj == 3: a("s_mov_b64 exec, 0xffffff")
                            lt.issue(("S", kk), f"ds_write_b128 v{VW+sl//2}, v[{r}:{r+3}] offset:{(sl%2)*27648 + jj*1024}")
                            if jj == 3: a("s_mov_b64 exec, -1")
                        pend.extend([(lambda jj=jj, f=wpiece: f(jj)) for jj in range(4)])
                    elif 2 <= k and k + 2 < 18:
                        pend.extend(dma_pieces(k + 2))
                w = WB + 4 * (cnt[0] % 8); cnt[0] += 1
                wreg[(k, n)] = w
                sl = k % 4
                o = (sl % 2) * 27648 + n * 32
                lt.issue((k, n), f"ds_read_b64_tr_b16 v[{w}:{w+1}], v{TB+sl//2} offset:{o}")
                lt.issue((k, n), f"ds_read_b64_tr_b16 v[{w+2}:{w+3}], v{TB+sl//2} offset:{o + 16*288}")
            for idx in range(D): issue(idx)
            for idx, (k, n) in enumerate(items):
                if idx + D < len(items): issue(idx + D)
                lt.wait((k, n), ("A", k))
                w = wreg[(k, n)]
                for mi, m in enumerate(ms):
                    d = ACC + (n * len(ms) + mi) * 4; b = AB + ((k % 2) * 3 + m) * 4
                    cc = "0" if k == 0 else f"v[{d}:{d+3}]"
                    a(f"v_mfma_f32_16x16x32_bf16 v[{d}:{d+3}], v[{w}:{w+3}], v[{b}:{b+3}], {cc}")
                for _ in range(2 if NT == 3 else 1):
                    if pend: pend.pop(0)()
        run(range(0, 9))
        a("s_barrier")
        h1_write(1)
        run(range(9, 18))
        assert not pend
        a("s_barrier")
        a.nop(4)
        a(f"v_and_b32 v{T}, 15, v0")
        a(f"v_mul_u32_u24 v{T}, {QSTR}, v{T}")
        a(f"v_lshrrev_b32 v{T+1}, 4, v0")
        a(f"v_lshl_add_u32 v{T}, v{T+1}, 4, v{T}")
        a("s_mul_i32 s45, s49, 576")
        a("s_lshl_b32 s46, s50, 6")
        a("s_add_u32 s45, s45, s46")
        a(f"v_add_u32 v{T}, s45, v{T}")
        for n in range(NT):
            if NT == 5 and n == 4:
                labS = a.newlabel("P12_S")
                a("s_cmp_eq_u32 s24, 7")
                a(f"s_cbranch_scc1 {labS}")
            for mi, m in enumerate(ms):
                d = ACC + (n * len(ms) + mi) * 4
                a(f"ds_write_b128 v{T}, v[{d}:{d+3}] offset:{m*16*QSTR + n*64}")
        if NT == 5: a.label(labS)
    gemm(3, [0, 1, 2])
    a(f"s_branch {labE}")
    a.label(labB)
    gemm(5, [1, 2])
    a.label(labE)
    if c.sync:
        wait0(c, T + 2, 128, 256)
        if OPT("warm") == "late": warm_w13(c, VD3)
    st.stamp()
    a = Sprinkle(c.a, wof_pieces(c, VL16), int(OPT('spr')))
    R.release(m0)
    Q = R.alloc(18, 2); KB = R.alloc(72, 2); LG = R.alloc(8, 2); O = R.alloc(18, 2); P = R.alloc(8, 2)
    VR = R.alloc(1); VQ = R.alloc(1); VK = R.alloc(1)
    a(f"v_lshrrev_b32 v{VR}, 4, v0")
    a("s_lshl_b32 s45, s24, 2")
    a(f"v_add_u32 v{VR}, s45, v{VR}")
    a(f"v_bfe_u32 v{T}, v0, 1, 3")
    a(f"v_mul_u32_u24 v{T}, 72, v{T}")
    a(f"v_mul_u32_u24 v{VQ}, {QSTR}, v{VR}")
    a(f"v_add_u32 v{VQ}, v{VQ}, v{T}")
    a(f"v_and_b32 v{T+1}, 1, v0")
    a(f"v_mul_u32_u24 v{T+2}, {8*QSTR}, v{T+1}")
    a(f"v_sub_u32 v{VK}, v{VQ}, v{T+2}")
    a(f"v_add_u32 v{VK}, {10*QSTR}, v{VK}")
    a("s_waitcnt lgkmcnt(0)")
    a("s_barrier")
    st.stamp(1)
    lt = LTracker(a)
    for i in range(9):
        lt.issue("q", f"ds_read_b64 v[{Q+2*i}:{Q+2*i+1}], v{VQ} offset:{16*QSTR + 8*i}")
    def rdrow(jj, part, i):
        dst = KB + 18 * jj + 2 * i
        lt.issue((part, jj, i), f"ds_read_b64 v[{dst}:{dst+1}], v{VK} offset:{(6-2*jj)*QSTR + part*576 + 8*i}")
    for i in range(9):
        for jj in range(4): rdrow(jj, 1, i)
    for i in range(9):
        lt.wait("q", (1, 3, i))
        for jj in range(4):
            k = KB + 18 * jj + 2 * i
            if i == 0:
                a(f"v_pk_mul_f32 v[{LG+2*jj}:{LG+2*jj+1}], v[{k}:{k+1}], v[{Q}:{Q+1}]")
            else:
                a(f"v_pk_fma_f32 v[{LG+2*jj}:{LG+2*jj+1}], v[{k}:{k+1}], v[{Q+2*i}:{Q+2*i+1}], v[{LG+2*jj}:{LG+2*jj+1}]")
        for jj in range(4): rdrow(jj, 2, i)
    for jj in range(4):
        a(f"v_add_f32 v{LG+2*jj}, v{LG+2*jj}, v{LG+2*jj+1}")
    labM = a.newlabel("P12_NOMASK")
    a.busy = True
    a("s_cmp_lg_u32 s37, 0")
    a(f"s_cbranch_scc1 {labM}")
    a(f"v_mov_b32 v{T}, 0x{np_f32(-1e9):08x}")
    a(f"v_lshlrev_b32 v{T+2}, 3, v{T+1}")
    for jj in range(4):
        a(f"v_add_u32 v{T+3}, {2*jj}, v{T+2}")
        a(f"v_cmp_le_u32 vcc, v{T+3}, v{VR}")
        a("s_nop 1")
        a(f"v_cndmask_b32 v{LG+2*jj}, v{T}, v{LG+2*jj}, vcc")
    a.label(labM)
    a.busy = False
    cs = np_f32(18 ** -0.5 * 1.4426950408889634)
    a(f"s_mov_b32 s45, 0x{cs:08x}")
    a(f"v_max3_f32 v{T}, v{LG}, v{LG+2}, v{LG+4}")
    a(f"v_max_f32 v{T}, v{T}, v{LG+6}")
    a("s_nop 1")
    a(f"v_max_f32_dpp v{T}, v{T}, v{T} quad_perm:[1,0,3,2] row_mask:0xf bank_mask:0xf")
    a(f"v_mul_f32 v{T}, s45, v{T}")
    for jj in range(4):
        a(f"v_fma_f32 v{LG+2*jj}, v{LG+2*jj}, s45, -v{T}")
    for jj in range(4):
        a(f"v_exp_f32 v{LG+2*jj}, v{LG+2*jj}")
    a("s_nop 0")
    a(f"v_add_f32 v{T}, v{LG}, v{LG+2}")
    a(f"v_add_f32 v{T+2}, v{LG+4}, v{LG+6}")
    a(f"v_add_f32 v{T}, v{T}, v{T+2}")
    a("s_nop 1")
    a(f"v_add_f32_dpp v{T}, v{T}, v{T} quad_perm:[1,0,3,2] row_mask:0xf bank_mask:0xf")
    a(f"v_rcp_f32 v{T}, v{T}")
    a("s_nop 0")
    for jj in range(4):
        a(f"v_mul_f32 v{P+2*jj}, v{LG+2*jj}, v{T}")
    a("s_waitcnt lgkmcnt(0)")
    st.stamp(1)
    for jj in range(4):
        for i in range(9):
            k = KB + 18 * jj + 2 * i
            if jj == 0:
                a(f"v_pk_mul_f32 v[{O+2*i}:{O+2*i+1}], v[{k}:{k+1}], v[{P}:{P+1}] op_sel_hi:[1,0]")
            else:
                a(f"v_pk_fma_f32 v[{O+2*i}:{O+2*i+1}], v[{k}:{k+1}], v[{P+2*jj}:{P+2*jj+1}], v[{O+2*i}:{O+2*i+1}] op_sel_hi:[1,0,1]")
    a("s_nop 1")
    for i in range(18):
        a(f"v_add_f32_dpp v{O+i}, v{O+i}, v{O+i} quad_perm:[1,0,3,2] row_mask:0xf bank_mask:0xf")
    OOFF = 48 * QSTR
    a(f"v_mul_u32_u24 v{T+2}, {OSTR}, v{VR}")
    a(f"v_bfe_u32 v{T}, v0, 1, 3")
    a(f"v_mul_u32_u24 v{T}, 36, v{T}")
    a(f"v_add3_u32 v{T}, v{T}, v{T+2}, v{VOO}")
    for i in range(9):
        a(f"v_cvt_pk_bf16_f32 v{O+2*i}, v{O+2*i}, v{O+2*i+1}")
        a(f"ds_write_b32 v{T}, v{O+2*i} offset:{4*i}")
    spr = a
    a = c.a
    a("s_lshl_b32 s45, s24, 6")
    a(f"v_add_u32 v{T}, s45, v0")
    a("s_mul_i32 s46, s36, 18")
    a("s_mul_i32 s47, s37, 36864")
    a(f"s_add_u32 s47, s47, {wso('OF')}")
    a("s_waitcnt lgkmcnt(0)")
    a("s_barrier")
    st.stamp()
    for ps in range(2):
        if ps == 1:
            labP = a.newlabel("P12_PUB")
            a("s_cmp_lg_u32 s24, 0")
            a(f"s_cbranch_scc1 {labP}")
            a(f"v_add_u32 v{T}, 512, v0")
        a(f"v_and_b32 v{T+1}, 31, v{T}")
        a(f"v_lshrrev_b32 v{T+2}, 5, v{T}")
        a(f"v_mul_u32_u24 v{T+3}, {OSTR}, v{T+1}")
        a(f"v_lshl_add_u32 v{T+3}, v{T+2}, 4, v{T+3}")
        a(f"v_add_u32 v{T+3}, v{T+3}, v{VOO}")
        a(f"ds_read_b128 v[{Q}:{Q+3}], v{T+3}")
        a(f"v_add_u32 v{T+2}, s46, v{T+2}")
        a(f"v_lshrrev_b32 v{T+3}, 4, v{T+1}")
        a(f"v_mul_u32_u24 v{T+3}, 1152, v{T+3}")
        a(f"v_lshl_add_u32 v{T+3}, v{T+2}, 4, v{T+3}")
        a(f"v_and_b32 v{T+1}, 15, v{T+1}")
        a(f"v_add_u32 v{T+3}, v{T+3}, v{T+1}")
        a(f"v_lshlrev_b32 v{T+3}, 4, v{T+3}")
        a("s_waitcnt lgkmcnt(0)")
        a(f"v_min_u32 v{Q}, -2, v{Q}")
        a(f"buffer_store_dwordx4 v[{Q}:{Q+3}], v{T+3}, {WS_}, s47 offen{SC}")
    a.label(labP)
    spr.flush()
    a("s_barrier")
    st.stamp()

def phase0_loads(c, B):
    a = c.a
    a("s_lshr_b32 s76, s2, 5")
    a("s_lshl_b32 s76, s76, 3")
    a("s_and_b32 s77, s2, 7")
    a("s_add_u32 s76, s76, s77")
    a("s_lshl_b32 s76, s76, 2")
    a("s_bfe_u32 s77, s2, 0x20003")
    a("s_add_u32 s80, s76, s77")
    a("s_lshl_b32 s76, s24, 6")
    a(f"v_add_u32 v{B}, s76, v0")
    a(f"v_and_b32 v{B+1}, 1, v{B}")
    a(f"v_lshrrev_b32 v{B+2}, 1, v{B}")
    a(f"v_mul_u32_u24 v{B+3}, 6912, v{B+2}")
    a(f"v_lshl_add_u32 v{B+3}, v{B+1}, 4, v{B+3}")
    a("s_lshl_b32 s76, s80, 5")
    a("s_cmp_ge_u32 s80, 216")
    a("s_cselect_b32 s76, 0x7f000000, s76")
    a(f"v_add_u32 v{B+3}, s76, v{B+3}")
    a(f"v_lshlrev_b32 v{B+4}, 1, v{B+2}")
    W = B + 8; C = B + 20
    a(f"s_mov_b32 s77, {256*6912}")
    a(f"s_mov_b32 s78, {512*6912}")
    for q, so in enumerate(("0", "s77", "s78")):
        a(f"buffer_load_dwordx4 v[{W+4*q}:{W+4*q+3}], v{B+3}, s[60:63], {so} offen")
        a(f"buffer_load_ushort v{C+q}, v{B+4}, s[64:67], 0 offen offset:{512*q}")

def phase0(c, B, T, vm, bulk0):
    a = c.a
    W = B + 8; C = B + 20
    a("s_waitcnt vmcnt(9)")
    c.st.stamp(1)
    A8 = B + 44
    for q in range(3):
        cc = C + q
        a(f"v_lshlrev_b32 v{cc}, 16, v{cc}")
        a(f"v_mul_f32 v{T}, {NLOG2E}, v{cc}")
        a(f"v_exp_f32 v{T}, v{T}")
        a("s_nop 0")
        a(f"v_add_f32 v{T}, 1.0, v{T}")
        a(f"v_rcp_f32 v{T}, v{T}")
        a("s_nop 0")
        a(f"v_mul_f32 v{cc}, v{cc}, v{T}")
        bf16_round(a, cc, cc)
        for d in range(4):
            w = W + 4 * q + d
            a(f"v_lshlrev_b32 v{T}, 16, v{w}")
            a(f"v_and_b32 v{T+1}, 0xffff0000, v{w}")
            if q == 0:
                a(f"v_mul_f32 v{A8+2*d}, v{cc}, v{T}")
                a(f"v_mul_f32 v{A8+2*d+1}, v{cc}, v{T+1}")
            else:
                a(f"v_fmac_f32 v{A8+2*d}, v{cc}, v{T}")
                a(f"v_fmac_f32 v{A8+2*d+1}, v{cc}, v{T+1}")
    for rr in (2, 4, 8):
        for e in range(8):
            a(f"v_add_f32_dpp v{A8+e}, v{A8+e}, v{A8+e} row_ror:{rr} row_mask:0xf bank_mask:0xf")
    a(f"v_lshrrev_b32 v{T}, 4, v{B}")
    a(f"v_lshlrev_b32 v{T}, 6, v{T}")
    a(f"v_lshl_add_u32 v{T}, v{B+1}, 5, v{T}")
    a(f"v_add_u32 v{T}, {SCR}, v{T}")
    a(f"ds_write_b128 v{T}, v[{A8}:{A8+3}]")
    a(f"ds_write_b128 v{T}, v[{A8+4}:{A8+7}] offset:16")
    a("s_waitcnt lgkmcnt(0)")
    a("s_barrier")
    labF = a.newlabel("P0_FIN"); labW = a.newlabel("P0_WO")
    a("s_cmp_lg_u32 s24, 0")
    a(f"s_cbranch_scc1 {labW}")
    a(f"v_and_b32 v{T}, 15, v0")
    a(f"v_lshrrev_b32 v{T+1}, 4, v0")
    a(f"v_lshlrev_b32 v{T+1}, 9, v{T+1}")
    a(f"v_lshl_add_u32 v{T+1}, v{T}, 2, v{T+1}")
    a(f"v_add_u32 v{T+1}, {SCR}, v{T+1}")
    for e in range(8):
        a(f"ds_read_b32 v{A8+e}, v{T+1} offset:{64*e}")
    a("s_waitcnt lgkmcnt(0)")
    for e in range(1, 8):
        a(f"v_add_f32 v{A8}, v{A8}, v{A8+e}")
    red_g(a, [A8], T + 1)
    bf16_round(a, A8, A8)
    a("s_mul_i32 s76, s80, 1821")
    a("s_lshr_b32 s76, s76, 16")
    a("s_mov_b32 s77, 0")
    a("s_cmp_eq_u32 s76, 1")
    a("s_cselect_b32 s77, 1.0, s77")
    a("s_cmp_eq_u32 s76, 4")
    a("s_cselect_b32 s77, 1.0, s77")
    a(f"v_add_f32 v{A8}, s77, v{A8}")
    bf16_round(a, A8, A8)
    a(f"v_lshlrev_b32 v{T+1}, 2, v{T}")
    a(f"v_lshlrev_b32 v{T}, 1, v{T}")
    a(f"v_lshrrev_b32 v{A8+1}, 16, v{A8}")
    a("s_lshl_b32 s76, s80, 6")
    a(f"s_add_u32 s76, s76, {wso('MOD')}")
    a("s_lshl_b32 s77, s80, 5")
    a(f"s_add_u32 s77, s77, {wso('MODB')}")
    a("s_cmp_ge_u32 s80, 216")
    a("s_cselect_b32 s76, 0x7f000000, s76")
    a("s_cselect_b32 s77, 0x7f000000, s77")
    a(f"v_mov_b32 v{A8+2}, 0")
    a("s_lshl_b32 s78, s2, 6")
    a("s_mov_b64 exec, 0xffff")
    a(f"buffer_store_short v{A8+1}, v{T}, {WS_}, s77 offen{SC}")
    a(f"buffer_store_dword v{A8}, v{T+1}, {WS_}, s76 offen{SC}")
    a(f"buffer_store_dword v{A8+2}, v{T+1}, {WS_}, s78 offen{SC}")
    a("s_mov_b64 exec, -1")
    a(f"s_branch {labF}")
    a.label(labW)
    a.label(labF)
    if OPT("warm") == "early": warm_w13(c, WOF + 24)
    c.st.stamp(1)

def arrive0(c, a, T, pending):
    lab = a.newlabel("P0_ARR")
    a.busy = True
    a("s_cmp_lg_u32 s24, 0")
    a(f"s_cbranch_scc1 {lab}")
    a(f"v_mov_b32 v{T}, 1")
    a("s_and_b32 s76, s2, 1")
    a("s_lshl_b32 s76, s76, 6")
    a("s_cmp_ge_u32 s80, 72")
    a("s_cselect_b32 s76, 0x7f000000, s76")
    a("s_mov_b64 exec, 1")
    a(f"s_waitcnt vmcnt({pending})")
    a(f"buffer_atomic_add v{T}, off, s[72:75], s76 sc1")
    a("s_mov_b64 exec, -1")
    a.label(lab)
    a.busy = False

def wo_pack1(c):
    a = c.a
    lab = a.newlabel("P0_W1")
    a("s_lshl_b32 s76, s24, 6")
    a(f"v_add_u32 v{WOF+6}, s76, v0")
    a("s_cmp_lt_u32 s24, 5")
    a(f"s_cbranch_scc1 {lab}")
    P = WOF
    a("s_mul_i32 s76, s2, 162")
    a("s_sub_u32 s76, s76, 320")
    a(f"v_add_u32 v{P}, s76, v{P+6}")
    a(f"v_lshrrev_b32 v{P+1}, 6, v{P}")
    a(f"v_mul_u32_u24 v{P+2}, 3641, v{P+1}")
    a(f"v_lshrrev_b32 v{P+2}, 16, v{P+2}")
    a(f"v_mul_u32_u24 v{P+3}, 18, v{P+2}")
    a(f"v_sub_u32 v{P+3}, v{P+1}, v{P+3}")
    a(f"v_and_b32 v{P+4}, 15, v{P}")
    a(f"v_lshl_add_u32 v{P+4}, v{P+2}, 4, v{P+4}")
    a(f"v_bfe_u32 v{P+5}, v{P}, 4, 2")
    a(f"v_lshlrev_b32 v{P+5}, 3, v{P+5}")
    a(f"v_lshl_add_u32 v{P+5}, v{P+3}, 5, v{P+5}")
    a(f"v_mul_u32_u24 v{P+5}, 1152, v{P+5}")
    a(f"v_lshl_add_u32 v{P+5}, v{P+4}, 1, v{P+5}")
    a(f"v_lshlrev_b32 v{P}, 4, v{P}")
    a(f"v_cmp_gt_u32 vcc, 482, v{P+6}")
    a(f"v_mov_b32 v{P+1}, 0x7f000000")
    a("s_nop 0")
    a(f"v_cndmask_b32 v{P}, v{P+1}, v{P}, vcc")
    a(f"v_cndmask_b32 v{P+5}, v{P+1}, v{P+5}, vcc")
    a("s_mov_b32 s77, 4608")
    for j in range(8):
        so = "0" if j < 4 else "s77"
        a(f"buffer_load_ushort v{P+8+j}, v{P+5}, s[68:71], {so} offen offset:{(j%4)*1152}")
    a.label(lab)

def wo_pack2(c):
    a = c.a; P = WOF
    lab = a.newlabel("P0_W2")
    a("s_cmp_lt_u32 s24, 5")
    a(f"s_cbranch_scc1 {lab}")
    a("s_waitcnt vmcnt(0)")
    for d in range(4):
        a(f"v_lshl_or_b32 v{P+16+d}, v{P+9+2*d}, 16, v{P+8+2*d}")
    a(f"s_mov_b32 s77, {wso('WOP')}")
    a(f"buffer_store_dwordx4 v[{P+16}:{P+19}], v{P}, {WS_}, s77 offen{SC}")
    a.label(lab)

def wo_pack3(c):
    a = c.a; P = WOF
    lab = a.newlabel("P0_W3")
    a("s_cmp_lt_u32 s24, 5")
    a(f"s_cbranch_scc1 {lab}")
    a(f"v_mov_b32 v{P+1}, 1")
    a("s_and_b32 s76, s2, 1")
    a("s_lshl_b32 s76, s76, 6")
    a("s_add_u32 s76, s76, 128")
    a("s_mov_b64 exec, 1")
    a("s_waitcnt vmcnt(0)")
    a(f"buffer_atomic_add v{P+1}, off, s[72:75], s76 sc1")
    a("s_mov_b64 exec, -1")
    a.label(lab)

def wait0(c, vt, base, target):
    a = c.a
    done = a.newlabel("W0DONE"); loop = a.newlabel("W0LOOP")
    a("s_cmp_lg_u32 s24, 0")
    a(f"s_cbranch_scc1 {done}")
    a("s_mov_b32 s56, 0")
    a(f"v_and_b32 v{vt+1}, 1, v0")
    a(f"v_lshlrev_b32 v{vt+1}, 6, v{vt+1}")
    a.label(loop)
    a(f"buffer_load_dword v{vt}, v{vt+1}, s[72:75], 0 offen offset:{base} sc1")
    a("s_waitcnt vmcnt(0)")
    a(f"v_readlane_b32 s76, v{vt}, 0")
    a(f"v_readlane_b32 s77, v{vt}, 1")
    a("s_add_u32 s56, s56, 1")
    a("s_add_u32 s76, s76, s77")
    a(f"s_cmp_ge_u32 s76, {target}")
    a(f"s_cbranch_scc1 {done}")
    a("s_cmp_gt_u32 s56, 0x400000")
    a(f"s_cbranch_scc1 {done}")
    a("s_sleep 4")
    a(f"s_branch {loop}")
    a.label(done)
    a("s_barrier")

def wof_pieces(c, VL16):
    a = c.a
    def setup():
        a("s_and_b32 s52, s2, 3")
        a("s_mul_i32 s53, s52, 9")
        a("s_and_b32 s54, s24, 1")
        a("s_mul_i32 s54, s54, 5")
        a("s_add_u32 s53, s53, s54")
        a("s_mul_i32 s53, s53, 18")
        a("s_lshr_b32 s54, s24, 1")
        a("s_mul_i32 s54, s54, 5")
        a("s_add_u32 s53, s53, s54")
        a("s_lshl_b32 s53, s53, 10")
        a(f"s_add_u32 s53, s53, {wso('WOP')}")
    def piece(i, u):
        if u == 0:
            a(f"s_add_u32 s55, s54, {i}")
            a("s_cmp_ge_u32 s55, 18")
            a("s_cselect_b32 s55, 0x7f000000, s53")
        r = WOF + (i * 5 + u) * 4
        a(f"s_add_u32 s52, s55, {u*18432 + i*1024}")
        a(f"buffer_load_dwordx4 v[{r}:{r+3}], v{VL16}, {WS_}, s52 offen")
    return [setup] + [(lambda i=i, u=u: piece(i, u)) for i in range(5) for u in range(5)]

def wof_loads(c, VL16):
    for f in wof_pieces(c, VL16): f()

SLOT3 = 36992
UPOFF = 18560
VD3 = 150
REDOFF = 2 * SLOT3
class WStream:
    def __init__(self, c, sg, srd, ldw, slot_of):
        self.c = c; self.sg = sg; self.srd = srd; self.ldw = ldw; self.slot_of = slot_of; self.VD = None
    def pieces(self, i, vm=None):
        a = self.c.a; g = self.sg
        slot = self.slot_of(i) * SLOT3
        def piece(j):
            if j == 0:
                a(f"s_mul_i32 s{g+3}, s{g+2}, {64*self.ldw}")
                a(f"s_add_u32 s{g+3}, s{g+3}, s{g+1}")
                adv(a, g + 2, 9)
            a(f"s_add_u32 m0, s{g}, {slot + j*1024}")
            a("s_mov_b64 exec, 0xffffffff" if j == 4 else "s_nop 0")
            a(f"buffer_load_dwordx4 v{self.VD+j}, {self.srd}, s{g+3} offen lds")
            if j == 4: a("s_mov_b64 exec, -1")
            if vm is not None: vm.issue(("D", i))
        return [(lambda j=j: piece(j)) for j in range(5)]

def w3_setup(c, VD, T):
    a = c.a
    w = WStream(c, 76, W13_, 9216, lambda i: i % 4); w.VD = VD
    dma_voffsets(a, VD, 5, 0, 9216, T)
    a("s_and_b32 s79, s24, 3")
    a("s_lshr_b32 s76, s24, 2")
    a(f"s_mul_i32 s76, s76, {UPOFF}")
    a("s_mul_i32 s77, s79, 4608")
    a("s_add_u32 s76, s76, s77")
    a(f"s_mul_i32 s77, s79, {16*9216}")
    a("s_and_b32 s79, s2, 31")
    a("s_mul_i32 s78, s79, 288")
    a("s_add_u32 s77, s77, s78")
    a("s_lshr_b32 s78, s79, 3")
    a("s_lshl_b32 s78, s78, 1")
    a("s_lshr_b32 s79, s2, 5")
    a("s_add_u32 s78, s78, s79")
    a("s_cmp_ge_u32 s78, 9")
    a("s_cselect_b32 s79, 9, 0")
    a("s_sub_u32 s78, s78, s79")
    a("s_mov_b32 s3, s78")
    return w

def w4_setup(c, VD, T):
    a = c.a
    w = WStream(c, 80, W2_, 1152, lambda i: (i + 1) % 4); w.VD = VD
    dma_voffsets(a, VD, 5, 0, 1152, T)
    a("s_lshr_b32 s83, s24, 2")
    a("s_mul_i32 s80, s83, 18432")
    a("s_and_b32 s82, s24, 3")
    a("s_mul_i32 s81, s82, 4608")
    a("s_add_u32 s80, s80, s81")
    a("s_bfe_u32 s81, s2, 0x20001")
    a("s_mul_i32 s81, s81, 1152")
    a("s_mul_i32 s83, s83, 576")
    a("s_add_u32 s81, s81, s83")
    a("s_lshl_b32 s82, s82, 4")
    a("s_add_u32 s81, s81, s82")
    a("s_mul_i32 s81, s81, 1152")
    a("s_lshr_b32 s82, s2, 6")
    a("s_mul_i32 s83, s82, 288")
    a("s_add_u32 s81, s81, s83")
    a("s_lshl_b32 s82, s82, 1")
    a("s_bfe_u32 s83, s2, 0x30003")
    a("s_add_u32 s82, s82, s83")
    a("s_cmp_ge_u32 s82, 9")
    a("s_cselect_b32 s83, 9, 0")
    a("s_sub_u32 s82, s82, s83")
    a("s_mov_b32 s25, s82")
    return w

RSTR = 656
def ph2w(c, standalone=False):
    a = c.a; st = c.st
    a("s_and_b32 s36, s2, 3")
    a("s_bfe_u32 s37, s2, 0x10002")
    a("s_lshl_b32 s37, s37, 5")
    a("s_lshr_b32 s38, s2, 3")
    a("s_add_u32 s37, s37, s38")
    a("s_lshr_b32 s39, s24, 1")
    a("s_and_b32 s40, s24, 1")
    R = Regs(1, VD3)
    T = R.alloc(8)
    VL16 = R.alloc(1)
    AF = R.alloc(40, 4); ACC = R.alloc(40, 4)
    XR = R.alloc(8, 4); GA = R.alloc(8, 4); C2 = R.alloc(8, 4); X1V = R.alloc(16, 2)
    VC = R.alloc(1); VX = R.alloc(1); VROW = R.alloc(1); VRD = R.alloc(2)
    a(f"v_lshlrev_b32 v{VL16}, 4, v0")
    if standalone:
        wof_loads(c, VL16)
    a(f"v_and_b32 v{VC}, 31, v0")
    a(f"v_lshrrev_b32 v{VROW}, 5, v0")
    a("s_lshl_b32 s41, s24, 1")
    a(f"v_add_u32 v{VROW}, s41, v{VROW}")
    a("s_lshl_b32 s41, s37, 5")
    a(f"v_add_u32 v{T}, s41, v{VROW}")
    a(f"v_mul_u32_u24 v{VX}, 1152, v{T}")
    a("s_mul_i32 s42, s36, 288")
    a(f"v_lshl_add_u32 v{VX}, v{VC}, 4, v{VX}")
    a(f"v_add_u32 v{VX}, s42, v{VX}")
    a(f"v_cmp_gt_u32 vcc, 18, v{VC}")
    a(f"v_mov_b32 v{T+1}, 0x7f000000")
    a("s_nop 0")
    a(f"v_cndmask_b32 v{VX}, v{T+1}, v{VX}, vcc")
    a("s_mov_b64 s[50:51], vcc")
    a(f"s_mov_b32 s43, {16*1152}")
    a(f"buffer_load_dwordx4 v[{XR}:{XR+3}], v{VX}, {X_}, 0 offen")
    a(f"buffer_load_dwordx4 v[{XR+4}:{XR+7}], v{VX}, {X_}, s43 offen")
    a(f"v_lshlrev_b32 v{T+1}, 5, v{VC}")
    a("s_mul_i32 s44, s36, 576")
    a(f"s_add_u32 s44, s44, {wso('MOD') + 2*576*4}")
    a(f"buffer_load_dwordx4 v[{GA}:{GA+3}], v{T+1}, {WS_}, s44 offen{SC}")
    a(f"buffer_load_dwordx4 v[{GA+4}:{GA+7}], v{T+1}, {WS_}, s44 offen offset:16{SC}")
    a(f"v_lshlrev_b32 v{T+1}, 4, v{VC}")
    a(f"s_add_u32 s44, s42, {wso('MODB') + 4*1152}")
    a(f"buffer_load_dwordx4 v[{C2}:{C2+3}], v{T+1}, {WS_}, s44 offen{SC}")
    a(f"s_add_u32 s44, s42, {wso('MODB') + 3*1152}")
    a(f"buffer_load_dwordx4 v[{C2+4}:{C2+7}], v{T+1}, {WS_}, s44 offen{SC}")
    st.stamp()
    if c.sync:
        c.w3 = w3_setup(c, VD3, T)
    a("s_mul_i32 s46, s37, 36864")
    a(f"s_add_u32 s46, s46, {wso('OF')}")
    a("s_mul_i32 s47, s39, 5")
    def act_loads():
        for i in range(5):
            a(f"s_add_u32 s48, s47, {i}")
            a("s_min_u32 s48, s48, 17")
            a("s_lshl_b32 s48, s48, 10")
            a("s_add_u32 s48, s48, s46")
            a("s_add_u32 s49, s48, 18432")
            for mt in range(2):
                r = AF + (i * 2 + mt) * 4
                a(f"buffer_load_dwordx4 v[{r}:{r+3}], v{VL16}, {WS_}, s{48+mt} offen{SC}")
    poll_loads(c, act_loads, [AF + 4 * q for q in range(10)], T)
    st.stamp(1)
    a(f"v_and_b32 v{T}, 15, v0")
    a(f"v_mul_u32_u24 v{T}, {RSTR}, v{T}")
    a(f"v_lshrrev_b32 v{T+1}, 4, v0")
    a(f"v_lshl_add_u32 v{T}, v{T+1}, 4, v{T}")
    a(f"s_mul_i32 s48, s39, {32*RSTR}")
    a("s_mul_i32 s49, s40, 320")
    a("s_add_u32 s48, s48, s49")
    a(f"s_add_u32 s48, s48, {REDOFF}")
    a(f"v_add_u32 v{T}, s48, v{T}")
    a(f"v_mul_u32_u24 v{VRD}, {RSTR}, v{VROW}")
    a(f"v_min_u32 v{T+1}, 17, v{VC}")
    a(f"v_lshl_add_u32 v{VRD}, v{T+1}, 5, v{VRD}")
    a(f"v_add_u32 v{VRD}, {REDOFF}, v{VRD}")
    a(f"v_add_u32 v{VRD+1}, {16*RSTR}, v{VRD}")
    early = (c.w3.pieces(0) + c.w3.pieces(1)) if (c.sync and OPT("early") == "1") else []
    for i in range(5):
        for u in range(5):
            w = WOF + (i * 5 + u) * 4
            for mt in range(2):
                d = ACC + (mt * 5 + u) * 4; b = AF + (i * 2 + mt) * 4
                cc = "0" if i == 0 else f"v[{d}:{d+3}]"
                a(f"v_mfma_f32_16x16x32_bf16 v[{d}:{d+3}], v[{w}:{w+3}], v[{b}:{b+3}], {cc}")
            if early and u % 2 == 1: early.pop(0)()
    assert not early
    a.nop(8)
    for mt in range(2):
        for u in range(5):
            d = ACC + (mt * 5 + u) * 4
            a(f"ds_write_b128 v{T}, v[{d}:{d+3}] offset:{mt*16*RSTR + u*64}")
    a("s_waitcnt lgkmcnt(0)")
    a("s_barrier")
    st.stamp(1)
    RD = AF
    S0 = ACC
    RD2 = ACC + 8
    a(f"s_mov_b32 s52, {wso('X1')}")
    a(f"s_add_u32 s53, s52, {16*1152}")
    def red32(vals, tmp):
        for ctl in ("quad_perm:[1,0,3,2]", "quad_perm:[2,3,0,1]", "row_half_mirror", "row_mirror"):
            a("s_nop 0")
            for v in vals:
                a(f"v_add_f32_dpp v{v}, v{v}, v{v} {ctl} row_mask:0xf bank_mask:0xf")
        for i, v in enumerate(vals):
            a(f"v_mov_b32 v{tmp+i}, v{v}")
        a("s_nop 1")
        for i, v in enumerate(vals):
            a(f"v_permlane16_swap_b32 v{v}, v{tmp+i}")
        for i, v in enumerate(vals):
            a(f"v_add_f32 v{v}, v{v}, v{tmp+i}")
    for ps in range(2):
        B = RD if ps == 0 else RD2
        for kq in range(4):
            for hf in range(2):
                r = B + (kq * 2 + hf) * 4
                a(f"ds_read_b128 v[{r}:{r+3}], v{VRD+ps} offset:{kq*32*RSTR + hf*16}")
    for ps in range(2):
        B = RD if ps == 0 else RD2
        a(f"s_waitcnt lgkmcnt({8 if ps == 0 else 0})")
        for e in range(8):
            a(f"v_add_f32 v{B+e}, v{B+e}, v{B+8+e}")
            a(f"v_add_f32 v{B+16+e}, v{B+16+e}, v{B+24+e}")
            a(f"v_add_f32 v{B+e}, v{B+e}, v{B+16+e}")
        XV = X1V + 8 * ps
        for d in range(4):
            x = XR + 4 * ps + d
            a(f"v_lshlrev_b32 v{T+1}, 16, v{x}")
            a(f"v_and_b32 v{T+2}, 0xffff0000, v{x}")
            a(f"v_fmac_f32 v{T+1}, v{GA+2*d}, v{B+2*d}")
            a(f"v_fmac_f32 v{T+2}, v{GA+2*d+1}, v{B+2*d+1}")
            a(f"v_cvt_pk_bf16_f32 v{x}, v{T+1}, v{T+2}")
            a(f"v_lshlrev_b32 v{XV+2*d}, 16, v{x}")
            a(f"v_and_b32 v{XV+2*d+1}, 0xffff0000, v{x}")
        a(f"buffer_store_dwordx4 v[{XR+4*ps}:{XR+4*ps+3}], v{VX}, {WS_}, s{52+ps} offen{SC}")
        sm = S0 + 2 * ps
        a(f"v_add_f32 v{sm}, v{XV}, v{XV+1}")
        for e in range(2, 8):
            a(f"v_add_f32 v{sm}, v{sm}, v{XV+e}")
        a(f"v_cndmask_b32 v{sm}, 0, v{sm}, s[50:51]")
    red32([S0, S0 + 2], T + 1)
    for ps in range(2):
        XV = X1V + 8 * ps; sm = S0 + 2 * ps; m2 = sm + 1
        a(f"v_mul_f32 v{T+2}, 0x{np_f32(1.0/144):08x}, v{sm}")
        a(f"v_sub_f32 v{T+1}, v{XV}, v{T+2}")
        a(f"v_mul_f32 v{m2}, v{T+1}, v{T+1}")
        for e in range(1, 8):
            a(f"v_sub_f32 v{T+1}, v{XV+e}, v{T+2}")
            a(f"v_fmac_f32 v{m2}, v{T+1}, v{T+1}")
        a(f"v_cndmask_b32 v{m2}, 0, v{m2}, s[50:51]")
    red32([S0 + 1, S0 + 3], T + 1)
    a("s_lshl_b32 s46, s37, 10")
    a(f"s_add_u32 s46, s46, {wso('ST')}")
    a("s_lshl_b32 s47, s36, 8")
    a("s_add_u32 s47, s47, s46")
    a(f"v_lshlrev_b32 v{T}, 3, v{VROW}")
    a(f"v_cmp_eq_u32 vcc, 0, v{VC}")
    a(f"v_mov_b32 v{T+1}, 0x7f000000")
    a("s_nop 0")
    a(f"v_cndmask_b32 v{T+1}, v{T+1}, v{T}, vcc")
    a(f"v_min_u32 v{S0}, -2, v{S0}")
    a(f"v_min_u32 v{S0+2}, -2, v{S0+2}")
    a(f"buffer_store_dwordx2 v[{S0}:{S0+1}], v{T+1}, {WS_}, s47 offen{SC}")
    a(f"buffer_store_dwordx2 v[{S0+2}:{S0+3}], v{T+1}, {WS_}, s47 offen offset:128{SC}")
    if not c.sync: a("s_waitcnt vmcnt(0)")
    st.stamp(1)
    return dict(T=T, VROW=VROW, VC=VC, X1V=X1V, C2=C2, RD=RD, XR=XR)

def ph2c(c, r):
    a = c.a; st = c.st
    T, VROW, VC, X1V, C2, RD, XR = r["T"], r["VROW"], r["VC"], r["X1V"], r["C2"], r["RD"], r["XR"]
    a("s_mul_i32 s47, s36, 18")
    a(f"v_add_u32 v{T+1}, s47, v{VC}")
    a(f"v_lshrrev_b32 v{T+2}, 1, v{T+1}")
    a(f"v_lshlrev_b32 v{T+2}, 6, v{T+2}")
    a(f"v_and_b32 v{T+1}, 1, v{T+1}")
    a(f"v_add_u32 v{T+2}, v{T+2}, v{T+1}")
    a(f"v_lshl_add_u32 v{T+2}, v{VROW}, 1, v{T+2}")
    a(f"v_lshlrev_b32 v{T+2}, 4, v{T+2}")
    a(f"v_mov_b32 v{T+1}, 0x7f000000")
    a(f"v_cndmask_b32 v{T+2}, v{T+1}, v{T+2}, s[50:51]")
    a("s_mul_i32 s47, s37, 36864")
    a(f"s_add_u32 s47, s47, {wso('H2')}")
    UA = RD + 16
    for d in range(4):
        a(f"v_lshlrev_b32 v{UA+2*d}, 16, v{C2+d}")
        a(f"v_and_b32 v{UA+2*d+1}, 0xffff0000, v{C2+d}")
        a(f"v_lshlrev_b32 v{UA+8+2*d}, 16, v{C2+4+d}")
        a(f"v_and_b32 v{UA+8+2*d+1}, 0xffff0000, v{C2+4+d}")
    def st_loads():
        for ps in range(2):
            for q in range(4):
                d = RD + (ps * 4 + q) * 2
                a(f"buffer_load_dwordx2 v[{d}:{d+1}], v{T}, {WS_}, s46 offen offset:{q*256 + ps*128}{SC}")
    poll_loads(c, st_loads, [RD + 2 * q for q in range(8)], T + 3)
    st.stamp()
    for ps in range(2):
        b = RD + ps * 8
        mean = T + 3; m2 = T + 4
        a(f"v_add_f32 v{mean}, v{b}, v{b+2}")
        a(f"v_add_f32 v{T+5}, v{b+4}, v{b+6}")
        a(f"v_add_f32 v{mean}, v{mean}, v{T+5}")
        a(f"v_mul_f32 v{mean}, 0x{np_f32(1.0/576):08x}, v{mean}")
        a(f"v_add_f32 v{m2}, v{b+1}, v{b+3}")
        a(f"v_add_f32 v{T+5}, v{b+5}, v{b+7}")
        a(f"v_add_f32 v{m2}, v{m2}, v{T+5}")
        a(f"v_mov_b32 v{T+6}, 0x{np_f32(144.0):08x}")
        for q in range(4):
            a(f"v_mul_f32 v{T+5}, 0x{np_f32(1.0/144):08x}, v{b+2*q}")
            a(f"v_sub_f32 v{T+5}, v{T+5}, v{mean}")
            a(f"v_mul_f32 v{T+5}, v{T+5}, v{T+5}")
            a(f"v_fmac_f32 v{m2}, v{T+5}, v{T+6}")
        ln_scalars(a, mean=mean, ssq=m2, rinv=m2, corr=T + 5, tmp=T + 6)
        XV = X1V + 8 * ps
        for e in range(8):
            a(f"v_sub_f32 v{XV+e}, v{XV+e}, v{mean}")
            a(f"v_fma_f32 v{XV+e}, v{XV+e}, v{m2}, v{T+5}")
            a(f"v_fma_f32 v{XV+e}, v{XV+e}, v{UA+e}, v{UA+8+e}")
        for d in range(4):
            a(f"v_cvt_pk_bf16_f32 v{XR+4*ps+d}, v{XV+2*d}, v{XV+2*d+1}")
        a(f"v_min_u32 v{XR+4*ps}, -2, v{XR+4*ps}")
        a(f"buffer_store_dwordx4 v[{XR+4*ps}:{XR+4*ps+3}], v{T+2}, {WS_}, s47 offen offset:{ps*512}{SC}")
    a("s_lshr_b32 s59, s37, 3")
    a("s_lshl_b32 s59, s59, 6")
    a(f"s_add_u32 s59, s59, {CB()}")
    signal(c, 59, T + 1)
    st.stamp()

SLOT3 = 36992
UPOFF = 18560
def ph3(c):
    a = c.a; st = c.st
    a("s_and_b32 s36, s2, 31")
    a("s_lshr_b32 s37, s2, 5")
    a("s_and_b32 s38, s24, 3")
    a("s_lshr_b32 s39, s24, 2")
    R = Regs(1)
    T = R.alloc(6); VD = R.alloc(5); VA = R.alloc(1); TRB = R.alloc(4); VST = R.alloc(1)
    ACT = R.alloc(64, 4); WB = R.alloc(24, 4); ACC = R.alloc(144, 4)
    vm = VmTracker(a)
    if c.sync:
        w3 = c.w3
        for j in range(5): a(f"v_mov_b32 v{VD+j}, v{VD3+j}")
        w3.VD = VD
        if OPT("early") == "1":
            vm.issue(("D", 0), 5); vm.issue(("D", 1), 5)
        else:
            for i in range(2):
                for f in w3.pieces(i, vm): f()
    else:
        w3 = w3_setup(c, VD, T)
        for i in range(2):
            for f in w3.pieces(i, vm): f()
    a(f"v_and_b32 v{T}, 31, v0")
    a(f"v_lshrrev_b32 v{T+1}, 5, v0")
    a(f"v_lshl_add_u32 v{VA}, v{T}, 1, v{T+1}")
    a(f"v_lshlrev_b32 v{VA}, 4, v{VA}")
    a("s_lshl_b32 s43, s37, 3")
    a("s_add_u32 s43, s43, s24")
    a(f"s_mul_i32 s44, s43, {36*1024}")
    a(f"s_add_u32 s44, s44, {wso('H2')}")
    a("s_mov_b32 s47, s3")
    def dma_pieces(i): return w3.pieces(i, vm)
    def a_pieces(i):
        def piece(s):
            if s == 0:
                a(f"s_lshl_b32 s{52+i%4}, s47, 12")
                a(f"s_add_u32 s{52+i%4}, s{52+i%4}, s44")
                adv(a, 47, 9)
            r = ACT + ((i % 4) * 4 + s) * 4
            a(f"buffer_load_dwordx4 v[{r}:{r+3}], v{VA}, {WS_}, s{52+i%4} offen offset:{s*1024}")
            vm.issue(("A", i))
        return [(lambda s=s: piece(s)) for s in range(4)]
    for f in dma_pieces(2): f()
    if c.sync:
        warm_w2(c, 252)
        vm.issue("W")
    a(f"v_and_b32 v{T}, 3, v0")
    a(f"v_bfe_u32 v{T+1}, v0, 2, 2")
    a(f"v_bfe_u32 v{T+2}, v0, 4, 1")
    a(f"v_lshrrev_b32 v{T+3}, 5, v0")
    a(f"v_lshl_add_u32 v{T+1}, v{T+3}, 3, v{T+1}")
    a(f"v_mul_u32_u24 v{T+1}, 288, v{T+1}")
    a(f"v_lshrrev_b32 v{T+3}, 1, v{T}")
    a(f"v_mul_u32_u24 v{T+3}, {UPOFF}, v{T+3}")
    a(f"v_add_u32 v{T+1}, v{T+1}, v{T+3}")
    a(f"v_lshl_add_u32 v{T+1}, v{T+2}, 4, v{T+1}")
    a(f"v_and_b32 v{T}, 1, v{T}")
    a(f"v_lshl_add_u32 v{TRB}, v{T}, 3, v{T+1}")
    for k in range(1, 4):
        a(f"v_add_u32 v{TRB+k}, {k*SLOT3}, v{TRB}")
    a(f"v_bfe_u32 v{T}, v0, 4, 1")
    a(f"v_lshrrev_b32 v{T+1}, 5, v0")
    a(f"v_and_b32 v{T+2}, 15, v0")
    a(f"v_lshl_add_u32 v{T+2}, v{T}, 6, v{T+2}")
    a(f"v_lshl_add_u32 v{T+2}, v{T+1}, 4, v{T+2}")
    a(f"v_lshlrev_b32 v{VST}, 4, v{T+2}")
    a("s_lshl_b32 s45, s37, 6")
    a(f"s_add_u32 s45, s45, {CB()}")
    wait_ctr(c, 45, 32, T)
    st.stamp()
    for i in range(2):
        for f in a_pieces(i): f()
    pipe = TrPipe(a, WB, 6, 5)
    slows = []
    a("s_mul_i32 s50, s36, 9")
    a("s_lshl_b32 s51, s43, 11")
    a(f"s_add_u32 s51, s51, {wso('HH')}")
    def boundary(i):
        tags = [("A", i), ("D", i)]
        if 1 <= i < 6: tags.append(("D", i + 1))
        if i == 6: tags += [("A", 7), ("A", 8), ("D", 7), ("D", 8)]
        vm.wait(*tags)
        if False:
            sts = [i] if i < 6 else [6, 7, 8]
            regs = [ACT + ((q % 4) * 4 + s) * 4 for q in sts for s in range(4)]
            back = a.newlabel("P3B"); slow = a.newlabel("P3S")
            umax_chain(a, regs, T + 2)
            a(f"v_cmp_eq_u32 vcc, -1, v{T+2}")
            a("s_nop 1")
            a(f"s_cbranch_vccnz {slow}")
            a.label(back)
            slows.append((slow, back, sts, regs))
        a("s_barrier")
        if i in (0, 1): st.stamp(1)
    def spread(i):
        p = []
        if i + 3 < 9: p += dma_pieces(i + 3)
        if i < 4: p += a_pieces(i + 2)
        elif i == 4: p += a_pieces(6) + a_pieces(7)
        elif i == 5: p += a_pieces(8)
        return p
    def item(i, s, j):
        def fn(w):
            d = ACC + j * 16
            b = ACT + ((i % 4) * 4 + s) * 4
            cc = "0" if (i == 0 and s == 0) else f"v[{d}:{d+15}]"
            a(f"v_mfma_f32_32x32x16_bf16 v[{d}:{d+15}], v[{w}:{w+3}], v[{b}:{b+3}], {cc}")
        o = 16 * s * 288 + 32 * j
        return (TRB + i % 4, o, o + 4 * 288, fn)
    def epi_pieces(j):
        d = ACC + j * 16
        def quarter(half, e):
            g0 = d + 8 * half + e; u0 = g0 + 4
            for q in range(2): a(f"v_mul_f32 v{T+q}, {NLOG2E}, v{g0+q}")
            for q in range(2): a(f"v_exp_f32 v{T+q}, v{T+q}")
            for q in range(2): a(f"v_mul_f32 v{g0+q}, v{g0+q}, v{u0+q}")
            for q in range(2): a(f"v_add_f32 v{T+q}, 1.0, v{T+q}")
            for q in range(2): a(f"v_rcp_f32 v{T+q}, v{T+q}")
            a("s_nop 0")
            for q in range(2): a(f"v_mul_f32 v{g0+q}, v{g0+q}, v{T+q}")
            a(f"v_cvt_pk_bf16_f32 v{d+4+2*half+e//2}, v{g0}, v{g0+1}")
        def store():
            a(f"s_add_u32 s48, s50, {j}")
            a("s_lshr_b32 s49, s48, 1")
            a("s_lshl_b32 s49, s49, 17")
            a("s_and_b32 s48, s48, 1")
            a("s_lshl_b32 s48, s48, 9")
            a("s_add_u32 s49, s49, s48")
            a("s_add_u32 s49, s49, s51")
            a(f"buffer_store_dwordx4 v[{d+4}:{d+7}], v{VST}, {WS_}, s49 offen{SC}")
        return [(lambda h=h, e=e: quarter(h, e)) for h in range(2) for e in (0, 2)] + [store]
    stages = [[item(i, s, j) for s in range(4) for j in range(9)] for i in range(6)]
    stages.append([item(i, s, j) for j in range(9) for i in range(6, 9) for s in range(4)])
    def hooks(i):
        h = {}
        if i == 6 and c.sync:
            def setup4(): c.w4 = w4_setup(c, VD, T)
            h.setdefault(1, []).append(setup4)
            for q in range(5):
                h.setdefault(3 + 2 * q, []).append(lambda q=q: c.w4.pieces(0)[q]())
        if i == 6:
            for j in range(8):
                for q, f in enumerate(epi_pieces(j)):
                    h.setdefault((j + 1) * 12 + 3 + 2 * q, []).append(f)
        return h
    run_stages(a, pipe, stages, boundary, spread, hooks)
    st.stamp()
    a.nop(12)
    for f in epi_pieces(8): f()
    a("s_lshl_b32 s45, s37, 2")
    a("s_lshr_b32 s46, s36, 3")
    a("s_add_u32 s45, s45, s46")
    a("s_lshl_b32 s45, s45, 6")
    a(f"s_add_u32 s45, s45, {CC()}")
    signal(c, 45, T)
    st.stamp()
    if slows:
        over = a.newlabel("P3OVER")
        a(f"s_branch {over}")
        for slow, back, sts, regs in slows:
            a.label(slow)
            def reload(sts=sts):
                for q in sts:
                    for s in range(4):
                        r = ACT + ((q % 4) * 4 + s) * 4
                        a(f"buffer_load_dwordx4 v[{r}:{r+3}], v{VA}, {WS_}, s{52+q%4} offen offset:{s*1024}{SC}")
            poll_loads(c, reload, regs, T + 2)
            a(f"s_branch {back}")
        a.label(over)

SLOT4 = 36864
def ph4(c):
    a = c.a; st = c.st
    a("s_bfe_u32 s36, s2, 0x20001")
    a("s_and_b32 s37, s2, 1")
    a("s_lshl_b32 s37, s37, 3")
    a("s_bfe_u32 s38, s2, 0x30003")
    a("s_add_u32 s37, s37, s38")
    a("s_lshr_b32 s39, s2, 6")
    a("s_and_b32 s40, s24, 3")
    a("s_lshr_b32 s41, s24, 2")
    R = Regs(1)
    T = R.alloc(6); VD = R.alloc(5); VL16 = R.alloc(1); TRB = R.alloc(4)
    ACT = R.alloc(48, 4); WB = R.alloc(32, 4); ACC = R.alloc(72, 4)
    vm = VmTracker(a)
    if c.sync:
        w4 = c.w4
        assert w4.VD == VD
        vm.issue(("D", 0), 5)
    else:
        w4 = w4_setup(c, VD, T)
        for f in w4.pieces(0, vm): f()
    a(f"v_lshlrev_b32 v{VL16}, 4, v0")
    a("s_mul_i32 s46, s36, 36")
    a("s_mul_i32 s47, s41, 18")
    a("s_add_u32 s46, s46, s47")
    a("s_lshl_b32 s46, s46, 7")
    a("s_lshl_b32 s47, s37, 3")
    a("s_add_u32 s46, s46, s47")
    a("s_lshl_b32 s47, s40, 1")
    a("s_add_u32 s46, s46, s47")
    a("s_add_u32 s47, s46, s41")
    a("s_xor_b32 s48, s41, 1")
    a("s_add_u32 s48, s46, s48")
    a("s_lshl_b32 s47, s47, 10")
    a("s_lshl_b32 s48, s48, 10")
    a(f"s_add_u32 s47, s47, {wso('HH')}")
    a(f"s_add_u32 s48, s48, {wso('HH')}")
    a("s_mov_b32 s50, s25")
    def dma_pieces(i): return w4.pieces(i, vm)
    def a_pieces(i):
        def piece(s, t):
            if s == 0 and t == 0:
                a("s_lshl_b32 s51, s50, 18")
                adv(a, 50, 9)
            r = ACT + (((i % 3) * 2 + s) * 2 + t) * 4
            a(f"s_add_u32 s52, s{47+t}, s51")
            if s: a("s_add_u32 s52, s52, 131072")
            a(f"buffer_load_dwordx4 v[{r}:{r+3}], v{VL16}, {WS_}, s52 offen")
            vm.issue(("A", i))
        return [(lambda s=s, t=t: piece(s, t)) for s in range(2) for t in range(2)]
    for i in range(1, 3):
        for f in dma_pieces(i): f()
    a(f"v_lshrrev_b32 v{T}, 5, v0")
    a(f"v_lshlrev_b32 v{T}, 4, v{T}")
    a(f"v_bfe_u32 v{T+1}, v0, 2, 3")
    a(f"v_add_u32 v{T}, v{T}, v{T+1}")
    a(f"v_mul_u32_u24 v{T}, 288, v{T}")
    a(f"v_and_b32 v{T+1}, 3, v0")
    a(f"v_lshl_add_u32 v{T}, v{T+1}, 3, v{T}")
    a("s_mul_i32 s52, s41, 18432")
    a(f"v_add_u32 v{TRB}, s52, v{T}")
    for k in range(1, 4):
        a(f"v_add_u32 v{TRB+k}, {k*SLOT3}, v{TRB}")
    a("s_lshr_b32 s45, s37, 1")
    a("s_lshl_b32 s45, s45, 2")
    a("s_add_u32 s45, s45, s36")
    a("s_lshl_b32 s45, s45, 6")
    a(f"s_add_u32 s45, s45, {CC()}")
    a("s_lshr_b32 s53, s37, 1")
    a("s_lshl_b32 s53, s53, 6")
    a(f"s_add_u32 s53, s53, {CB()}")
    wait_ctr2(c, 45, 8, 53, 32, T)
    st.stamp()
    for i in range(2):
        for f in a_pieces(i): f()
    pipe = TrPipe(a, WB, 8, 6)
    def boundary(i):
        tags = [("A", i), ("D", i)]
        if 1 <= i < 8: tags.append(("D", i + 1))
        vm.wait(*tags)
        a("s_barrier")
        if i in (0, 1): st.stamp(1)
    def spread(i):
        p = []
        if i + 2 < 9: p += a_pieces(i + 2)
        if i + 3 < 9: p += dma_pieces(i + 3)
        return p
    stages = []
    for i in range(9):
        its = []
        for s in range(2):
            for t9 in range(9):
                def fn(w, i=i, s=s, t9=t9):
                    for t in range(2):
                        d = ACC + (t * 9 + t9) * 4
                        b = ACT + (((i % 3) * 2 + s) * 2 + t) * 4
                        cc = "0" if (i == 0 and s == 0) else f"v[{d}:{d+3}]"
                        a(f"v_mfma_f32_16x16x32_bf16 v[{d}:{d+3}], v[{w}:{w+3}], v[{b}:{b+3}], {cc}")
                o = 32 * s * 288 + 32 * t9
                its.append((TRB + (i + 1) % 4, o, o + 8 * 288, fn))
        stages.append(its)
    run_stages(a, pipe, stages, boundary, spread)
    st.stamp()
    a("s_lshl_b32 s46, s40, 1")
    a("s_add_u32 s47, s46, s41")
    a("s_xor_b32 s48, s47, 1")
    a("s_mul_i32 s49, s47, 9216")
    a("s_mul_i32 s48, s48, 9216")
    a(f"s_add_u32 s50, s49, {2*SLOT3}")
    a(f"s_add_u32 s48, s48, {2*SLOT3}")
    a(f"v_add_u32 v{T}, s50, v{VL16}")
    a(f"v_add_u32 v{T+1}, s48, v{VL16}")
    a.nop(4)
    for t9 in range(9):
        d = ACC + (9 + t9) * 4
        a(f"ds_write_b128 v{T}, v[{d}:{d+3}] offset:{t9*1024}")
    a("s_lshl_b32 s46, s37, 2")
    a("s_add_u32 s46, s46, s39")
    a("s_lshl_b32 s50, s46, 2")
    a("s_add_u32 s50, s50, s36")
    a("s_mul_i32 s50, s50, 73728")
    a("s_add_u32 s50, s50, s49")
    a(f"s_add_u32 s50, s50, {wso('PART')}")
    a("s_add_u32 s51, s50, 4096")
    a("s_add_u32 s52, s50, 8192")
    a("s_waitcnt lgkmcnt(0)")
    a("s_barrier")
    for t9 in range(9):
        d = ACC + (9 + t9) * 4
        a(f"ds_read_b128 v[{d}:{d+3}], v{T+1} offset:{t9*1024}")
    own = c.sync
    if own:
        labO = a.newlabel("P4OWN"); labD = a.newlabel("P4DONE")
        a("s_cmp_eq_u32 s40, s36")
        a(f"s_cbranch_scc1 {labO}")
    for t9 in range(9):
        d = ACC + t9 * 4; e = ACC + (9 + t9) * 4
        a(f"s_waitcnt lgkmcnt({8-t9})")
        for k in range(4):
            a(f"v_add_f32 v{d+k}, v{d+k}, v{e+k}")
        a(f"buffer_store_dwordx4 v[{d}:{d+3}], v{VL16}, {WS_}, s{50+t9//4} offen offset:{(t9%4)*1024}{SC}")
    if own:
        a(f"s_branch {labD}")
        a.label(labO)
        a("s_mul_i32 s50, s41, 9216")
        a(f"v_add_u32 v{T}, s50, v{VL16}")
        a("s_waitcnt lgkmcnt(0)")
        for t9 in range(9):
            d = ACC + t9 * 4; e = ACC + (9 + t9) * 4
            for k in range(4):
                a(f"v_add_f32 v{d+k}, v{d+k}, v{e+k}")
            a(f"ds_write_b128 v{T}, v[{d}:{d+3}] offset:{t9*1024}")
        a("s_waitcnt lgkmcnt(0)")
        a.label(labD)
    a("s_lshl_b32 s45, s46, 6")
    a(f"s_add_u32 s45, s45, {CD()}")
    signal(c, 45, T)
    st.stamp()

def ph5(c):
    a = c.a; st = c.st
    a("s_bfe_u32 s36, s2, 0x20001")
    a("s_and_b32 s37, s2, 1")
    a("s_lshl_b32 s37, s37, 3")
    a("s_bfe_u32 s38, s2, 0x30003")
    a("s_add_u32 s37, s37, s38")
    a("s_lshr_b32 s39, s2, 6")
    a("s_lshl_b32 s46, s37, 2")
    a("s_add_u32 s46, s46, s39")
    R = Regs(1)
    T = R.alloc(6); VL16 = R.alloc(1); VO = R.alloc(3); VG = R.alloc(1)
    PB = R.alloc(48, 4); XR = R.alloc(6, 2); GB = R.alloc(12, 4)
    a(f"v_lshlrev_b32 v{VL16}, 4, v0")
    a("s_lshl_b32 s40, s37, 7")
    a("s_lshl_b32 s41, s36, 5")
    a("s_add_u32 s40, s40, s41")
    a(f"v_and_b32 v{T}, 15, v0")
    a(f"v_add_u32 v{T}, s40, v{T}")
    a(f"v_mul_u32_u24 v{T}, 1152, v{T}")
    a(f"v_lshrrev_b32 v{VG}, 4, v0")
    a(f"v_lshl_add_u32 v{T}, v{VG}, 3, v{T}")
    a(f"v_lshlrev_b32 v{VG}, 4, v{VG}")
    a("s_mul_i32 s41, s39, 288")
    a(f"s_mov_b32 s53, {wso('X1')}")
    for q in range(3):
        a(f"s_add_u32 s42, s24, {8*q}")
        a("s_cmp_ge_u32 s42, 9")
        a("s_cselect_b32 s43, 1, 0")
        a("s_mul_i32 s44, s43, 9")
        a("s_sub_u32 s44, s42, s44")
        a(f"s_mul_i32 s47, s43, {16*1152}")
        a("s_lshl_b32 s48, s44, 5")
        a("s_add_u32 s47, s47, s48")
        a("s_add_u32 s47, s47, s41")
        a("s_cmp_ge_u32 s42, 18")
        a("s_cselect_b32 s47, 0x7f000000, s47")
        a(f"v_add_u32 v{VO+q}, s47, v{T}")
        a(f"buffer_load_dwordx2 v[{XR+2*q}:{XR+2*q+1}], v{VO+q}, {WS_}, s53 offen{SC}")
        a("s_lshl_b32 s48, s44, 6")
        a("s_mul_i32 s49, s39, 576")
        a("s_add_u32 s48, s48, s49")
        a(f"s_add_u32 s48, s48, {wso('MOD') + 5*576*4}")
        a(f"buffer_load_dwordx4 v[{GB+4*q}:{GB+4*q+3}], v{VG}, {WS_}, s48 offen{SC}")
    a("s_lshl_b32 s45, s46, 6")
    a(f"s_add_u32 s45, s45, {CD()}")
    wait_ctr(c, 45, 4, T + 1)
    st.stamp()
    a("s_mul_i32 s50, s46, 294912")
    a("s_mul_i32 s51, s36, 18432")
    a("s_add_u32 s50, s50, s51")
    a("s_lshl_b32 s51, s24, 10")
    a("s_add_u32 s50, s50, s51")
    a(f"s_add_u32 s50, s50, {wso('PART')}")
    nsrc = 3 if c.sync else 4
    if c.sync:
        a("s_lshl_b32 s51, s24, 10")
        a(f"v_add_u32 v{T+3}, s51, v{VL16}")
        for q in range(3):
            r = PB + (q * 4 + 3) * 4
            a(f"ds_read_b128 v[{r}:{r+3}], v{T+3} offset:{q*8192}")
        for src in range(3):
            a(f"s_add_u32 s{54+src}, s36, {src+1}")
            a(f"s_and_b32 s{54+src}, s{54+src}, 3")
            a(f"s_mul_i32 s{54+src}, s{54+src}, 73728")
            a(f"s_add_u32 s{54+src}, s{54+src}, s50")
    for q in range(3):
        for src in range(nsrc):
            r = PB + (q * 4 + src) * 4
            if c.sync:
                a(f"s_add_u32 s51, s{54+src}, {q*8192}")
            else:
                a(f"s_add_u32 s51, s50, {src*73728 + q*8192}")
            a(f"buffer_load_dwordx4 v[{r}:{r+3}], v{VL16}, {WS_}, s51 offen{SC}")
    a("s_waitcnt lgkmcnt(0)")
    for q in range(3):
        a(f"s_waitcnt vmcnt({nsrc*(2-q)+q})")
        p = PB + q * 16
        for e in range(4):
            a(f"v_add_f32 v{p+e}, v{p+e}, v{p+4+e}")
            a(f"v_add_f32 v{p+8+e}, v{p+8+e}, v{p+12+e}")
            a(f"v_add_f32 v{p+e}, v{p+e}, v{p+8+e}")
        for d in range(2):
            x = XR + 2 * q + d
            a(f"v_lshlrev_b32 v{T+1}, 16, v{x}")
            a(f"v_and_b32 v{T+2}, 0xffff0000, v{x}")
            a(f"v_fmac_f32 v{T+1}, v{GB+4*q+2*d}, v{p+2*d}")
            a(f"v_fmac_f32 v{T+2}, v{GB+4*q+2*d+1}, v{p+2*d+1}")
            a(f"v_cvt_pk_bf16_f32 v{x}, v{T+1}, v{T+2}")
        a(f"buffer_store_dwordx2 v[{XR+2*q}:{XR+2*q+1}], v{VO+q}, {OUT_}, 0 offen")

LDS_MEGA = 163840
def gen_split(a):
    def wrap(name, fn):
        a.begin_kernel(name)
        end = name.upper() + "_END"
        st = Stamper(a, name[:-7])
        c = Ctx(a, False, st)
        prologue(a, end)
        st.stamp()
        fn(c)
        st.finish(24, 1)
        a.label(end)
        a.end_kernel(name, vgpr=256, sgpr=102, grid=256, block=512, lds=LDS_MEGA)
    wrap("p12_kernel", ph12)
    wrap("p2w_kernel", lambda c: ph2w(c, True))
    wrap("p2c_kernel", lambda c: ph2c(c, ph2w(c, True)))
    wrap("p3_kernel", ph3)
    wrap("p4_kernel", ph4)
    wrap("p5_kernel", ph5)

def gen_mega(a):
    name = "pmega_kernel"
    a.begin_kernel(name)
    st = Stamper(a, "mega", wg=int(os.environ.get("STAMP_WG", "0")))
    st.level = int(os.environ.get('STAMP_LEVEL', '0'))
    c = Ctx(a, True, st)
    prologue(a, "MEGA_END", warm=True)
    st.stamp()
    ph12(c)
    r = ph2w(c)
    ph2c(c, r)
    ph3(c)
    ph4(c)
    ph5(c)
    st.finish(24, 1)
    a.label("MEGA_END")
    a.end_kernel(name, vgpr=256, sgpr=102, grid=256, block=512, lds=LDS_MEGA)
```

```python
from fw import *
from gemm_common import *
from k_p0 import ln_scalars, np_f32
import os
NLOG2E = 0xbfb8aa3b
X_, WQKV_, W13_, W2_, OUT_, WS_, XH_ = "s[4:7]", "s[8:11]", "s[12:15]", "s[16:19]", "s[20:23]", "s[28:31]", "s[32:35]"
def wso(n): return WS[n][0]
WOF = 156
SC = " sc1"
DBG = os.environ.get("DBG", "").split(",")
_OPT = dict(warm="late", spr="32", early="1", nrs="0", rot3="m", rot4="m")
_OPT.update(dict(kv.split("=") for kv in os.environ.get("OPT", "").split(",") if kv))
def OPT(k): return _OPT[k]

class Ctx:
    def __init__(self, a, sync, st):
        self.a = a; self.sync = sync; self.st = st

def prologue(a, end, warm=False):
    if warm:
        a("s_getpc_b64 s[76:77]")
        a.label("MEGA_PC")
        a("v_lshlrev_b32 v2, 7, v0")
        a("s_sub_u32 s76, s76, MEGA_PC-pmega_kernel")
        a("s_subb_u32 s77, s77, 0")
        a("v_min_u32 v2, MEGA_END-pmega_kernel, v2")
        a("global_load_dword v255, v2, s[76:77]")
    a("s_cmp_ge_u32 s2, 256")
    a(f"s_cbranch_scc1 {end}")
    a("s_load_dwordx4 s[36:39], s[0:1], 0")
    a("s_load_dwordx4 s[40:43], s[0:1], 32")
    a("s_load_dwordx2 s[44:45], s[0:1], 48")
    a("s_load_dwordx2 s[46:47], s[0:1], 72")
    a("s_load_dwordx2 s[48:49], s[0:1], 88")
    a("s_load_dwordx2 s[50:51], s[0:1], 16")
    a("s_load_dwordx4 s[52:55], s[0:1], 56")
    a("s_load_dwordx2 s[56:57], s[0:1], 80")
    a("v_lshrrev_b32 v1, 6, v0")
    a("v_and_b32 v0, 63, v0")
    a("v_readfirstlane_b32 s24, v1")
    a("s_waitcnt lgkmcnt(0)")
    srd_from_ptr(a, 4, 36, 2048 * 1152)
    srd_from_ptr(a, 8, 38, 576 * 3456)
    a("s_cmp_lt_u32 s24, 4")
    a("s_cselect_b32 s12, s40, s42")
    a("s_cselect_b32 s13, s41, s43")
    a("s_and_b32 s13, s13, 0xffff")
    a(f"s_mov_b32 s14, {576*9216}")
    a("s_mov_b32 s15, 0x00020000")
    srd_from_ptr(a, 16, 44, 4608 * 1152)
    srd_from_ptr(a, 20, 46, 2048 * 1152)
    srd_from_ptr(a, 28, 48, WS_END)
    srd_from_ptr(a, 60, 54, 576 * 6912)
    srd_from_ptr(a, 64, 52, 1152)
    srd_from_ptr(a, 68, 50, 576 * 1152)
    srd_from_ptr(a, 72, 56, 256)

def signal(c, soff, vt, pending=0):
    a = c.a
    a(f"s_waitcnt vmcnt({pending})")
    if not c.sync:
        return
    a("s_barrier")
    lab = a.newlabel("SIG")
    a("s_cmp_lg_u32 s24, 0")
    a(f"s_cbranch_scc1 {lab}")
    a(f"v_mov_b32 v{vt}, 1")
    a("s_mov_b64 exec, 1")
    a(f"buffer_atomic_add v{vt}, off, {WS_}, s{soff} sc1")
    a("s_mov_b64 exec, -1")
    a.label(lab)

def wait_ctr(c, soff, target, vt):
    a = c.a
    if not c.sync:
        return
    done = a.newlabel("WDONE"); loop = a.newlabel("WLOOP")
    a("s_cmp_lg_u32 s24, 0")
    a(f"s_cbranch_scc1 {done}")
    a("s_mov_b32 s56, 0")
    a.label(loop)
    a(f"buffer_load_dword v{vt}, off, {WS_}, s{soff} sc1")
    a("s_waitcnt vmcnt(0)")
    a(f"v_readfirstlane_b32 s57, v{vt}")
    a("s_add_u32 s56, s56, 1")
    a(f"s_cmp_ge_u32 s57, {target}")
    a(f"s_cbranch_scc1 {done}")
    a("s_cmp_gt_u32 s56, 0x400000")
    a(f"s_cbranch_scc1 {done}")
    a("s_sleep 1")
    a(f"s_branch {loop}")
    a.label(done)
    a("s_barrier")

def umax_chain(a, regs, tmp):
    regs = list(regs)
    if len(regs) == 1:
        a(f"v_mov_b32 v{tmp}, v{regs[0]}"); return
    if len(regs) == 2:
        a(f"v_max_u32 v{tmp}, v{regs[0]}, v{regs[1]}"); return
    a(f"v_max3_u32 v{tmp}, v{regs[0]}, v{regs[1]}, v{regs[2]}")
    regs = regs[3:]
    while regs:
        if len(regs) == 1:
            a(f"v_max_u32 v{tmp}, v{tmp}, v{regs[0]}"); regs = []
        else:
            a(f"v_max3_u32 v{tmp}, v{tmp}, v{regs[0]}, v{regs[1]}"); regs = regs[2:]

def poll_loads(c, issue, regs, tmp):
    a = c.a
    if not c.sync:
        issue(); a("s_waitcnt vmcnt(0)"); return
    loop = a.newlabel("PL"); done = a.newlabel("PLD")
    a("s_mov_b32 s56, 0")
    a.label(loop)
    issue()
    a("s_waitcnt vmcnt(0)")
    umax_chain(a, regs, tmp)
    a(f"v_cmp_eq_u32 vcc, -1, v{tmp}")
    a("s_add_u32 s56, s56, 1")
    a("s_nop 0")
    a(f"s_cbranch_vccz {done}")
    a("s_cmp_gt_u32 s56, 0x400000")
    a(f"s_cbranch_scc1 {done}")
    a("s_sleep 1")
    a(f"s_branch {loop}")
    a.label(done)

def arrive(c, soff, vt):
    a = c.a
    if not c.sync: return
    lab = a.newlabel("ARR")
    a("s_cmp_lg_u32 s24, 0")
    a(f"s_cbranch_scc1 {lab}")
    a(f"v_mov_b32 v{vt}, 1")
    a("s_mov_b64 exec, 1")
    a(f"buffer_atomic_add v{vt}, off, {WS_}, s{soff} sc1")
    a("s_mov_b64 exec, -1")
    a.label(lab)

def wait_ctr2(c, s1, t1, s2, t2, vt):
    a = c.a
    if not c.sync: return
    done = a.newlabel("WDONE"); loop = a.newlabel("WLOOP"); more = a.newlabel("WMORE")
    a("s_cmp_lg_u32 s24, 0")
    a(f"s_cbranch_scc1 {done}")
    a("s_mov_b32 s56, 0")
    a.label(loop)
    a(f"buffer_load_dword v{vt}, off, {WS_}, s{s1} sc1")
    a(f"buffer_load_dword v{vt+1}, off, {WS_}, s{s2} sc1")
    a("s_waitcnt vmcnt(0)")
    a(f"v_readfirstlane_b32 s57, v{vt}")
    a(f"v_readfirstlane_b32 s58, v{vt+1}")
    a("s_add_u32 s56, s56, 1")
    a(f"s_cmp_lt_u32 s57, {t1}")
    a(f"s_cbranch_scc1 {more}")
    a(f"s_cmp_ge_u32 s58, {t2}")
    a(f"s_cbranch_scc1 {done}")
    a.label(more)
    a("s_cmp_gt_u32 s56, 0x400000")
    a(f"s_cbranch_scc1 {done}")
    a("s_sleep 1")
    a(f"s_branch {loop}")
    a.label(done)
    a("s_barrier")

def prefill(c, B):
    a = c.a
    for i in range(4): a(f"v_mov_b32 v{B+8+i}, -1")
    a("s_mul_i32 s76, s37, 36864")
    a(f"s_add_u32 s77, s76, {wso('OF')}")
    a(f"s_add_u32 s78, s76, {wso('H2')}")
    a("s_mul_i32 s79, s36, 18")
    a("s_lshl_b32 s76, s24, 6")
    a(f"v_add_u32 v{B}, s76, v0")
    lab = a.newlabel("PF")
    for ps in range(2):
        if ps == 1:
            a("s_cmp_lg_u32 s24, 1")
            a(f"s_cbranch_scc1 {lab}")
            a(f"v_add_u32 v{B}, 512, v0")
        a(f"v_and_b32 v{B+1}, 31, v{B}")
        a(f"v_lshrrev_b32 v{B+2}, 5, v{B}")
        a(f"v_add_u32 v{B+2}, s79, v{B+2}")
        a(f"v_lshrrev_b32 v{B+3}, 4, v{B+1}")
        a(f"v_mul_u32_u24 v{B+3}, 1152, v{B+3}")
        a(f"v_lshl_add_u32 v{B+3}, v{B+2}, 4, v{B+3}")
        a(f"v_and_b32 v{B+4}, 15, v{B+1}")
        a(f"v_add_u32 v{B+3}, v{B+3}, v{B+4}")
        a(f"v_lshlrev_b32 v{B+3}, 4, v{B+3}")
        a(f"buffer_store_dwordx4 v[{B+8}:{B+11}], v{B+3}, {WS_}, s77 offen{SC}")
    a("s_lshl_b32 s76, s37, 10")
    a("s_lshl_b32 s77, s36, 8")
    a("s_add_u32 s76, s76, s77")
    a(f"s_add_u32 s76, s76, {wso('ST')}")
    a(f"v_lshlrev_b32 v{B+1}, 4, v0")
    a("s_mov_b64 exec, 0xffff")
    a(f"buffer_store_dwordx4 v[{B+8}:{B+11}], v{B+1}, {WS_}, s76 offen{SC}")
    a("s_mov_b64 exec, -1")
    a.label(lab)

def warm_w13(c, T):
    a = c.a
    a("s_lshr_b32 s76, s2, 5")
    a("s_lshl_b32 s76, s76, 2")
    a("s_and_b32 s77, s24, 3")
    a("s_add_u32 s76, s76, s77")
    a("s_mul_i32 s76, s76, 54")
    a(f"v_add_u32 v{T}, s76, v0")
    a(f"v_mul_u32_u24 v{T+1}, 21846, v{T}")
    a(f"v_lshrrev_b32 v{T+1}, 16, v{T+1}")
    a(f"v_mul_u32_u24 v{T+2}, 3, v{T+1}")
    a(f"v_sub_u32 v{T}, v{T}, v{T+2}")
    a(f"v_mul_u32_u24 v{T}, 142, v{T}")
    a(f"v_and_b32 v{T}, 0x1fc, v{T}")
    a(f"v_mul_u32_u24 v{T+1}, 9216, v{T+1}")
    a(f"v_add_u32 v{T}, v{T}, v{T+1}")
    a("s_and_b32 s76, s2, 31")
    a("s_mul_i32 s76, s76, 288")
    a("s_mov_b32 exec_hi, 0x3fffff")
    a(f"buffer_load_dword v155, v{T}, {W13_}, s76 offen")
    a("s_mov_b64 exec, -1")

def warm_w2(c, T):
    a = c.a
    a("s_bfe_u32 s56, s2, 0x30003")
    a("s_lshl_b32 s56, s56, 3")
    a("s_add_u32 s56, s56, s24")
    a("s_mul_i32 s56, s56, 54")
    a(f"v_add_u32 v{T}, s56, v0")
    a(f"v_mul_u32_u24 v{T+1}, 21846, v{T}")
    a(f"v_lshrrev_b32 v{T+1}, 16, v{T+1}")
    a(f"v_mul_u32_u24 v{T+2}, 3, v{T+1}")
    a(f"v_sub_u32 v{T}, v{T}, v{T+2}")
    a(f"v_mul_u32_u24 v{T}, 142, v{T}")
    a(f"v_and_b32 v{T}, 0x1fc, v{T}")
    a(f"v_mul_u32_u24 v{T+1}, 1152, v{T+1}")
    a(f"v_add_u32 v{T}, v{T}, v{T+1}")
    a("s_bfe_u32 s56, s2, 0x20001")
    a(f"s_mul_i32 s56, s56, {1152*1152}")
    a("s_lshr_b32 s57, s2, 6")
    a("s_mul_i32 s57, s57, 288")
    a("s_add_u32 s56, s56, s57")
    a("s_mov_b32 exec_hi, 0x3fffff")
    a(f"buffer_load_dword v{T+3}, v{T}, {W2_}, s56 offen")
    a("s_mov_b64 exec, -1")

def adv(a, r, n):
    a(f"s_add_u32 s{r}, s{r}, 1")
    a(f"s_cmp_ge_u32 s{r}, {n}")
    a(f"s_cselect_b32 s{r}, 0, s{r}")

QSLOT = 30720
NQS = 5
COEFOFF = NQS * QSLOT
QSTR = 1744
OSTR = 304
class Sprinkle:
    def __init__(self, a, q, period):
        self.a = a; self.q = list(q); self.period = period; self.n = 0; self.busy = False
    def __call__(self, s):
        self.a(s)
        if self.busy: return
        self.n += 1
        if self.q and self.n % self.period == 0 and "exec" not in s and "vcc" not in s and "s_cmp" not in s and "s_nop" not in s:
            self.busy = True; self.q.pop(0)(); self.busy = False
    def flush(self):
        while self.q: self.q.pop(0)()
    def __getattr__(self, k): return getattr(self.a, k)

H1OFF = 4 * 27648
SCR = H1OFF + 27648
def red_g(a, vals, tmp):
    for op in ("v_permlane16_swap_b32", "v_permlane32_swap_b32"):
        for i, v in enumerate(vals): a(f"v_mov_b32 v{tmp+i}, v{v}")
        a("s_nop 1")
        for i, v in enumerate(vals): a(f"{op} v{v}, v{tmp+i}")
        for i, v in enumerate(vals): a(f"v_add_f32 v{v}, v{v}, v{tmp+i}")

def ph12(c):
    a = c.a; st = c.st
    a("s_and_b32 s36, s2, 3")
    a("s_bfe_u32 s37, s2, 0x10002")
    a("s_lshl_b32 s37, s37, 5")
    a("s_lshr_b32 s38, s2, 3")
    a("s_add_u32 s37, s37, s38")
    R = Regs(1, 155)
    T = R.alloc(8)
    VD = R.alloc(4)
    VL16 = R.alloc(1)
    VOO = R.alloc(1)
    m0 = R.mark()
    XF = R.alloc(36, 4)
    DD = R.alloc(72, 2)
    CF = R.alloc(24, 4)
    VXA = R.alloc(1); STA = R.alloc(6)
    vm = VmTracker(a)
    if c.sync:
        phase0_loads(c, DD)
        vm.issue("M", 6)
    a("s_lshl_b32 s45, s37, 5")
    a("s_sub_u32 s45, s45, 16")
    a(f"v_and_b32 v{T}, 15, v0")
    a(f"v_add_u32 v{T}, s45, v{T}")
    a("s_mov_b32 s46, 1152")
    a(f"v_mul_lo_u32 v{T}, v{T}, s46")
    a(f"v_lshrrev_b32 v{T+1}, 4, v0")
    a(f"v_lshl_add_u32 v{VXA}, v{T+1}, 4, v{T}")
    a("s_lshl_b32 s46, s24, 6")
    a(f"s_add_u32 s47, s46, {9*64}")
    a("s_mul_i32 s48, s24, 576")
    a(f"s_add_u32 s48, s48, {8*64}")
    a("s_cmp_ge_u32 s24, 2")
    a("s_cselect_b32 s48, 0x7f000000, s48")
    for q in range(3):
        for m in range(3):
            r = XF + (q * 3 + m) * 4
            a(f"v_add_u32 v{T+7}, s{46+q}, v{VXA}")
            if m: a(f"v_add_u32 v{T+7}, {m*16*1152}, v{T+7}")
            a(f"buffer_load_dwordx4 v[{r}:{r+3}], v{T+7}, {X_}, 0 offen")
            vm.issue("X")
    a(f"v_mov_b32 v{VOO}, {48*QSTR}")
    a(f"v_mov_b32 v{WOF}, 0x7f000000")
    a(f"v_lshlrev_b32 v{VL16}, 4, v0")
    a("s_mul_i32 s39, s24, 12")
    for jj in range(4):
        a(f"v_add_u32 v{T}, {64*jj}, v0")
        a(f"v_mul_u32_u24 v{T+1}, 3641, v{T}")
        a(f"v_lshrrev_b32 v{T+1}, 16, v{T+1}")
        a(f"v_mul_u32_u24 v{T+2}, 18, v{T+1}")
        a(f"v_sub_u32 v{T}, v{T}, v{T+2}")
        a(f"v_add_u32 v{T+1}, s39, v{T+1}")
        a(f"v_lshrrev_b32 v{T+2}, 5, v{T+1}")
        a(f"v_bfe_u32 v{T+3}, v{T+1}, 2, 2")
        a(f"v_bfe_u32 v{T+4}, v{T+1}, 4, 1")
        a(f"v_and_b32 v{T+1}, 3, v{T+1}")
        a(f"v_lshl_add_u32 v{T+1}, v{T+3}, 3, v{T+1}")
        a(f"v_lshl_add_u32 v{T+1}, v{T+4}, 2, v{T+1}")
        a(f"v_mul_u32_u24 v{T+1}, 3456, v{T+1}")
        a(f"v_mul_u32_u24 v{T+2}, 1152, v{T+2}")
        a(f"v_add_u32 v{T+1}, v{T+1}, v{T+2}")
        a(f"v_lshl_add_u32 v{VD+jj}, v{T}, 4, v{T+1}")
    a("s_mul_i32 s40, s24, 3456")
    a("s_mul_i32 s41, s36, 288")
    a("s_mul_i32 s42, s38, 57")
    a("s_lshr_b32 s42, s42, 9")
    a("s_mul_i32 s42, s42, 9")
    a("s_sub_u32 s42, s38, s42")
    a("s_mov_b32 s43, s42")
    def dma_pieces(k):
        slot = (k % 4) * 27648
        def piece(jj):
            if jj == 0:
                a(f"s_mul_i32 s44, s42, {32*3456}")
                a(f"s_add_u32 s44, s44, s41")
                if k >= 9: a(f"s_add_u32 s44, s44, {9*32*3456}")
                adv(a, 42, 9)
            a(f"s_add_u32 m0, s40, {slot + jj*1024}")
            a("s_mov_b64 exec, 0xffffff" if jj == 3 else "s_nop 0")
            a(f"buffer_load_dwordx4 v{VD+jj}, {WQKV_}, s44 offen lds")
            if jj == 3: a("s_mov_b64 exec, -1")
            vm.issue(("D", k))
        return [(lambda jj=jj: piece(jj)) for jj in range(4)]
    RST = WOF + 20
    NRS = int(OPT("nrs"))
    def reg_pieces(k):
        def piece(jj):
            if jj == 0:
                a(f"s_mul_i32 s44, s42, {32*3456}")
                a(f"s_add_u32 s44, s44, s41")
                adv(a, 42, 9)
            r = RST + (k - 4) * 16 + jj * 4
            if jj == 3: a("s_mov_b64 exec, 0xffffff")
            a(f"buffer_load_dwordx4 v[{r}:{r+3}], v{VD+jj}, {WQKV_}, s44 offen")
            if jj == 3: a("s_mov_b64 exec, -1")
            vm.issue(("R", k))
        return [(lambda jj=jj: piece(jj)) for jj in range(4)]
    if c.sync:
        phase0(c, DD, T, vm, None)
    a0 = a
    a = Sprinkle(c.a, [f for k in range(4) for f in dma_pieces(k)] + [f for k in range(4, 4 + NRS) for f in reg_pieces(k)], 12)
    a(f"v_mov_b32 v{T}, 0x3f803f80")
    n_before = len(vm.ops)
    if c.sync:
        labX = a.newlabel("P12_XW")
        a.busy = True
        a("s_waitcnt vmcnt(3)")
        a("s_cmp_eq_u32 s24, 0")
        a(f"s_cbranch_scc1 {labX}")
        a("s_waitcnt vmcnt(0)")
        a.label(labX)
        a.busy = False
    else:
        a("s_waitcnt vmcnt(0)")
    for m in range(3):
        first = True
        for q in range(3):
            for d in range(4):
                r = XF + (q * 3 + m) * 4 + d
                a(f"v_dot2_f32_bf16 v{STA+m}, v{r}, v{T}, " + ("0" if first else f"v{STA+m}"))
                first = False
    a.nop(3)
    red_g(a, [STA, STA + 1, STA + 2], T + 1)
    a(f"v_and_b32 v{T}, 15, v0")
    a(f"v_lshlrev_b32 v{T}, 5, v{T}")
    a(f"v_add_u32 v{T}, {SCR + 4096}, v{T}")
    a("s_lshl_b32 s45, s24, 2")
    a(f"v_add_u32 v{T+1}, s45, v{T}")
    def xchg(off):
        for m in range(3):
            a(f"ds_write_b32 v{T+1}, v{STA+m} offset:{off + m*512}")
        a("s_waitcnt lgkmcnt(0)")
        a("s_barrier")
        for m in range(3):
            a(f"ds_read_b128 v[{CF+8*m}:{CF+8*m+3}], v{T} offset:{off + m*512}")
            a(f"ds_read_b128 v[{CF+8*m+4}:{CF+8*m+7}], v{T} offset:{off + m*512 + 16}")
        a("s_waitcnt lgkmcnt(0)")
        for m in range(3):
            b = CF + 8 * m
            for e in range(4): a(f"v_add_f32 v{b+e}, v{b+e}, v{b+4+e}")
            a(f"v_add_f32 v{b}, v{b}, v{b+1}")
            a(f"v_add_f32 v{b+2}, v{b+2}, v{b+3}")
            a(f"v_add_f32 v{STA+m}, v{b}, v{b+2}")
    if c.sync: arrive0(c, a, T + 3, len(vm.ops) - n_before)
    xchg(0)
    for m in range(3):
        a(f"v_mul_f32 v{STA+3+m}, 0x{np_f32(1.0/576):08x}, v{STA+m}")
        a(f"v_mov_b32 v{STA+m}, 0")
    def dpass(q):
        for m in range(3):
            for d in range(4):
                r = XF + (q * 3 + m) * 4 + d; o = DD + ((q * 3 + m) * 4 + d) * 2
                a(f"v_lshlrev_b32 v{o}, 16, v{r}")
                a(f"v_and_b32 v{o+1}, 0xffff0000, v{r}")
                a(f"v_sub_f32 v{o}, v{o}, v{STA+3+m}")
                a(f"v_sub_f32 v{o+1}, v{o+1}, v{STA+3+m}")
                a(f"v_fmac_f32 v{STA+m}, v{o}, v{o}")
                a(f"v_fmac_f32 v{STA+m}, v{o+1}, v{o+1}")
    dpass(0); dpass(1)
    lab = a.newlabel("P12_Q2")
    a.busy = True
    a("s_cmp_ge_u32 s24, 2")
    a(f"s_cbranch_scc1 {lab}")
    dpass(2)
    a.label(lab)
    a.busy = False
    red_g(a, [STA, STA + 1, STA + 2], T + 2)
    xchg(2048)
    for m in range(3):
        ln_scalars(a, mean=STA + 3 + m, ssq=STA + m, rinv=STA + m, corr=STA + 3 + m, tmp=T + 2)
    for i in range(36):
        m = (i // 4) % 3
        for h in range(2):
            a(f"v_fma_f32 v{DD+2*i+h}, v{DD+2*i+h}, v{STA+m}, v{STA+3+m}")
    a.flush()
    a = a0
    st.stamp(1)
    if c.sync:
        wo_pack1(c)
        prefill(c, CF)
        wait0(c, T + 2, 0, 72)
    st.stamp()
    a(f"v_lshrrev_b32 v{T}, 4, v0")
    a(f"v_lshlrev_b32 v{T}, 4, v{T}")
    for q in range(3):
        a(f"s_add_u32 s45, s{46+q}, {wso('MODB')}")
        a(f"buffer_load_dwordx4 v[{CF+8*q}:{CF+8*q+3}], v{T}, {WS_}, s45 offen offset:1152{SC}")
        a(f"buffer_load_dwordx4 v[{CF+8*q+4}:{CF+8*q+7}], v{T}, {WS_}, s45 offen{SC}")
        vm.issue(("C", q), 2)
    for q in range(3):
        vm.wait(("C", q))
        for d in range(4):
            a(f"v_lshlrev_b32 v{T}, 16, v{CF+8*q+d}")
            a(f"v_and_b32 v{T+1}, 0xffff0000, v{CF+8*q+d}")
            a(f"v_lshlrev_b32 v{T+2}, 16, v{CF+8*q+4+d}")
            a(f"v_and_b32 v{T+3}, 0xffff0000, v{CF+8*q+4+d}")
            for m in range(3):
                o = DD + ((q * 3 + m) * 4 + d) * 2
                a(f"v_fma_f32 v{o}, v{o}, v{T}, v{T+2}")
                a(f"v_fma_f32 v{o+1}, v{o+1}, v{T+1}, v{T+3}")
                a(f"v_cvt_pk_bf16_f32 v{XF+(q*3+m)*4+d}, v{o}, v{o+1}")
    R.release(m0)
    XF = R.alloc(36, 4)
    ACC = R.alloc(40, 4); WB = R.alloc(32, 4); AB = R.alloc(24, 4); TB = R.alloc(2); VH = R.alloc(1); VHB = R.alloc(1); VHW = R.alloc(1)
    VW = R.alloc(2)
    a(f"v_add_u32 v{VW}, s40, v{VL16}")
    a(f"v_add_u32 v{VW+1}, {2*27648}, v{VW}")
    a("s_mul_i32 s45, s24, 3072")
    a(f"v_add_u32 v{VHB}, {H1OFF}, v{VL16}")
    a(f"v_add_u32 v{VHW}, s45, v{VHB}")
    def h1_write(half):
        for m in range(3):
            r = XF + (half * 3 + m) * 4
            a(f"ds_write_b128 v{VHW}, v[{r}:{r+3}] offset:{m*1024}")
        lab = a.newlabel("P12_H1")
        a(f"s_cmp_lg_u32 s24, {half}")
        a(f"s_cbranch_scc1 {lab}")
        for m in range(3):
            r = XF + (6 + m) * 4
            a(f"ds_write_b128 v{VHB}, v[{r}:{r+3}] offset:{8*3072 + m*1024}")
        a.label(lab)
        a("s_waitcnt lgkmcnt(0)")
    h1_write(0)
    if c.sync: wo_pack2(c)
    st.stamp(1)
    a(f"v_lshrrev_b32 v{T}, 2, v0")
    a(f"v_mul_u32_u24 v{T}, 288, v{T}")
    a(f"v_and_b32 v{T+1}, 3, v0")
    a(f"v_lshl_add_u32 v{T}, v{T+1}, 3, v{T}")
    a("s_cmp_ge_u32 s24, 3")
    a("s_cselect_b32 s49, 2, 1")
    a("s_cselect_b32 s50, 3, 0")
    a("s_sub_u32 s50, s24, s50")
    a("s_mul_i32 s50, s50, 3")
    a("s_sub_u32 s45, s24, 6")
    a("s_mul_i32 s45, s45, 5")
    a("s_cmp_ge_u32 s24, 6")
    a("s_cselect_b32 s49, 0, s49")
    a("s_cselect_b32 s50, s45, s50")
    a("s_mul_i32 s45, s49, 9216")
    a("s_lshl_b32 s46, s50, 5")
    a("s_add_u32 s45, s45, s46")
    a(f"v_add_u32 v{TB}, s45, v{T}")
    a(f"v_add_u32 v{TB+1}, {2*27648}, v{TB}")
    vm_save = list(vm.ops)
    labB = a.newlabel("P12_GB"); labE = a.newlabel("P12_GE")
    a("s_cmp_ge_u32 s24, 6")
    a(f"s_cbranch_scc1 {labB}")
    def gemm(NT, ms):
        lt = LTracker(a)
        vm.ops = list(vm_save)
        D = NT
        cnt = [0]; wreg = {}; pend = []
        def run(ks):
            items = [(k, n) for k in ks for n in range(NT)]
            def issue(idx):
                k, n = items[idx]
                if n == 0:
                    if 4 <= k < 4 + NRS: lt.wait(("S", k))
                    else: vm.wait(("D", k))
                    if "nobar" not in DBG or k in (0, 9): a("s_barrier")
                    if c.sync and NT == 3 and k == (5 if NRS == 0 else 10):
                        labZ = a.newlabel("P12_ARR2")
                        a("s_cmp_lg_u32 s24, 0")
                        a(f"s_cbranch_scc1 {labZ}")
                        a(f"v_mov_b32 v{T}, 1")
                        a("s_and_b32 s76, s2, 1")
                        a("s_lshl_b32 s76, s76, 6")
                        a("s_add_u32 s76, s76, 128")
                        a("s_mov_b64 exec, 1")
                        a(f"buffer_atomic_add v{T}, off, s[72:75], s76 sc1")
                        a("s_mov_b64 exec, -1")
                        a.label(labZ)
                    a("s_mul_i32 s45, s43, 3072")
                    adv(a, 43, 9)
                    a(f"v_add_u32 v{VH}, s45, v{VHB}")
                    for m in ms:
                        r = AB + ((k % 2) * 3 + m) * 4
                        lt.issue(("A", k), f"ds_read_b128 v[{r}:{r+3}], v{VH} offset:{m*1024}")
                    if 2 <= k and k + 2 < 4 + NRS:
                        def wpiece(jj, kk=k + 2):
                            if jj == 0: vm.wait(("R", kk))
                            r = RST + (kk - 4) * 16 + jj * 4
                            sl = kk % 4
                            if jj == 3: a("s_mov_b64 exec, 0xffffff")
                            lt.issue(("S", kk), f"ds_write_b128 v{VW+sl//2}, v[{r}:{r+3}] offset:{(sl%2)*27648 + jj*1024}")
                            if jj == 3: a("s_mov_b64 exec, -1")
                        pend.extend([(lambda jj=jj, f=wpiece: f(jj)) for jj in range(4)])
                    elif 2 <= k and k + 2 < 18:
                        pend.extend(dma_pieces(k + 2))
                w = WB + 4 * (cnt[0] % 8); cnt[0] += 1
                wreg[(k, n)] = w
                sl = k % 4
                o = (sl % 2) * 27648 + n * 32
                lt.issue((k, n), f"ds_read_b64_tr_b16 v[{w}:{w+1}], v{TB+sl//2} offset:{o}")
                lt.issue((k, n), f"ds_read_b64_tr_b16 v[{w+2}:{w+3}], v{TB+sl//2} offset:{o + 16*288}")
            for idx in range(D): issue(idx)
            for idx, (k, n) in enumerate(items):
                if idx + D < len(items): issue(idx + D)
                lt.wait((k, n), ("A", k))
                w = wreg[(k, n)]
                for mi, m in enumerate(ms):
                    d = ACC + (n * len(ms) + mi) * 4; b = AB + ((k % 2) * 3 + m) * 4
                    cc = "0" if k == 0 else f"v[{d}:{d+3}]"
                    a(f"v_mfma_f32_16x16x32_bf16 v[{d}:{d+3}], v[{w}:{w+3}], v[{b}:{b+3}], {cc}")
                for _ in range(2 if NT == 3 else 1):
                    if pend: pend.pop(0)()
        run(range(0, 9))
        a("s_barrier")
        h1_write(1)
        run(range(9, 18))
        assert not pend
        a("s_barrier")
        a.nop(4)
        a(f"v_and_b32 v{T}, 15, v0")
        a(f"v_mul_u32_u24 v{T}, {QSTR}, v{T}")
        a(f"v_lshrrev_b32 v{T+1}, 4, v0")
        a(f"v_lshl_add_u32 v{T}, v{T+1}, 4, v{T}")
        a("s_mul_i32 s45, s49, 576")
        a("s_lshl_b32 s46, s50, 6")
        a("s_add_u32 s45, s45, s46")
        a(f"v_add_u32 v{T}, s45, v{T}")
        for n in range(NT):
            if NT == 5 and n == 4:
                labS = a.newlabel("P12_S")
                a("s_cmp_eq_u32 s24, 7")
                a(f"s_cbranch_scc1 {labS}")
            for mi, m in enumerate(ms):
                d = ACC + (n * len(ms) + mi) * 4
                a(f"ds_write_b128 v{T}, v[{d}:{d+3}] offset:{m*16*QSTR + n*64}")
        if NT == 5: a.label(labS)
    gemm(3, [0, 1, 2])
    a(f"s_branch {labE}")
    a.label(labB)
    gemm(5, [1, 2])
    a.label(labE)
    if c.sync:
        wait0(c, T + 2, 128, 256)
        if OPT("warm") == "late": warm_w13(c, VD3)
    st.stamp()
    a = Sprinkle(c.a, wof_pieces(c, VL16), int(OPT('spr')))
    R.release(m0)
    Q = R.alloc(18, 2); KB = R.alloc(72, 2); LG = R.alloc(8, 2); O = R.alloc(18, 2); P = R.alloc(8, 2)
    VR = R.alloc(1); VQ = R.alloc(1); VK = R.alloc(1)
    a(f"v_lshrrev_b32 v{VR}, 4, v0")
    a("s_lshl_b32 s45, s24, 2")
    a(f"v_add_u32 v{VR}, s45, v{VR}")
    a(f"v_bfe_u32 v{T}, v0, 1, 3")
    a(f"v_mul_u32_u24 v{T}, 72, v{T}")
    a(f"v_mul_u32_u24 v{VQ}, {QSTR}, v{VR}")
    a(f"v_add_u32 v{VQ}, v{VQ}, v{T}")
    a(f"v_and_b32 v{T+1}, 1, v0")
    a(f"v_mul_u32_u24 v{T+2}, {8*QSTR}, v{T+1}")
    a(f"v_sub_u32 v{VK}, v{VQ}, v{T+2}")
    a(f"v_add_u32 v{VK}, {10*QSTR}, v{VK}")
    a("s_waitcnt lgkmcnt(0)")
    a("s_barrier")
    st.stamp(1)
    lt = LTracker(a)
    for i in range(9):
        lt.issue("q", f"ds_read_b64 v[{Q+2*i}:{Q+2*i+1}], v{VQ} offset:{16*QSTR + 8*i}")
    def rdrow(jj, part, i):
        dst = KB + 18 * jj + 2 * i
        lt.issue((part, jj, i), f"ds_read_b64 v[{dst}:{dst+1}], v{VK} offset:{(6-2*jj)*QSTR + part*576 + 8*i}")
    for i in range(9):
        for jj in range(4): rdrow(jj, 1, i)
    for i in range(9):
        lt.wait("q", (1, 3, i))
        for jj in range(4):
            k = KB + 18 * jj + 2 * i
            if i == 0:
                a(f"v_pk_mul_f32 v[{LG+2*jj}:{LG+2*jj+1}], v[{k}:{k+1}], v[{Q}:{Q+1}]")
            else:
                a(f"v_pk_fma_f32 v[{LG+2*jj}:{LG+2*jj+1}], v[{k}:{k+1}], v[{Q+2*i}:{Q+2*i+1}], v[{LG+2*jj}:{LG+2*jj+1}]")
        for jj in range(4): rdrow(jj, 2, i)
    for jj in range(4):
        a(f"v_add_f32 v{LG+2*jj}, v{LG+2*jj}, v{LG+2*jj+1}")
    labM = a.newlabel("P12_NOMASK")
    a.busy = True
    a("s_cmp_lg_u32 s37, 0")
    a(f"s_cbranch_scc1 {labM}")
    a(f"v_mov_b32 v{T}, 0x{np_f32(-1e9):08x}")
    a(f"v_lshlrev_b32 v{T+2}, 3, v{T+1}")
    for jj in range(4):
        a(f"v_add_u32 v{T+3}, {2*jj}, v{T+2}")
        a(f"v_cmp_le_u32 vcc, v{T+3}, v{VR}")
        a("s_nop 1")
        a(f"v_cndmask_b32 v{LG+2*jj}, v{T}, v{LG+2*jj}, vcc")
    a.label(labM)
    a.busy = False
    cs = np_f32(18 ** -0.5 * 1.4426950408889634)
    a(f"s_mov_b32 s45, 0x{cs:08x}")
    a(f"v_max3_f32 v{T}, v{LG}, v{LG+2}, v{LG+4}")
    a(f"v_max_f32 v{T}, v{T}, v{LG+6}")
    a("s_nop 1")
    a(f"v_max_f32_dpp v{T}, v{T}, v{T} quad_perm:[1,0,3,2] row_mask:0xf bank_mask:0xf")
    a(f"v_mul_f32 v{T}, s45, v{T}")
    for jj in range(4):
        a(f"v_fma_f32 v{LG+2*jj}, v{LG+2*jj}, s45, -v{T}")
    for jj in range(4):
        a(f"v_exp_f32 v{LG+2*jj}, v{LG+2*jj}")
    a("s_nop 0")
    a(f"v_add_f32 v{T}, v{LG}, v{LG+2}")
    a(f"v_add_f32 v{T+2}, v{LG+4}, v{LG+6}")
    a(f"v_add_f32 v{T}, v{T}, v{T+2}")
    a("s_nop 1")
    a(f"v_add_f32_dpp v{T}, v{T}, v{T} quad_perm:[1,0,3,2] row_mask:0xf bank_mask:0xf")
    a(f"v_rcp_f32 v{T}, v{T}")
    a("s_nop 0")
    for jj in range(4):
        a(f"v_mul_f32 v{P+2*jj}, v{LG+2*jj}, v{T}")
    a("s_waitcnt lgkmcnt(0)")
    st.stamp(1)
    for jj in range(4):
        for i in range(9):
            k = KB + 18 * jj + 2 * i
            if jj == 0:
                a(f"v_pk_mul_f32 v[{O+2*i}:{O+2*i+1}], v[{k}:{k+1}], v[{P}:{P+1}] op_sel_hi:[1,0]")
            else:
                a(f"v_pk_fma_f32 v[{O+2*i}:{O+2*i+1}], v[{k}:{k+1}], v[{P+2*jj}:{P+2*jj+1}], v[{O+2*i}:{O+2*i+1}] op_sel_hi:[1,0,1]")
    a("s_nop 1")
    for i in range(18):
        a(f"v_add_f32_dpp v{O+i}, v{O+i}, v{O+i} quad_perm:[1,0,3,2] row_mask:0xf bank_mask:0xf")
    OOFF = 48 * QSTR
    a(f"v_mul_u32_u24 v{T+2}, {OSTR}, v{VR}")
    a(f"v_bfe_u32 v{T}, v0, 1, 3")
    a(f"v_mul_u32_u24 v{T}, 36, v{T}")
    a(f"v_add3_u32 v{T}, v{T}, v{T+2}, v{VOO}")
    for i in range(9):
        a(f"v_cvt_pk_bf16_f32 v{O+2*i}, v{O+2*i}, v{O+2*i+1}")
        a(f"ds_write_b32 v{T}, v{O+2*i} offset:{4*i}")
    spr = a
    a = c.a
    a("s_lshl_b32 s45, s24, 6")
    a(f"v_add_u32 v{T}, s45, v0")
    a("s_mul_i32 s46, s36, 18")
    a("s_mul_i32 s47, s37, 36864")
    a(f"s_add_u32 s47, s47, {wso('OF')}")
    a("s_waitcnt lgkmcnt(0)")
    a("s_barrier")
    st.stamp()
    for ps in range(2):
        if ps == 1:
            labP = a.newlabel("P12_PUB")
            a("s_cmp_lg_u32 s24, 0")
            a(f"s_cbranch_scc1 {labP}")
            a(f"v_add_u32 v{T}, 512, v0")
        a(f"v_and_b32 v{T+1}, 31, v{T}")
        a(f"v_lshrrev_b32 v{T+2}, 5, v{T}")
        a(f"v_mul_u32_u24 v{T+3}, {OSTR}, v{T+1}")
        a(f"v_lshl_add_u32 v{T+3}, v{T+2}, 4, v{T+3}")
        a(f"v_add_u32 v{T+3}, v{T+3}, v{VOO}")
        a(f"ds_read_b128 v[{Q}:{Q+3}], v{T+3}")
        a(f"v_add_u32 v{T+2}, s46, v{T+2}")
        a(f"v_lshrrev_b32 v{T+3}, 4, v{T+1}")
        a(f"v_mul_u32_u24 v{T+3}, 1152, v{T+3}")
        a(f"v_lshl_add_u32 v{T+3}, v{T+2}, 4, v{T+3}")
        a(f"v_and_b32 v{T+1}, 15, v{T+1}")
        a(f"v_add_u32 v{T+3}, v{T+3}, v{T+1}")
        a(f"v_lshlrev_b32 v{T+3}, 4, v{T+3}")
        a("s_waitcnt lgkmcnt(0)")
        a(f"v_min_u32 v{Q}, -2, v{Q}")
        a(f"buffer_store_dwordx4 v[{Q}:{Q+3}], v{T+3}, {WS_}, s47 offen{SC}")
    a.label(labP)
    spr.flush()
    a("s_barrier")
    st.stamp()

def phase0_loads(c, B):
    a = c.a
    a("s_lshr_b32 s76, s2, 5")
    a("s_lshl_b32 s76, s76, 3")
    a("s_and_b32 s77, s2, 7")
    a("s_add_u32 s76, s76, s77")
    a("s_lshl_b32 s76, s76, 2")
    a("s_bfe_u32 s77, s2, 0x20003")
    a("s_add_u32 s80, s76, s77")
    a("s_lshl_b32 s76, s24, 6")
    a(f"v_add_u32 v{B}, s76, v0")
    a(f"v_and_b32 v{B+1}, 1, v{B}")
    a(f"v_lshrrev_b32 v{B+2}, 1, v{B}")
    a(f"v_mul_u32_u24 v{B+3}, 6912, v{B+2}")
    a(f"v_lshl_add_u32 v{B+3}, v{B+1}, 4, v{B+3}")
    a("s_lshl_b32 s76, s80, 5")
    a("s_cmp_ge_u32 s80, 216")
    a("s_cselect_b32 s76, 0x7f000000, s76")
    a(f"v_add_u32 v{B+3}, s76, v{B+3}")
    a(f"v_lshlrev_b32 v{B+4}, 1, v{B+2}")
    W = B + 8; C = B + 20
    a(f"s_mov_b32 s77, {256*6912}")
    a(f"s_mov_b32 s78, {512*6912}")
    for q, so in enumerate(("0", "s77", "s78")):
        a(f"buffer_load_dwordx4 v[{W+4*q}:{W+4*q+3}], v{B+3}, s[60:63], {so} offen")
        a(f"buffer_load_ushort v{C+q}, v{B+4}, s[64:67], 0 offen offset:{512*q}")

def phase0(c, B, T, vm, bulk0):
    a = c.a
    W = B + 8; C = B + 20
    a("s_waitcnt vmcnt(9)")
    c.st.stamp(1)
    A8 = B + 44
    for q in range(3):
        cc = C + q
        a(f"v_lshlrev_b32 v{cc}, 16, v{cc}")
        a(f"v_mul_f32 v{T}, {NLOG2E}, v{cc}")
        a(f"v_exp_f32 v{T}, v{T}")
        a("s_nop 0")
        a(f"v_add_f32 v{T}, 1.0, v{T}")
        a(f"v_rcp_f32 v{T}, v{T}")
        a("s_nop 0")
        a(f"v_mul_f32 v{cc}, v{cc}, v{T}")
        bf16_round(a, cc, cc)
        for d in range(4):
            w = W + 4 * q + d
            a(f"v_lshlrev_b32 v{T}, 16, v{w}")
            a(f"v_and_b32 v{T+1}, 0xffff0000, v{w}")
            if q == 0:
                a(f"v_mul_f32 v{A8+2*d}, v{cc}, v{T}")
                a(f"v_mul_f32 v{A8+2*d+1}, v{cc}, v{T+1}")
            else:
                a(f"v_fmac_f32 v{A8+2*d}, v{cc}, v{T}")
                a(f"v_fmac_f32 v{A8+2*d+1}, v{cc}, v{T+1}")
    for rr in (2, 4, 8):
        for e in range(8):
            a(f"v_add_f32_dpp v{A8+e}, v{A8+e}, v{A8+e} row_ror:{rr} row_mask:0xf bank_mask:0xf")
    a(f"v_lshrrev_b32 v{T}, 4, v{B}")
    a(f"v_lshlrev_b32 v{T}, 6, v{T}")
    a(f"v_lshl_add_u32 v{T}, v{B+1}, 5, v{T}")
    a(f"v_add_u32 v{T}, {SCR}, v{T}")
    a(f"ds_write_b128 v{T}, v[{A8}:{A8+3}]")
    a(f"ds_write_b128 v{T}, v[{A8+4}:{A8+7}] offset:16")
    a("s_waitcnt lgkmcnt(0)")
    a("s_barrier")
    labF = a.newlabel("P0_FIN"); labW = a.newlabel("P0_WO")
    a("s_cmp_lg_u32 s24, 0")
    a(f"s_cbranch_scc1 {labW}")
    a(f"v_and_b32 v{T}, 15, v0")
    a(f"v_lshrrev_b32 v{T+1}, 4, v0")
    a(f"v_lshlrev_b32 v{T+1}, 9, v{T+1}")
    a(f"v_lshl_add_u32 v{T+1}, v{T}, 2, v{T+1}")
    a(f"v_add_u32 v{T+1}, {SCR}, v{T+1}")
    for e in range(8):
        a(f"ds_read_b32 v{A8+e}, v{T+1} offset:{64*e}")
    a("s_waitcnt lgkmcnt(0)")
    for e in range(1, 8):
        a(f"v_add_f32 v{A8}, v{A8}, v{A8+e}")
    red_g(a, [A8], T + 1)
    bf16_round(a, A8, A8)
    a("s_mul_i32 s76, s80, 1821")
    a("s_lshr_b32 s76, s76, 16")
    a("s_mov_b32 s77, 0")
    a("s_cmp_eq_u32 s76, 1")
    a("s_cselect_b32 s77, 1.0, s77")
    a("s_cmp_eq_u32 s76, 4")
    a("s_cselect_b32 s77, 1.0, s77")
    a(f"v_add_f32 v{A8}, s77, v{A8}")
    bf16_round(a, A8, A8)
    a(f"v_lshlrev_b32 v{T+1}, 2, v{T}")
    a(f"v_lshlrev_b32 v{T}, 1, v{T}")
    a(f"v_lshrrev_b32 v{A8+1}, 16, v{A8}")
    a("s_lshl_b32 s76, s80, 6")
    a(f"s_add_u32 s76, s76, {wso('MOD')}")
    a("s_lshl_b32 s77, s80, 5")
    a(f"s_add_u32 s77, s77, {wso('MODB')}")
    a("s_cmp_ge_u32 s80, 216")
    a("s_cselect_b32 s76, 0x7f000000, s76")
    a("s_cselect_b32 s77, 0x7f000000, s77")
    a(f"v_mov_b32 v{A8+2}, 0")
    a("s_lshl_b32 s78, s2, 6")
    a("s_mov_b64 exec, 0xffff")
    a(f"buffer_store_short v{A8+1}, v{T}, {WS_}, s77 offen{SC}")
    a(f"buffer_store_dword v{A8}, v{T+1}, {WS_}, s76 offen{SC}")
    a(f"buffer_store_dword v{A8+2}, v{T+1}, {WS_}, s78 offen{SC}")
    a("s_mov_b64 exec, -1")
    a(f"s_branch {labF}")
    a.label(labW)
    a.label(labF)
    if OPT("warm") == "early": warm_w13(c, WOF + 24)
    c.st.stamp(1)

def arrive0(c, a, T, pending):
    lab = a.newlabel("P0_ARR")
    a.busy = True
    a("s_cmp_lg_u32 s24, 0")
    a(f"s_cbranch_scc1 {lab}")
    a(f"v_mov_b32 v{T}, 1")
    a("s_and_b32 s76, s2, 1")
    a("s_lshl_b32 s76, s76, 6")
    a("s_cmp_ge_u32 s80, 72")
    a("s_cselect_b32 s76, 0x7f000000, s76")
    a("s_mov_b64 exec, 1")
    a(f"s_waitcnt vmcnt({pending})")
    a(f"buffer_atomic_add v{T}, off, s[72:75], s76 sc1")
    a("s_mov_b64 exec, -1")
    a.label(lab)
    a.busy = False

def wo_pack1(c):
    a = c.a
    lab = a.newlabel("P0_W1")
    a("s_lshl_b32 s76, s24, 6")
    a(f"v_add_u32 v{WOF+6}, s76, v0")
    a("s_cmp_lt_u32 s24, 5")
    a(f"s_cbranch_scc1 {lab}")
    P = WOF
    a("s_mul_i32 s76, s2, 162")
    a("s_sub_u32 s76, s76, 320")
    a(f"v_add_u32 v{P}, s76, v{P+6}")
    a(f"v_lshrrev_b32 v{P+1}, 6, v{P}")
    a(f"v_mul_u32_u24 v{P+2}, 3641, v{P+1}")
    a(f"v_lshrrev_b32 v{P+2}, 16, v{P+2}")
    a(f"v_mul_u32_u24 v{P+3}, 18, v{P+2}")
    a(f"v_sub_u32 v{P+3}, v{P+1}, v{P+3}")
    a(f"v_and_b32 v{P+4}, 15, v{P}")
    a(f"v_lshl_add_u32 v{P+4}, v{P+2}, 4, v{P+4}")
    a(f"v_bfe_u32 v{P+5}, v{P}, 4, 2")
    a(f"v_lshlrev_b32 v{P+5}, 3, v{P+5}")
    a(f"v_lshl_add_u32 v{P+5}, v{P+3}, 5, v{P+5}")
    a(f"v_mul_u32_u24 v{P+5}, 1152, v{P+5}")
    a(f"v_lshl_add_u32 v{P+5}, v{P+4}, 1, v{P+5}")
    a(f"v_lshlrev_b32 v{P}, 4, v{P}")
    a(f"v_cmp_gt_u32 vcc, 482, v{P+6}")
    a(f"v_mov_b32 v{P+1}, 0x7f000000")
    a("s_nop 0")
    a(f"v_cndmask_b32 v{P}, v{P+1}, v{P}, vcc")
    a(f"v_cndmask_b32 v{P+5}, v{P+1}, v{P+5}, vcc")
    a("s_mov_b32 s77, 4608")
    for j in range(8):
        so = "0" if j < 4 else "s77"
        a(f"buffer_load_ushort v{P+8+j}, v{P+5}, s[68:71], {so} offen offset:{(j%4)*1152}")
    a.label(lab)

def wo_pack2(c):
    a = c.a; P = WOF
    lab = a.newlabel("P0_W2")
    a("s_cmp_lt_u32 s24, 5")
    a(f"s_cbranch_scc1 {lab}")
    a("s_waitcnt vmcnt(0)")
    for d in range(4):
        a(f"v_lshl_or_b32 v{P+16+d}, v{P+9+2*d}, 16, v{P+8+2*d}")
    a(f"s_mov_b32 s77, {wso('WOP')}")
    a(f"buffer_store_dwordx4 v[{P+16}:{P+19}], v{P}, {WS_}, s77 offen{SC}")
    a.label(lab)

def wo_pack3(c):
    a = c.a; P = WOF
    lab = a.newlabel("P0_W3")
    a("s_cmp_lt_u32 s24, 5")
    a(f"s_cbranch_scc1 {lab}")
    a(f"v_mov_b32 v{P+1}, 1")
    a("s_and_b32 s76, s2, 1")
    a("s_lshl_b32 s76, s76, 6")
    a("s_add_u32 s76, s76, 128")
    a("s_mov_b64 exec, 1")
    a("s_waitcnt vmcnt(0)")
    a(f"buffer_atomic_add v{P+1}, off, s[72:75], s76 sc1")
    a("s_mov_b64 exec, -1")
    a.label(lab)

def wait0(c, vt, base, target):
    a = c.a
    done = a.newlabel("W0DONE"); loop = a.newlabel("W0LOOP")
    a("s_cmp_lg_u32 s24, 0")
    a(f"s_cbranch_scc1 {done}")
    a("s_mov_b32 s56, 0")
    a(f"v_and_b32 v{vt+1}, 1, v0")
    a(f"v_lshlrev_b32 v{vt+1}, 6, v{vt+1}")
    a.label(loop)
    a(f"buffer_load_dword v{vt}, v{vt+1}, s[72:75], 0 offen offset:{base} sc1")
    a("s_waitcnt vmcnt(0)")
    a(f"v_readlane_b32 s76, v{vt}, 0")
    a(f"v_readlane_b32 s77, v{vt}, 1")
    a("s_add_u32 s56, s56, 1")
    a("s_add_u32 s76, s76, s77")
    a(f"s_cmp_ge_u32 s76, {target}")
    a(f"s_cbranch_scc1 {done}")
    a("s_cmp_gt_u32 s56, 0x400000")
    a(f"s_cbranch_scc1 {done}")
    a("s_sleep 4")
    a(f"s_branch {loop}")
    a.label(done)
    a("s_barrier")

def wof_pieces(c, VL16):
    a = c.a
    def setup():
        a("s_and_b32 s52, s2, 3")
        a("s_mul_i32 s53, s52, 9")
        a("s_and_b32 s54, s24, 1")
        a("s_mul_i32 s54, s54, 5")
        a("s_add_u32 s53, s53, s54")
        a("s_mul_i32 s53, s53, 18")
        a("s_lshr_b32 s54, s24, 1")
        a("s_mul_i32 s54, s54, 5")
        a("s_add_u32 s53, s53, s54")
        a("s_lshl_b32 s53, s53, 10")
        a(f"s_add_u32 s53, s53, {wso('WOP')}")
    def piece(i, u):
        if u == 0:
            a(f"s_add_u32 s55, s54, {i}")
            a("s_cmp_ge_u32 s55, 18")
            a("s_cselect_b32 s55, 0x7f000000, s53")
        r = WOF + (i * 5 + u) * 4
        a(f"s_add_u32 s52, s55, {u*18432 + i*1024}")
        a(f"buffer_load_dwordx4 v[{r}:{r+3}], v{VL16}, {WS_}, s52 offen")
    return [setup] + [(lambda i=i, u=u: piece(i, u)) for i in range(5) for u in range(5)]

def wof_loads(c, VL16):
    for f in wof_pieces(c, VL16): f()

SLOT3 = 36992
UPOFF = 18560
VD3 = 150
REDOFF = 2 * SLOT3
class WStream:
    def __init__(self, c, sg, srd, ldw, slot_of):
        self.c = c; self.sg = sg; self.srd = srd; self.ldw = ldw; self.slot_of = slot_of; self.VD = None
    def pieces(self, i, vm=None):
        a = self.c.a; g = self.sg
        slot = self.slot_of(i) * SLOT3
        def piece(j):
            if j == 0:
                a(f"s_mul_i32 s{g+3}, s{g+2}, {64*self.ldw}")
                a(f"s_add_u32 s{g+3}, s{g+3}, s{g+1}")
                adv(a, g + 2, 9)
            a(f"s_add_u32 m0, s{g}, {slot + j*1024}")
            a("s_mov_b64 exec, 0xffffffff" if j == 4 else "s_nop 0")
            a(f"buffer_load_dwordx4 v{self.VD+j}, {self.srd}, s{g+3} offen lds")
            if j == 4: a("s_mov_b64 exec, -1")
            if vm is not None: vm.issue(("D", i))
        return [(lambda j=j: piece(j)) for j in range(5)]

def w3_setup(c, VD, T):
    a = c.a
    w = WStream(c, 76, W13_, 9216, lambda i: i % 4); w.VD = VD
    dma_voffsets(a, VD, 5, 0, 9216, T)
    a("s_and_b32 s79, s24, 3")
    a("s_lshr_b32 s76, s24, 2")
    a(f"s_mul_i32 s76, s76, {UPOFF}")
    a("s_mul_i32 s77, s79, 4608")
    a("s_add_u32 s76, s76, s77")
    a(f"s_mul_i32 s77, s79, {16*9216}")
    a("s_and_b32 s79, s2, 31")
    a("s_mul_i32 s78, s79, 288")
    a("s_add_u32 s77, s77, s78")
    a("s_lshr_b32 s78, s79, 3")
    a("s_lshl_b32 s78, s78, 1")
    a("s_lshr_b32 s79, s2, 5")
    a("s_add_u32 s78, s78, s79")
    a("s_cmp_ge_u32 s78, 9")
    a("s_cselect_b32 s79, 9, 0")
    a("s_sub_u32 s78, s78, s79")
    if OPT("rot3") == "0": a("s_mov_b32 s78, 0")
    if OPT("rot3") == "m": a("s_lshr_b32 s78, s2, 5")
    a("s_mov_b32 s3, s78")
    return w

def w4_setup(c, VD, T):
    a = c.a
    w = WStream(c, 80, W2_, 1152, lambda i: (i + 1) % 4); w.VD = VD
    dma_voffsets(a, VD, 5, 0, 1152, T)
    a("s_lshr_b32 s83, s24, 2")
    a("s_mul_i32 s80, s83, 18432")
    a("s_and_b32 s82, s24, 3")
    a("s_mul_i32 s81, s82, 4608")
    a("s_add_u32 s80, s80, s81")
    a("s_bfe_u32 s81, s2, 0x20001")
    a("s_mul_i32 s81, s81, 1152")
    a("s_mul_i32 s83, s83, 576")
    a("s_add_u32 s81, s81, s83")
    a("s_lshl_b32 s82, s82, 4")
    a("s_add_u32 s81, s81, s82")
    a("s_mul_i32 s81, s81, 1152")
    a("s_lshr_b32 s82, s2, 6")
    a("s_mul_i32 s83, s82, 288")
    a("s_add_u32 s81, s81, s83")
    a("s_lshl_b32 s82, s82, 1")
    a("s_bfe_u32 s83, s2, 0x30003")
    a("s_add_u32 s82, s82, s83")
    a("s_cmp_ge_u32 s82, 9")
    a("s_cselect_b32 s83, 9, 0")
    a("s_sub_u32 s82, s82, s83")
    if OPT("rot4") == "0": a("s_mov_b32 s82, 0")
    if OPT("rot4") == "m": a("s_bfe_u32 s82, s2, 0x30003")
    a("s_mov_b32 s25, s82")
    return w

RSTR = 656
def ph2w(c, standalone=False):
    a = c.a; st = c.st
    a("s_and_b32 s36, s2, 3")
    a("s_bfe_u32 s37, s2, 0x10002")
    a("s_lshl_b32 s37, s37, 5")
    a("s_lshr_b32 s38, s2, 3")
    a("s_add_u32 s37, s37, s38")
    a("s_lshr_b32 s39, s24, 1")
    a("s_and_b32 s40, s24, 1")
    R = Regs(1, VD3)
    T = R.alloc(8)
    VL16 = R.alloc(1)
    AF = R.alloc(40, 4); ACC = R.alloc(40, 4)
    XR = R.alloc(8, 4); GA = R.alloc(8, 4); C2 = R.alloc(8, 4); X1V = R.alloc(16, 2)
    VC = R.alloc(1); VX = R.alloc(1); VROW = R.alloc(1); VRD = R.alloc(2)
    a(f"v_lshlrev_b32 v{VL16}, 4, v0")
    if standalone:
        wof_loads(c, VL16)
    a(f"v_and_b32 v{VC}, 31, v0")
    a(f"v_lshrrev_b32 v{VROW}, 5, v0")
    a("s_lshl_b32 s41, s24, 1")
    a(f"v_add_u32 v{VROW}, s41, v{VROW}")
    a("s_lshl_b32 s41, s37, 5")
    a(f"v_add_u32 v{T}, s41, v{VROW}")
    a(f"v_mul_u32_u24 v{VX}, 1152, v{T}")
    a("s_mul_i32 s42, s36, 288")
    a(f"v_lshl_add_u32 v{VX}, v{VC}, 4, v{VX}")
    a(f"v_add_u32 v{VX}, s42, v{VX}")
    a(f"v_cmp_gt_u32 vcc, 18, v{VC}")
    a(f"v_mov_b32 v{T+1}, 0x7f000000")
    a("s_nop 0")
    a(f"v_cndmask_b32 v{VX}, v{T+1}, v{VX}, vcc")
    a("s_mov_b64 s[50:51], vcc")
    a(f"s_mov_b32 s43, {16*1152}")
    a(f"buffer_load_dwordx4 v[{XR}:{XR+3}], v{VX}, {X_}, 0 offen")
    a(f"buffer_load_dwordx4 v[{XR+4}:{XR+7}], v{VX}, {X_}, s43 offen")
    a(f"v_lshlrev_b32 v{T+1}, 5, v{VC}")
    a("s_mul_i32 s44, s36, 576")
    a(f"s_add_u32 s44, s44, {wso('MOD') + 2*576*4}")
    a(f"buffer_load_dwordx4 v[{GA}:{GA+3}], v{T+1}, {WS_}, s44 offen{SC}")
    a(f"buffer_load_dwordx4 v[{GA+4}:{GA+7}], v{T+1}, {WS_}, s44 offen offset:16{SC}")
    a(f"v_lshlrev_b32 v{T+1}, 4, v{VC}")
    a(f"s_add_u32 s44, s42, {wso('MODB') + 4*1152}")
    a(f"buffer_load_dwordx4 v[{C2}:{C2+3}], v{T+1}, {WS_}, s44 offen{SC}")
    a(f"s_add_u32 s44, s42, {wso('MODB') + 3*1152}")
    a(f"buffer_load_dwordx4 v[{C2+4}:{C2+7}], v{T+1}, {WS_}, s44 offen{SC}")
    st.stamp()
    if c.sync:
        c.w3 = w3_setup(c, VD3, T)
    a("s_mul_i32 s46, s37, 36864")
    a(f"s_add_u32 s46, s46, {wso('OF')}")
    a("s_mul_i32 s47, s39, 5")
    def act_loads():
        for i in range(5):
            a(f"s_add_u32 s48, s47, {i}")
            a("s_min_u32 s48, s48, 17")
            a("s_lshl_b32 s48, s48, 10")
            a("s_add_u32 s48, s48, s46")
            a("s_add_u32 s49, s48, 18432")
            for mt in range(2):
                r = AF + (i * 2 + mt) * 4
                a(f"buffer_load_dwordx4 v[{r}:{r+3}], v{VL16}, {WS_}, s{48+mt} offen{SC}")
    poll_loads(c, act_loads, [AF + 4 * q for q in range(10)], T)
    st.stamp(1)
    a(f"v_and_b32 v{T}, 15, v0")
    a(f"v_mul_u32_u24 v{T}, {RSTR}, v{T}")
    a(f"v_lshrrev_b32 v{T+1}, 4, v0")
    a(f"v_lshl_add_u32 v{T}, v{T+1}, 4, v{T}")
    a(f"s_mul_i32 s48, s39, {32*RSTR}")
    a("s_mul_i32 s49, s40, 320")
    a("s_add_u32 s48, s48, s49")
    a(f"s_add_u32 s48, s48, {REDOFF}")
    a(f"v_add_u32 v{T}, s48, v{T}")
    a(f"v_mul_u32_u24 v{VRD}, {RSTR}, v{VROW}")
    a(f"v_min_u32 v{T+1}, 17, v{VC}")
    a(f"v_lshl_add_u32 v{VRD}, v{T+1}, 5, v{VRD}")
    a(f"v_add_u32 v{VRD}, {REDOFF}, v{VRD}")
    a(f"v_add_u32 v{VRD+1}, {16*RSTR}, v{VRD}")
    early = (c.w3.pieces(0) + c.w3.pieces(1)) if (c.sync and OPT("early") == "1") else []
    for i in range(5):
        for u in range(5):
            w = WOF + (i * 5 + u) * 4
            for mt in range(2):
                d = ACC + (mt * 5 + u) * 4; b = AF + (i * 2 + mt) * 4
                cc = "0" if i == 0 else f"v[{d}:{d+3}]"
                a(f"v_mfma_f32_16x16x32_bf16 v[{d}:{d+3}], v[{w}:{w+3}], v[{b}:{b+3}], {cc}")
            if early and u % 2 == 1: early.pop(0)()
    assert not early
    a.nop(8)
    for mt in range(2):
        for u in range(5):
            d = ACC + (mt * 5 + u) * 4
            a(f"ds_write_b128 v{T}, v[{d}:{d+3}] offset:{mt*16*RSTR + u*64}")
    a("s_waitcnt lgkmcnt(0)")
    a("s_barrier")
    st.stamp(1)
    RD = AF
    S0 = ACC
    RD2 = ACC + 8
    a(f"s_mov_b32 s52, {wso('X1')}")
    a(f"s_add_u32 s53, s52, {16*1152}")
    def red32(vals, tmp):
        for ctl in ("quad_perm:[1,0,3,2]", "quad_perm:[2,3,0,1]", "row_half_mirror", "row_mirror"):
            a("s_nop 0")
            for v in vals:
                a(f"v_add_f32_dpp v{v}, v{v}, v{v} {ctl} row_mask:0xf bank_mask:0xf")
        for i, v in enumerate(vals):
            a(f"v_mov_b32 v{tmp+i}, v{v}")
        a("s_nop 1")
        for i, v in enumerate(vals):
            a(f"v_permlane16_swap_b32 v{v}, v{tmp+i}")
        for i, v in enumerate(vals):
            a(f"v_add_f32 v{v}, v{v}, v{tmp+i}")
    for ps in range(2):
        B = RD if ps == 0 else RD2
        for kq in range(4):
            for hf in range(2):
                r = B + (kq * 2 + hf) * 4
                a(f"ds_read_b128 v[{r}:{r+3}], v{VRD+ps} offset:{kq*32*RSTR + hf*16}")
    for ps in range(2):
        B = RD if ps == 0 else RD2
        a(f"s_waitcnt lgkmcnt({8 if ps == 0 else 0})")
        for e in range(8):
            a(f"v_add_f32 v{B+e}, v{B+e}, v{B+8+e}")
            a(f"v_add_f32 v{B+16+e}, v{B+16+e}, v{B+24+e}")
            a(f"v_add_f32 v{B+e}, v{B+e}, v{B+16+e}")
        XV = X1V + 8 * ps
        for d in range(4):
            x = XR + 4 * ps + d
            a(f"v_lshlrev_b32 v{T+1}, 16, v{x}")
            a(f"v_and_b32 v{T+2}, 0xffff0000, v{x}")
            a(f"v_fmac_f32 v{T+1}, v{GA+2*d}, v{B+2*d}")
            a(f"v_fmac_f32 v{T+2}, v{GA+2*d+1}, v{B+2*d+1}")
            a(f"v_cvt_pk_bf16_f32 v{x}, v{T+1}, v{T+2}")
            a(f"v_lshlrev_b32 v{XV+2*d}, 16, v{x}")
            a(f"v_and_b32 v{XV+2*d+1}, 0xffff0000, v{x}")
        a(f"buffer_store_dwordx4 v[{XR+4*ps}:{XR+4*ps+3}], v{VX}, {WS_}, s{52+ps} offen{SC}")
        sm = S0 + 2 * ps
        a(f"v_add_f32 v{sm}, v{XV}, v{XV+1}")
        for e in range(2, 8):
            a(f"v_add_f32 v{sm}, v{sm}, v{XV+e}")
        a(f"v_cndmask_b32 v{sm}, 0, v{sm}, s[50:51]")
    red32([S0, S0 + 2], T + 1)
    for ps in range(2):
        XV = X1V + 8 * ps; sm = S0 + 2 * ps; m2 = sm + 1
        a(f"v_mul_f32 v{T+2}, 0x{np_f32(1.0/144):08x}, v{sm}")
        a(f"v_sub_f32 v{T+1}, v{XV}, v{T+2}")
        a(f"v_mul_f32 v{m2}, v{T+1}, v{T+1}")
        for e in range(1, 8):
            a(f"v_sub_f32 v{T+1}, v{XV+e}, v{T+2}")
            a(f"v_fmac_f32 v{m2}, v{T+1}, v{T+1}")
        a(f"v_cndmask_b32 v{m2}, 0, v{m2}, s[50:51]")
    red32([S0 + 1, S0 + 3], T + 1)
    a("s_lshl_b32 s46, s37, 10")
    a(f"s_add_u32 s46, s46, {wso('ST')}")
    a("s_lshl_b32 s47, s36, 8")
    a("s_add_u32 s47, s47, s46")
    a(f"v_lshlrev_b32 v{T}, 3, v{VROW}")
    a(f"v_cmp_eq_u32 vcc, 0, v{VC}")
    a(f"v_mov_b32 v{T+1}, 0x7f000000")
    a("s_nop 0")
    a(f"v_cndmask_b32 v{T+1}, v{T+1}, v{T}, vcc")
    a(f"v_min_u32 v{S0}, -2, v{S0}")
    a(f"v_min_u32 v{S0+2}, -2, v{S0+2}")
    a(f"buffer_store_dwordx2 v[{S0}:{S0+1}], v{T+1}, {WS_}, s47 offen{SC}")
    a(f"buffer_store_dwordx2 v[{S0+2}:{S0+3}], v{T+1}, {WS_}, s47 offen offset:128{SC}")
    if not c.sync: a("s_waitcnt vmcnt(0)")
    st.stamp(1)
    return dict(T=T, VROW=VROW, VC=VC, X1V=X1V, C2=C2, RD=RD, XR=XR)

def ph2c(c, r):
    a = c.a; st = c.st
    T, VROW, VC, X1V, C2, RD, XR = r["T"], r["VROW"], r["VC"], r["X1V"], r["C2"], r["RD"], r["XR"]
    a("s_mul_i32 s47, s36, 18")
    a(f"v_add_u32 v{T+1}, s47, v{VC}")
    a(f"v_lshrrev_b32 v{T+2}, 1, v{T+1}")
    a(f"v_lshlrev_b32 v{T+2}, 6, v{T+2}")
    a(f"v_and_b32 v{T+1}, 1, v{T+1}")
    a(f"v_add_u32 v{T+2}, v{T+2}, v{T+1}")
    a(f"v_lshl_add_u32 v{T+2}, v{VROW}, 1, v{T+2}")
    a(f"v_lshlrev_b32 v{T+2}, 4, v{T+2}")
    a(f"v_mov_b32 v{T+1}, 0x7f000000")
    a(f"v_cndmask_b32 v{T+2}, v{T+1}, v{T+2}, s[50:51]")
    a("s_mul_i32 s47, s37, 36864")
    a(f"s_add_u32 s47, s47, {wso('H2')}")
    UA = RD + 16
    for d in range(4):
        a(f"v_lshlrev_b32 v{UA+2*d}, 16, v{C2+d}")
        a(f"v_and_b32 v{UA+2*d+1}, 0xffff0000, v{C2+d}")
        a(f"v_lshlrev_b32 v{UA+8+2*d}, 16, v{C2+4+d}")
        a(f"v_and_b32 v{UA+8+2*d+1}, 0xffff0000, v{C2+4+d}")
    def st_loads():
        for ps in range(2):
            for q in range(4):
                d = RD + (ps * 4 + q) * 2
                a(f"buffer_load_dwordx2 v[{d}:{d+1}], v{T}, {WS_}, s46 offen offset:{q*256 + ps*128}{SC}")
    poll_loads(c, st_loads, [RD + 2 * q for q in range(8)], T + 3)
    st.stamp()
    for ps in range(2):
        b = RD + ps * 8
        mean = T + 3; m2 = T + 4
        a(f"v_add_f32 v{mean}, v{b}, v{b+2}")
        a(f"v_add_f32 v{T+5}, v{b+4}, v{b+6}")
        a(f"v_add_f32 v{mean}, v{mean}, v{T+5}")
        a(f"v_mul_f32 v{mean}, 0x{np_f32(1.0/576):08x}, v{mean}")
        a(f"v_add_f32 v{m2}, v{b+1}, v{b+3}")
        a(f"v_add_f32 v{T+5}, v{b+5}, v{b+7}")
        a(f"v_add_f32 v{m2}, v{m2}, v{T+5}")
        a(f"v_mov_b32 v{T+6}, 0x{np_f32(144.0):08x}")
        for q in range(4):
            a(f"v_mul_f32 v{T+5}, 0x{np_f32(1.0/144):08x}, v{b+2*q}")
            a(f"v_sub_f32 v{T+5}, v{T+5}, v{mean}")
            a(f"v_mul_f32 v{T+5}, v{T+5}, v{T+5}")
            a(f"v_fmac_f32 v{m2}, v{T+5}, v{T+6}")
        ln_scalars(a, mean=mean, ssq=m2, rinv=m2, corr=T + 5, tmp=T + 6)
        XV = X1V + 8 * ps
        for e in range(8):
            a(f"v_sub_f32 v{XV+e}, v{XV+e}, v{mean}")
            a(f"v_fma_f32 v{XV+e}, v{XV+e}, v{m2}, v{T+5}")
            a(f"v_fma_f32 v{XV+e}, v{XV+e}, v{UA+e}, v{UA+8+e}")
        for d in range(4):
            a(f"v_cvt_pk_bf16_f32 v{XR+4*ps+d}, v{XV+2*d}, v{XV+2*d+1}")
        a(f"v_min_u32 v{XR+4*ps}, -2, v{XR+4*ps}")
        a(f"buffer_store_dwordx4 v[{XR+4*ps}:{XR+4*ps+3}], v{T+2}, {WS_}, s47 offen offset:{ps*512}{SC}")
    a("s_lshr_b32 s59, s37, 3")
    a("s_lshl_b32 s59, s59, 6")
    a(f"s_add_u32 s59, s59, {CB()}")
    signal(c, 59, T + 1)
    st.stamp()

SLOT3 = 36992
UPOFF = 18560
def ph3(c):
    a = c.a; st = c.st
    a("s_and_b32 s36, s2, 31")
    a("s_lshr_b32 s37, s2, 5")
    a("s_and_b32 s38, s24, 3")
    a("s_lshr_b32 s39, s24, 2")
    R = Regs(1)
    T = R.alloc(6); VD = R.alloc(5); VA = R.alloc(1); TRB = R.alloc(4); VST = R.alloc(1)
    ACT = R.alloc(64, 4); WB = R.alloc(24, 4); ACC = R.alloc(144, 4)
    vm = VmTracker(a)
    if c.sync:
        w3 = c.w3
        for j in range(5): a(f"v_mov_b32 v{VD+j}, v{VD3+j}")
        w3.VD = VD
        if OPT("early") == "1":
            vm.issue(("D", 0), 5); vm.issue(("D", 1), 5)
        else:
            for i in range(2):
                for f in w3.pieces(i, vm): f()
    else:
        w3 = w3_setup(c, VD, T)
        for i in range(2):
            for f in w3.pieces(i, vm): f()
    a(f"v_and_b32 v{T}, 31, v0")
    a(f"v_lshrrev_b32 v{T+1}, 5, v0")
    a(f"v_lshl_add_u32 v{VA}, v{T}, 1, v{T+1}")
    a(f"v_lshlrev_b32 v{VA}, 4, v{VA}")
    a("s_lshl_b32 s43, s37, 3")
    a("s_add_u32 s43, s43, s24")
    a(f"s_mul_i32 s44, s43, {36*1024}")
    a(f"s_add_u32 s44, s44, {wso('H2')}")
    a("s_mov_b32 s47, s3")
    def dma_pieces(i): return w3.pieces(i, vm)
    def a_pieces(i):
        def piece(s):
            if s == 0:
                a(f"s_lshl_b32 s{52+i%4}, s47, 12")
                a(f"s_add_u32 s{52+i%4}, s{52+i%4}, s44")
                adv(a, 47, 9)
            r = ACT + ((i % 4) * 4 + s) * 4
            a(f"buffer_load_dwordx4 v[{r}:{r+3}], v{VA}, {WS_}, s{52+i%4} offen offset:{s*1024}")
            vm.issue(("A", i))
        return [(lambda s=s: piece(s)) for s in range(4)]
    for f in dma_pieces(2): f()
    if c.sync:
        warm_w2(c, 252)
        vm.issue("W")
    a(f"v_and_b32 v{T}, 3, v0")
    a(f"v_bfe_u32 v{T+1}, v0, 2, 2")
    a(f"v_bfe_u32 v{T+2}, v0, 4, 1")
    a(f"v_lshrrev_b32 v{T+3}, 5, v0")
    a(f"v_lshl_add_u32 v{T+1}, v{T+3}, 3, v{T+1}")
    a(f"v_mul_u32_u24 v{T+1}, 288, v{T+1}")
    a(f"v_lshrrev_b32 v{T+3}, 1, v{T}")
    a(f"v_mul_u32_u24 v{T+3}, {UPOFF}, v{T+3}")
    a(f"v_add_u32 v{T+1}, v{T+1}, v{T+3}")
    a(f"v_lshl_add_u32 v{T+1}, v{T+2}, 4, v{T+1}")
    a(f"v_and_b32 v{T}, 1, v{T}")
    a(f"v_lshl_add_u32 v{TRB}, v{T}, 3, v{T+1}")
    for k in range(1, 4):
        a(f"v_add_u32 v{TRB+k}, {k*SLOT3}, v{TRB}")
    a(f"v_bfe_u32 v{T}, v0, 4, 1")
    a(f"v_lshrrev_b32 v{T+1}, 5, v0")
    a(f"v_and_b32 v{T+2}, 15, v0")
    a(f"v_lshl_add_u32 v{T+2}, v{T}, 6, v{T+2}")
    a(f"v_lshl_add_u32 v{T+2}, v{T+1}, 4, v{T+2}")
    a(f"v_lshlrev_b32 v{VST}, 4, v{T+2}")
    a("s_lshl_b32 s45, s37, 6")
    a(f"s_add_u32 s45, s45, {CB()}")
    wait_ctr(c, 45, 32, T)
    st.stamp()
    for i in range(2):
        for f in a_pieces(i): f()
    pipe = TrPipe(a, WB, 6, 5)
    slows = []
    a("s_mul_i32 s50, s36, 9")
    a("s_lshl_b32 s51, s43, 11")
    a(f"s_add_u32 s51, s51, {wso('HH')}")
    def boundary(i):
        tags = [("A", i), ("D", i)]
        if 1 <= i < 6: tags.append(("D", i + 1))
        if i == 6: tags += [("A", 7), ("A", 8), ("D", 7), ("D", 8)]
        vm.wait(*tags)
        if False:
            sts = [i] if i < 6 else [6, 7, 8]
            regs = [ACT + ((q % 4) * 4 + s) * 4 for q in sts for s in range(4)]
            back = a.newlabel("P3B"); slow = a.newlabel("P3S")
            umax_chain(a, regs, T + 2)
            a(f"v_cmp_eq_u32 vcc, -1, v{T+2}")
            a("s_nop 1")
            a(f"s_cbranch_vccnz {slow}")
            a.label(back)
            slows.append((slow, back, sts, regs))
        a("s_barrier")
        if i in (0, 1): st.stamp(1)
        elif "p3st" in DBG: st.stamp(1)
    def spread(i):
        p = []
        if i + 3 < 9: p += dma_pieces(i + 3)
        if i < 4: p += a_pieces(i + 2)
        elif i == 4: p += a_pieces(6) + a_pieces(7)
        elif i == 5: p += a_pieces(8)
        return p
    def item(i, s, j):
        def fn(w):
            d = ACC + j * 16
            b = ACT + ((i % 4) * 4 + s) * 4
            cc = "0" if (i == 0 and s == 0) else f"v[{d}:{d+15}]"
            a(f"v_mfma_f32_32x32x16_bf16 v[{d}:{d+15}], v[{w}:{w+3}], v[{b}:{b+3}], {cc}")
        o = 16 * s * 288 + 32 * j
        return (TRB + i % 4, o, o + 4 * 288, fn)
    def epi_pieces(j):
        d = ACC + j * 16
        def quarter(half, e):
            g0 = d + 8 * half + e; u0 = g0 + 4
            for q in range(2): a(f"v_mul_f32 v{T+q}, {NLOG2E}, v{g0+q}")
            for q in range(2): a(f"v_exp_f32 v{T+q}, v{T+q}")
            for q in range(2): a(f"v_mul_f32 v{g0+q}, v{g0+q}, v{u0+q}")
            for q in range(2): a(f"v_add_f32 v{T+q}, 1.0, v{T+q}")
            for q in range(2): a(f"v_rcp_f32 v{T+q}, v{T+q}")
            a("s_nop 0")
            for q in range(2): a(f"v_mul_f32 v{g0+q}, v{g0+q}, v{T+q}")
            a(f"v_cvt_pk_bf16_f32 v{d+4+2*half+e//2}, v{g0}, v{g0+1}")
        def store():
            a(f"s_add_u32 s48, s50, {j}")
            a("s_lshr_b32 s49, s48, 1")
            a("s_lshl_b32 s49, s49, 17")
            a("s_and_b32 s48, s48, 1")
            a("s_lshl_b32 s48, s48, 9")
            a("s_add_u32 s49, s49, s48")
            a("s_add_u32 s49, s49, s51")
            a(f"buffer_store_dwordx4 v[{d+4}:{d+7}], v{VST}, {WS_}, s49 offen{SC}")
        return [(lambda h=h, e=e: quarter(h, e)) for h in range(2) for e in (0, 2)] + [store]
    stages = [[item(i, s, j) for s in range(4) for j in range(9)] for i in range(6)]
    stages.append([item(i, s, j) for j in range(9) for i in range(6, 9) for s in range(4)])
    def hooks(i):
        h = {}
        if i == 6 and c.sync:
            def setup4(): c.w4 = w4_setup(c, VD, T)
            h.setdefault(1, []).append(setup4)
            for q in range(5):
                h.setdefault(3 + 2 * q, []).append(lambda q=q: c.w4.pieces(0)[q]())
        if i == 6:
            for j in range(8):
                for q, f in enumerate(epi_pieces(j)):
                    h.setdefault((j + 1) * 12 + 3 + 2 * q, []).append(f)
        return h
    run_stages(a, pipe, stages, boundary, spread, hooks)
    st.stamp()
    a.nop(12)
    for f in epi_pieces(8): f()
    a("s_lshl_b32 s45, s37, 2")
    a("s_lshr_b32 s46, s36, 3")
    a("s_add_u32 s45, s45, s46")
    a("s_lshl_b32 s45, s45, 6")
    a(f"s_add_u32 s45, s45, {CC()}")
    signal(c, 45, T)
    st.stamp()
    if slows:
        over = a.newlabel("P3OVER")
        a(f"s_branch {over}")
        for slow, back, sts, regs in slows:
            a.label(slow)
            def reload(sts=sts):
                for q in sts:
                    for s in range(4):
                        r = ACT + ((q % 4) * 4 + s) * 4
                        a(f"buffer_load_dwordx4 v[{r}:{r+3}], v{VA}, {WS_}, s{52+q%4} offen offset:{s*1024}{SC}")
            poll_loads(c, reload, regs, T + 2)
            a(f"s_branch {back}")
        a.label(over)

SLOT4 = 36864
def ph4(c):
    a = c.a; st = c.st
    a("s_bfe_u32 s36, s2, 0x20001")
    a("s_and_b32 s37, s2, 1")
    a("s_lshl_b32 s37, s37, 3")
    a("s_bfe_u32 s38, s2, 0x30003")
    a("s_add_u32 s37, s37, s38")
    a("s_lshr_b32 s39, s2, 6")
    a("s_and_b32 s40, s24, 3")
    a("s_lshr_b32 s41, s24, 2")
    R = Regs(1)
    T = R.alloc(6); VD = R.alloc(5); VL16 = R.alloc(1); TRB = R.alloc(4)
    ACT = R.alloc(48, 4); WB = R.alloc(32, 4); ACC = R.alloc(72, 4)
    vm = VmTracker(a)
    if c.sync:
        w4 = c.w4
        assert w4.VD == VD
        vm.issue(("D", 0), 5)
    else:
        w4 = w4_setup(c, VD, T)
        for f in w4.pieces(0, vm): f()
    a(f"v_lshlrev_b32 v{VL16}, 4, v0")
    a("s_mul_i32 s46, s36, 36")
    a("s_mul_i32 s47, s41, 18")
    a("s_add_u32 s46, s46, s47")
    a("s_lshl_b32 s46, s46, 7")
    a("s_lshl_b32 s47, s37, 3")
    a("s_add_u32 s46, s46, s47")
    a("s_lshl_b32 s47, s40, 1")
    a("s_add_u32 s46, s46, s47")
    a("s_add_u32 s47, s46, s41")
    a("s_xor_b32 s48, s41, 1")
    a("s_add_u32 s48, s46, s48")
    a("s_lshl_b32 s47, s47, 10")
    a("s_lshl_b32 s48, s48, 10")
    a(f"s_add_u32 s47, s47, {wso('HH')}")
    a(f"s_add_u32 s48, s48, {wso('HH')}")
    a("s_mov_b32 s50, s25")
    def dma_pieces(i): return w4.pieces(i, vm)
    def a_pieces(i):
        def piece(s, t):
            if s == 0 and t == 0:
                a("s_lshl_b32 s51, s50, 18")
                adv(a, 50, 9)
            r = ACT + (((i % 3) * 2 + s) * 2 + t) * 4
            a(f"s_add_u32 s52, s{47+t}, s51")
            if s: a("s_add_u32 s52, s52, 131072")
            a(f"buffer_load_dwordx4 v[{r}:{r+3}], v{VL16}, {WS_}, s52 offen")
            vm.issue(("A", i))
        return [(lambda s=s, t=t: piece(s, t)) for s in range(2) for t in range(2)]
    for i in range(1, 3):
        for f in dma_pieces(i): f()
    a(f"v_lshrrev_b32 v{T}, 5, v0")
    a(f"v_lshlrev_b32 v{T}, 4, v{T}")
    a(f"v_bfe_u32 v{T+1}, v0, 2, 3")
    a(f"v_add_u32 v{T}, v{T}, v{T+1}")
    a(f"v_mul_u32_u24 v{T}, 288, v{T}")
    a(f"v_and_b32 v{T+1}, 3, v0")
    a(f"v_lshl_add_u32 v{T}, v{T+1}, 3, v{T}")
    a("s_mul_i32 s52, s41, 18432")
    a(f"v_add_u32 v{TRB}, s52, v{T}")
    for k in range(1, 4):
        a(f"v_add_u32 v{TRB+k}, {k*SLOT3}, v{TRB}")
    a("s_lshr_b32 s45, s37, 1")
    a("s_lshl_b32 s45, s45, 2")
    a("s_add_u32 s45, s45, s36")
    a("s_lshl_b32 s45, s45, 6")
    a(f"s_add_u32 s45, s45, {CC()}")
    a("s_lshr_b32 s53, s37, 1")
    a("s_lshl_b32 s53, s53, 6")
    a(f"s_add_u32 s53, s53, {CB()}")
    wait_ctr2(c, 45, 8, 53, 32, T)
    st.stamp()
    for i in range(2):
        for f in a_pieces(i): f()
    pipe = TrPipe(a, WB, 8, 6)
    def boundary(i):
        tags = [("A", i), ("D", i)]
        if 1 <= i < 8: tags.append(("D", i + 1))
        vm.wait(*tags)
        a("s_barrier")
        if i in (0, 1): st.stamp(1)
    def spread(i):
        p = []
        if i + 2 < 9: p += a_pieces(i + 2)
        if i + 3 < 9: p += dma_pieces(i + 3)
        return p
    stages = []
    for i in range(9):
        its = []
        for s in range(2):
            for t9 in range(9):
                def fn(w, i=i, s=s, t9=t9):
                    for t in range(2):
                        d = ACC + (t * 9 + t9) * 4
                        b = ACT + (((i % 3) * 2 + s) * 2 + t) * 4
                        cc = "0" if (i == 0 and s == 0) else f"v[{d}:{d+3}]"
                        a(f"v_mfma_f32_16x16x32_bf16 v[{d}:{d+3}], v[{w}:{w+3}], v[{b}:{b+3}], {cc}")
                o = 32 * s * 288 + 32 * t9
                its.append((TRB + (i + 1) % 4, o, o + 8 * 288, fn))
        stages.append(its)
    run_stages(a, pipe, stages, boundary, spread)
    st.stamp()
    a("s_lshl_b32 s46, s40, 1")
    a("s_add_u32 s47, s46, s41")
    a("s_xor_b32 s48, s47, 1")
    a("s_mul_i32 s49, s47, 9216")
    a("s_mul_i32 s48, s48, 9216")
    a(f"s_add_u32 s50, s49, {2*SLOT3}")
    a(f"s_add_u32 s48, s48, {2*SLOT3}")
    a(f"v_add_u32 v{T}, s50, v{VL16}")
    a(f"v_add_u32 v{T+1}, s48, v{VL16}")
    a.nop(4)
    for t9 in range(9):
        d = ACC + (9 + t9) * 4
        a(f"ds_write_b128 v{T}, v[{d}:{d+3}] offset:{t9*1024}")
    a("s_lshl_b32 s46, s37, 2")
    a("s_add_u32 s46, s46, s39")
    a("s_lshl_b32 s50, s46, 2")
    a("s_add_u32 s50, s50, s36")
    a("s_mul_i32 s50, s50, 73728")
    a("s_add_u32 s50, s50, s49")
    a(f"s_add_u32 s50, s50, {wso('PART')}")
    a("s_add_u32 s51, s50, 4096")
    a("s_add_u32 s52, s50, 8192")
    a("s_waitcnt lgkmcnt(0)")
    a("s_barrier")
    for t9 in range(9):
        d = ACC + (9 + t9) * 4
        a(f"ds_read_b128 v[{d}:{d+3}], v{T+1} offset:{t9*1024}")
    own = c.sync
    if own:
        labO = a.newlabel("P4OWN"); labD = a.newlabel("P4DONE")
        a("s_cmp_eq_u32 s40, s36")
        a(f"s_cbranch_scc1 {labO}")
    for t9 in range(9):
        d = ACC + t9 * 4; e = ACC + (9 + t9) * 4
        a(f"s_waitcnt lgkmcnt({8-t9})")
        for k in range(4):
            a(f"v_add_f32 v{d+k}, v{d+k}, v{e+k}")
        a(f"buffer_store_dwordx4 v[{d}:{d+3}], v{VL16}, {WS_}, s{50+t9//4} offen offset:{(t9%4)*1024}{SC}")
    if own:
        a(f"s_branch {labD}")
        a.label(labO)
        a("s_mul_i32 s50, s41, 9216")
        a(f"v_add_u32 v{T}, s50, v{VL16}")
        a("s_waitcnt lgkmcnt(0)")
        for t9 in range(9):
            d = ACC + t9 * 4; e = ACC + (9 + t9) * 4
            for k in range(4):
                a(f"v_add_f32 v{d+k}, v{d+k}, v{e+k}")
            a(f"ds_write_b128 v{T}, v[{d}:{d+3}] offset:{t9*1024}")
        a("s_waitcnt lgkmcnt(0)")
        a.label(labD)
    a("s_lshl_b32 s45, s46, 6")
    a(f"s_add_u32 s45, s45, {CD()}")
    signal(c, 45, T)
    st.stamp()

def ph5(c):
    a = c.a; st = c.st
    a("s_bfe_u32 s36, s2, 0x20001")
    a("s_and_b32 s37, s2, 1")
    a("s_lshl_b32 s37, s37, 3")
    a("s_bfe_u32 s38, s2, 0x30003")
    a("s_add_u32 s37, s37, s38")
    a("s_lshr_b32 s39, s2, 6")
    a("s_lshl_b32 s46, s37, 2")
    a("s_add_u32 s46, s46, s39")
    R = Regs(1)
    T = R.alloc(6); VL16 = R.alloc(1); VO = R.alloc(3); VG = R.alloc(1)
    PB = R.alloc(48, 4); XR = R.alloc(6, 2); GB = R.alloc(12, 4)
    a(f"v_lshlrev_b32 v{VL16}, 4, v0")
    a("s_lshl_b32 s40, s37, 7")
    a("s_lshl_b32 s41, s36, 5")
    a("s_add_u32 s40, s40, s41")
    a(f"v_and_b32 v{T}, 15, v0")
    a(f"v_add_u32 v{T}, s40, v{T}")
    a(f"v_mul_u32_u24 v{T}, 1152, v{T}")
    a(f"v_lshrrev_b32 v{VG}, 4, v0")
    a(f"v_lshl_add_u32 v{T}, v{VG}, 3, v{T}")
    a(f"v_lshlrev_b32 v{VG}, 4, v{VG}")
    a("s_mul_i32 s41, s39, 288")
    a(f"s_mov_b32 s53, {wso('X1')}")
    for q in range(3):
        a(f"s_add_u32 s42, s24, {8*q}")
        a("s_cmp_ge_u32 s42, 9")
        a("s_cselect_b32 s43, 1, 0")
        a("s_mul_i32 s44, s43, 9")
        a("s_sub_u32 s44, s42, s44")
        a(f"s_mul_i32 s47, s43, {16*1152}")
        a("s_lshl_b32 s48, s44, 5")
        a("s_add_u32 s47, s47, s48")
        a("s_add_u32 s47, s47, s41")
        a("s_cmp_ge_u32 s42, 18")
        a("s_cselect_b32 s47, 0x7f000000, s47")
        a(f"v_add_u32 v{VO+q}, s47, v{T}")
        a(f"buffer_load_dwordx2 v[{XR+2*q}:{XR+2*q+1}], v{VO+q}, {WS_}, s53 offen{SC}")
        a("s_lshl_b32 s48, s44, 6")
        a("s_mul_i32 s49, s39, 576")
        a("s_add_u32 s48, s48, s49")
        a(f"s_add_u32 s48, s48, {wso('MOD') + 5*576*4}")
        a(f"buffer_load_dwordx4 v[{GB+4*q}:{GB+4*q+3}], v{VG}, {WS_}, s48 offen{SC}")
    a("s_lshl_b32 s45, s46, 6")
    a(f"s_add_u32 s45, s45, {CD()}")
    wait_ctr(c, 45, 4, T + 1)
    st.stamp()
    a("s_mul_i32 s50, s46, 294912")
    a("s_mul_i32 s51, s36, 18432")
    a("s_add_u32 s50, s50, s51")
    a("s_lshl_b32 s51, s24, 10")
    a("s_add_u32 s50, s50, s51")
    a(f"s_add_u32 s50, s50, {wso('PART')}")
    nsrc = 3 if c.sync else 4
    if c.sync:
        a("s_lshl_b32 s51, s24, 10")
        a(f"v_add_u32 v{T+3}, s51, v{VL16}")
        for q in range(3):
            r = PB + (q * 4 + 3) * 4
            a(f"ds_read_b128 v[{r}:{r+3}], v{T+3} offset:{q*8192}")
        for src in range(3):
            a(f"s_add_u32 s{54+src}, s36, {src+1}")
            a(f"s_and_b32 s{54+src}, s{54+src}, 3")
            a(f"s_mul_i32 s{54+src}, s{54+src}, 73728")
            a(f"s_add_u32 s{54+src}, s{54+src}, s50")
    for q in range(3):
        for src in range(nsrc):
            r = PB + (q * 4 + src) * 4
            if c.sync:
                a(f"s_add_u32 s51, s{54+src}, {q*8192}")
            else:
                a(f"s_add_u32 s51, s50, {src*73728 + q*8192}")
            a(f"buffer_load_dwordx4 v[{r}:{r+3}], v{VL16}, {WS_}, s51 offen{SC}")
    a("s_waitcnt lgkmcnt(0)")
    for q in range(3):
        a(f"s_waitcnt vmcnt({nsrc*(2-q)+q})")
        p = PB + q * 16
        for e in range(4):
            a(f"v_add_f32 v{p+e}, v{p+e}, v{p+4+e}")
            a(f"v_add_f32 v{p+8+e}, v{p+8+e}, v{p+12+e}")
            a(f"v_add_f32 v{p+e}, v{p+e}, v{p+8+e}")
        for d in range(2):
            x = XR + 2 * q + d
            a(f"v_lshlrev_b32 v{T+1}, 16, v{x}")
            a(f"v_and_b32 v{T+2}, 0xffff0000, v{x}")
            a(f"v_fmac_f32 v{T+1}, v{GB+4*q+2*d}, v{p+2*d}")
            a(f"v_fmac_f32 v{T+2}, v{GB+4*q+2*d+1}, v{p+2*d+1}")
            a(f"v_cvt_pk_bf16_f32 v{x}, v{T+1}, v{T+2}")
        a(f"buffer_store_dwordx2 v[{XR+2*q}:{XR+2*q+1}], v{VO+q}, {OUT_}, 0 offen")

LDS_MEGA = 163840
def gen_split(a):
    def wrap(name, fn):
        a.begin_kernel(name)
        end = name.upper() + "_END"
        st = Stamper(a, name[:-7])
        c = Ctx(a, False, st)
        prologue(a, end)
        st.stamp()
        fn(c)
        st.finish(24, 1)
        a.label(end)
        a.end_kernel(name, vgpr=256, sgpr=102, grid=256, block=512, lds=LDS_MEGA)
    wrap("p12_kernel", ph12)
    wrap("p2w_kernel", lambda c: ph2w(c, True))
    wrap("p2c_kernel", lambda c: ph2c(c, ph2w(c, True)))
    wrap("p3_kernel", ph3)
    wrap("p4_kernel", ph4)
    wrap("p5_kernel", ph5)

def gen_mega(a):
    name = "pmega_kernel"
    a.begin_kernel(name)
    st = Stamper(a, "mega", wg=int(os.environ.get("STAMP_WG", "0")))
    st.level = int(os.environ.get('STAMP_LEVEL', '0'))
    c = Ctx(a, True, st)
    prologue(a, "MEGA_END", warm=True)
    st.stamp()
    ph12(c)
    r = ph2w(c)
    ph2c(c, r)
    ph3(c)
    ph4(c)
    ph5(c)
    st.finish(24, 1)
    a.label("MEGA_END")
    a.end_kernel(name, vgpr=256, sgpr=102, grid=256, block=512, lds=LDS_MEGA)
```
